```python
import torch

def _softmax(x, axis=-1):
    return torch.softmax(x, dim=axis)
def _gelu(x):
    return torch.nn.functional.gelu(x, approximate="tanh")
def _silu(x):
    return torch.nn.functional.silu(x)
def _sigmoid(x):
    return torch.sigmoid(x)
def _layernorm(x, axis=-1, eps=1e-5):
    m = x.mean(dim=axis, keepdim=True)
    v = x.var(dim=axis, keepdim=True, unbiased=False)
    return (x - m) / torch.sqrt(v + eps)
def _scatter_add(tgt, idx, src, axis=0):
    return tgt.clone().index_add_(axis, idx, src)
def _segment_sum(src, seg, n):
    out = torch.zeros((n,) + src.shape[1:], dtype=src.dtype)
    return out.index_add_(0, seg, src)
def _pad(x, pw):
    flat = tuple(v for pair in reversed(pw) for v in pair)
    return torch.nn.functional.pad(x, flat)

kernel_name = 'interleave_layers__sliding_local_dilated__moe_arch_mod__prompt'

def setup_inputs():

    _w = (lambda a: (lambda t: t.to(torch.bfloat16) if t.is_floating_point() else t)(torch.as_tensor(a)))
    def _A_setup():
        B, S, D = 1, 2048, 512
        return {
            "x": _w((lambda *s: torch.randn(*s, dtype=torch.bfloat16) * 0.05)(B, S, D)),
            "wqkv": _w((lambda *s: torch.randn(*s, dtype=torch.bfloat16) * 0.05)(D, 3 * D)),
            "wo": _w((lambda *s: torch.randn(*s, dtype=torch.bfloat16) * 0.05)(D, D)),
        }
    _A_in = _A_setup()

    def _B_setup():
        B, S, D, F, C = 1, 2048, 512, 1792, 8
        return {
            "x": _w((lambda *s: torch.randn(*s, dtype=torch.bfloat16) * 0.05)(B, S, D)),
            "w_r": _w((lambda *s: torch.randn(*s, dtype=torch.bfloat16) * 0.05)(D)),
            "w_gate": _w((lambda *s: torch.randn(*s, dtype=torch.bfloat16) * 0.05)(D, F)),
            "w_up": _w((lambda *s: torch.randn(*s, dtype=torch.bfloat16) * 0.05)(D, F)),
            "w_down": _w((lambda *s: torch.randn(*s, dtype=torch.bfloat16) * 0.05)(F, D)),
        }
    _B_in = _B_setup()

    return {
        "A_x": _A_in["x"],
        "A_wqkv": _A_in["wqkv"],
        "A_wo": _A_in["wo"],
        "B_x": _B_in["x"],
        "B_w_r": _B_in["w_r"],
        "B_w_gate": _B_in["w_gate"],
        "B_w_up": _B_in["w_up"],
        "B_w_down": _B_in["w_down"],
    }

def reference(A_x, A_wqkv, A_wo, B_x, B_w_r, B_w_gate, B_w_up, B_w_down):
    def _A_ref(x, wqkv, wo):
        B, S, D = x.shape
        H = 32; Dh = D // H
        W, dil = 8, 2
        qkv = (lambda x, *d: x.permute(*d))((x @ wqkv).reshape(B, S, 3, H, Dh), 2, 0, 3, 1, 4)
        q, k, v = qkv[0], qkv[1], qkv[2]
        scale = Dh ** -0.5
        pos = torch.arange(S)
        off = torch.arange(W) * dil
        idx = pos[:, None] - off[None, :]
        mask = idx >= 0
        idx_c = torch.where(mask, idx, 0).reshape(-1)
        kg = k[:, :, idx_c, :].reshape(B, H, S, W, Dh)
        vg = v[:, :, idx_c, :].reshape(B, H, S, W, Dh)
        logits = torch.einsum("bhsd,bhswd->bhsw", q, kg) * scale
        logits = torch.where(mask[None, None, :, :], logits, -1e9)
        attn = _softmax(logits, axis=-1)
        o = torch.einsum("bhsw,bhswd->bhsd", attn, vg)
        return (lambda x, *d: x.permute(*d))(o, 0, 2, 1, 3).reshape(B, S, D) @ wo

    def _B_ref(x, w_r, w_gate, w_up, w_down):
        B, S, D = x.shape
        C = 8
        r = x @ w_r
        idx = torch.argsort(-r, axis=-1)[:, :C]
        idx_e = (lambda x, n, axis: torch.repeat_interleave(x, n, dim=axis))(idx.reshape(B, C, 1), D, axis=2)
        x_sel = (lambda x, i, axis: torch.take_along_dim(x, i, dim=axis))(x, idx_e, axis=1)
        g = _silu(x_sel @ w_gate)
        u = x_sel @ w_up
        y = (g * u) @ w_down
        r_sel = _sigmoid((lambda x, i, axis: torch.take_along_dim(x, i, dim=axis))(r, idx, axis=1))
        y = y * r_sel.reshape(B, C, 1)
        b_off = (torch.arange(B) * S).reshape(B, 1)
        flat_idx = (idx + b_off).reshape(B * C)
        zero = (x * 0.0).reshape(B * S, D)
        upd = _scatter_add(zero, flat_idx, y.reshape(B * C, D), axis=0)
        return x + upd.reshape(B, S, D)

    x = A_x
    x = x + _A_ref(_layernorm(x, axis=-1), A_wqkv, A_wo)
    x = x + _B_ref(_layernorm(x, axis=-1), B_w_r, B_w_gate, B_w_up, B_w_down)
    x = x + _A_ref(_layernorm(x, axis=-1), A_wqkv, A_wo)
    x = x + _B_ref(_layernorm(x, axis=-1), B_w_r, B_w_gate, B_w_up, B_w_down)
    return x
```

```python
import re

REG_RE = re.compile(r'\b([vas])(\d+)\b|\b([vas])\[(\d+):(\d+)\]|\b(vcc|exec|m0|scc)\b')

TRANS = ('v_exp_f32', 'v_log_f32', 'v_rcp_f32', 'v_rsq_f32', 'v_sqrt_f32', 'v_sin_f32', 'v_cos_f32',
         'v_rcp_iflag_f32')


def regs_of(op):
    out = set()
    for m in REG_RE.finditer(op):
        if m.group(1):
            out.add((m.group(1), int(m.group(2))))
        elif m.group(3):
            for i in range(int(m.group(4)), int(m.group(5)) + 1):
                out.add((m.group(3), i))
        else:
            out.add((m.group(6), 0))
    return out


def split_ops(s):
    ops, cur, depth = [], '', 0
    for ch in s:
        if ch == '[':
            depth += 1
        elif ch == ']':
            depth -= 1
        if ch == ',' and depth == 0:
            ops.append(cur.strip())
            cur = ''
        else:
            cur += ch
    if cur.strip():
        ops.append(cur.strip())
    return ops


class Ins:
    __slots__ = ('text', 'mn', 'cls', 'wr', 'rd', 'srcc', 'srcab', 'dpp', 'passes', 'ws', 'lds_dma',
                 'wide_store_data', 'lane_sel')

    def __init__(self, text):
        self.text = text
        t = text.split(';')[0].strip()
        parts = t.split(None, 1)
        self.mn = parts[0]
        rest = parts[1] if len(parts) > 1 else ''
        ops = split_ops(rest)
        mn = self.mn
        self.wr, self.rd = set(), set()
        self.srcc, self.srcab = set(), set()
        self.dpp = ('_dpp' in mn) or ('quad_perm' in rest) or ('row_' in rest)
        self.passes = 0
        self.ws = 1
        self.lds_dma = False
        self.wide_store_data = set()
        self.lane_sel = set()
        if mn == 's_nop':
            self.cls = 'nop'
            self.ws = int(ops[0], 0) + 1
            return
        def r(i):
            return regs_of(ops[i]) if i < len(ops) else set()
        if mn.startswith('v_mfma'):
            self.cls = 'mfma'
            self.wr = r(0)
            self.srcab = r(1) | r(2)
            self.srcc = r(3)
            self.rd = self.srcab | self.srcc
            self.passes = 8 if '32x32x16' in mn else 4
        elif mn.startswith('v_cmp'):
            self.cls = 'valu'
            self.wr = r(0)
            for i in range(1, len(ops)):
                self.rd |= r(i)
        elif mn.startswith('v_readlane') or mn.startswith('v_readfirstlane'):
            self.cls = 'valu'
            self.wr = r(0)
            self.rd = r(1) | r(2)
            self.lane_sel = r(2)
        elif mn.startswith('v_writelane'):
            self.cls = 'valu'
            self.wr = r(0)
            self.rd = r(0) | r(1) | r(2)
            self.lane_sel = r(2)
        elif mn.startswith('v_permlane'):
            self.cls = 'valu'
            self.wr = r(0) | r(1)
            self.rd = r(0) | r(1)
        elif mn.startswith('v_'):
            self.cls = 'trans' if re.sub(r'_e(32|64)$', '', mn) in TRANS else 'valu'
            self.wr = r(0)
            start = 1
            if '_co_' in mn:
                self.wr |= r(1)
                start = 2
            for i in range(start, len(ops)):
                self.rd |= r(i)
            if mn.startswith('v_fmac') or mn.startswith('v_dot2c') or mn.startswith('v_pk_fmac'):
                self.rd |= r(0)
            if mn.startswith('v_cndmask') and len(ops) == 3:
                self.rd.add(('vcc', 0))
            if self.dpp:
                self.rd |= r(0)
        elif mn.startswith('ds_'):
            self.cls = 'ds'
            if 'read' in mn or 'permute' in mn or 'swizzle' in mn:
                self.wr = r(0)
                for i in range(1, len(ops)):
                    self.rd |= r(i)
            else:
                for i in range(len(ops)):
                    self.rd |= r(i)
        elif mn.startswith('buffer_') or mn.startswith('global_'):
            self.cls = 'vmem'
            is_lds = re.search(r'\blds\b', rest) is not None or 'load_lds' in mn
            if 'load' in mn and not is_lds:
                self.wr = r(0)
                for i in range(1, len(ops)):
                    self.rd |= r(i)
            else:
                for i in range(len(ops)):
                    self.rd |= r(i)
                if is_lds:
                    self.lds_dma = True
                    self.rd.add(('m0', 0))
                if 'store' in mn and ('x3' in mn or 'x4' in mn):
                    self.wide_store_data = r(0) if mn.startswith('buffer_') else r(1)
        elif mn.startswith('s_'):
            self.cls = 'salu'
            if mn.startswith('s_cmp') or mn.startswith('s_waitcnt') or mn.startswith('s_barrier') or \
               mn.startswith('s_branch') or mn.startswith('s_cbranch') or mn.startswith('s_endpgm') or \
               mn.startswith('s_setprio') or mn.startswith('s_sleep'):
                for i in range(len(ops)):
                    self.rd |= r(i)
            else:
                self.wr = r(0)
                for i in range(1, len(ops)):
                    self.rd |= r(i)
                if 'saveexec' in mn:
                    self.wr.add(('exec', 0))
        else:
            self.cls = 'other'


def is_vec_reg(x):
    return x[0] in ('v', 'a')


def need_ws(p, c):
    n = 0
    pv = {x for x in p.wr if is_vec_reg(x)}
    ps = {x for x in p.wr if not is_vec_reg(x)}
    if p.cls in ('valu', 'trans'):
        if c.cls == 'mfma' and pv & c.rd:
            n = max(n, 2)
        if p.cls == 'trans' and c.cls in ('valu', 'mfma') and pv & c.rd:
            n = max(n, 1)
        if c.cls in ('valu', 'trans'):
            if (c.dpp or c.mn.startswith('v_permlane')) and pv & c.rd:
                n = max(n, 2)
            if (c.mn.startswith('v_readlane') or c.mn.startswith('v_readfirstlane')) and pv & c.rd:
                n = max(n, 1)
            if ps & c.lane_sel:
                n = max(n, 4)
            if ps & c.rd:
                n = max(n, 2)
        if c.cls == 'vmem' and ps & c.rd:
            n = max(n, 5)
        if c.cls == 'salu' and ps & c.rd:
            n = max(n, 1)
        if p.mn.startswith('v_dot'):
            if c.cls in ('valu', 'trans', 'mfma', 'ds', 'vmem') and pv & (c.rd | c.wr):
                same = (c.mn == p.mn)
                if same:
                    ops = split_ops(c.text.split(';')[0].split(None, 1)[1])
                    ab = regs_of(ops[1]) | regs_of(ops[2])
                    if pv & ab:
                        n = max(n, 3)
                else:
                    n = max(n, 3)
    if p.cls == 'mfma':
        big = {4: 8, 8: 12}[p.passes]
        if c.cls == 'mfma':
            if pv & c.srcab:
                n = max(n, big)
            if pv & c.srcc:
                if c.srcc == p.wr and c.passes == p.passes:
                    pass
                else:
                    n = max(n, {4: 6, 8: 10}[p.passes])
        elif c.cls in ('valu', 'trans', 'ds', 'vmem'):
            if pv & (c.rd | c.wr):
                n = max(n, big)
        if c.cls in ('valu', 'trans') and p.srcc & c.wr:
            n = max(n, {4: 3, 8: 7}[p.passes])
    if p.cls == 'salu' and ('m0', 0) in p.wr and c.lds_dma:
        n = max(n, 1)
    if p.cls == 'vmem' and p.wide_store_data:
        if c.cls in ('valu', 'trans') and p.wide_store_data & c.wr:
            n = max(n, 2)
        elif p.wide_store_data & c.wr:
            n = max(n, 1)
    return n


def fix_hazards(lines):
    out = []
    hist = []
    for ln in lines:
        s = ln.strip()
        if not s or s.startswith(';') or s.startswith('.') or s.endswith(':'):
            out.append(ln)
            continue
        ins = Ins(s)
        pad = 0
        dist = 0
        for p in reversed(hist):
            nw = need_ws(p, ins)
            if nw > dist:
                pad = max(pad, nw - dist)
            dist += p.ws
            if dist > 24:
                break
        while pad > 0:
            k = min(pad, 16)
            nop = Ins(f's_nop {k - 1}')
            out.append(f'    s_nop {k - 1}')
            hist.append(nop)
            pad -= k
        out.append('    ' + s)
        hist.append(ins)
        if len(hist) > 40:
            hist = hist[-40:]
    return out


class Kern:
    def __init__(self, name, nvgpr=256, accum_offset=256, nsgpr=96):
        self.name = name
        self.lines = []
        self.nvgpr = nvgpr
        self.accum_offset = accum_offset
        self.nsgpr = nsgpr

    def __call__(self, s):
        for ln in s.split('\n'):
            if ln.strip():
                self.lines.append(ln)

    def label(self, l):
        self.lines.append(f'{l}:')

    def text(self):
        body = fix_hazards(self.lines)
        hdr = f'.globl {self.name}\n.p2align 8\n.type {self.name},@function\n{self.name}:\n'
        return hdr + '\n'.join(body) + '\n'

    def desc(self):
        return f""".p2align 6
.amdhsa_kernel {self.name}
  .amdhsa_next_free_vgpr {self.nvgpr}
  .amdhsa_next_free_sgpr {self.nsgpr}
  .amdhsa_accum_offset {self.accum_offset}
  .amdhsa_group_segment_fixed_size 0
  .amdhsa_kernarg_size 88
  .amdhsa_user_sgpr_count 2
  .amdhsa_user_sgpr_kernarg_segment_ptr 1
  .amdhsa_system_sgpr_workgroup_id_x 1
.end_amdhsa_kernel
"""
```

```python
import sys
sys.path.insert(0, 'gen')
from asmlib import Kern

MB = 1 << 20
O_OFF = 0
X1_OFF = 2 * MB
X2_OFF = 4 * MB
X3_OFF = 6 * MB
ST_OFF = 8 * MB
SM_OFF = 8 * MB + 65536
H_REL = 0
SEL_REL = 32768
SM_SIZE = 65536

XBYTES = 2048 * 512 * 2


def srd(k, d, lo, hi, size, add=0):
    if add:
        k(f's_add_u32 s{d}, s{lo}, {add}')
        k(f's_addc_u32 s{d+1}, s{hi}, 0')
        k(f's_and_b32 s{d+1}, s{d+1}, 0xffff')
    else:
        k(f's_mov_b32 s{d}, s{lo}')
        k(f's_and_b32 s{d+1}, s{hi}, 0xffff')
    k(f's_mov_b32 s{d+2}, {size}')
    k(f's_mov_b32 s{d+3}, 0x00020000')


def xrow_reduce(k, v, tmp):
    k(f'v_mov_b32 v{tmp}, v{v}')
    k(f'v_permlane16_swap_b32 v{v}, v{tmp}')
    k(f'v_add_f32 v{v}, v{v}, v{tmp}')
    k(f'v_mov_b32 v{tmp}, v{v}')
    k(f'v_permlane32_swap_b32 v{v}, v{tmp}')
    k(f'v_add_f32 v{v}, v{v}, v{tmp}')


def ln_scalars(k, s1, s2, m, rinv, t1, t2, s_mask, s_inv512, s_eps):
    k(f'v_mul_f32 v{t1}, s{s_inv512}, v{s1}')
    k(f'v_mul_f32 v{t2}, s{s_inv512}, v{s2}')
    k(f'v_fma_f32 v{t2}, -v{t1}, v{t1}, v{t2}')
    k(f'v_max_f32 v{t2}, 0, v{t2}')
    k(f'v_cvt_pk_bf16_f32 v{t1}, v{t1}, v{t2}')
    k(f'v_lshlrev_b32 v{m}, 16, v{t1}')
    k(f'v_and_b32 v{t2}, s{s_mask}, v{t1}')
    k(f'v_add_f32 v{t2}, s{s_eps}, v{t2}')
    k(f'v_cvt_pk_bf16_f32 v{t2}, v{t2}, v{t2}')
    k(f'v_lshlrev_b32 v{t2}, 16, v{t2}')
    k(f'v_sqrt_f32 v{t2}, v{t2}')
    k(f'v_cvt_pk_bf16_f32 v{t2}, v{t2}, v{t2}')
    k(f'v_lshlrev_b32 v{t2}, 16, v{t2}')
    k(f'v_rcp_f32 v{rinv}, v{t2}')


def k1(layer):
    k = Kern(f'k1l{layer}_kernel', nvgpr=256 + 56, accum_offset=256, nsgpr=64)
    CS_BASE = 0
    QKV_BASE = 512
    WB = 32768
    ROWB = 208
    XF = lambda t, s: 64 + (t * 16 + s) * 4
    WF = lambda p: 24 + p * 4
    ACC = lambda t, p: (t * 6 + p) * 4
    ACCH = 48
    k('s_cmp_ge_u32 s2, 256')
    k(f's_cbranch_scc1 L_k1l{layer}_done')
    k(f's_load_dwordx2 s[4:5], s[0:1], {0 if layer == 1 else 80}')
    k('s_load_dwordx2 s[6:7], s[0:1], 8')
    k('s_load_dwordx2 s[8:9], s[0:1], 80')
    k('s_and_b32 s28, s2, 7')
    k('s_lshr_b32 s29, s2, 3')
    k('s_lshr_b32 s30, s28, 1')
    k('s_lshl_b32 s30, s30, 2')
    k('s_lshr_b32 s31, s29, 3')
    k('s_add_u32 s30, s30, s31')
    k('s_and_b32 s28, s28, 1')
    k('s_lshl_b32 s28, s28, 3')
    k('s_and_b32 s29, s29, 7')
    k('s_add_u32 s29, s28, s29')
    k('s_lshl_b32 s31, s30, 7')
    k('v_and_b32 v1, 63, v0')
    k('v_lshrrev_b32 v2, 6, v0')
    k('v_readfirstlane_b32 s30, v2')
    k('v_and_b32 v20, 15, v1')
    k('v_lshrrev_b32 v21, 4, v1')
    k('s_lshl_b32 s34, s30, 5')
    k('s_add_u32 s34, s34, s31')
    k('v_add_u32 v2, s34, v20')
    k('v_lshlrev_b32 v2, 10, v2')
    k('v_lshl_add_u32 v2, v21, 4, v2')
    k('s_sub_u32 s34, s31, 16')
    k('v_add_u32 v3, s34, v20')
    k('v_lshlrev_b32 v3, 10, v3')
    k('v_lshl_add_u32 v3, v21, 4, v3')
    k('v_lshrrev_b32 v4, 2, v1')
    k('v_mul_u32_u24 v4, 3072, v4')
    k('v_lshrrev_b32 v22, 5, v1')
    k('v_lshlrev_b32 v22, 1, v22')
    k('v_and_b32 v23, 3, v1')
    k('v_xor_b32 v22, v22, v23')
    k('v_lshl_add_u32 v4, v22, 4, v4')
    k('s_lshl_b32 s34, s29, 6')
    k('v_add_u32 v4, s34, v4')
    k('s_mul_i32 s32, s30, 49152')
    k('s_lshl_b32 s33, s30, 10')
    k(f's_add_u32 s33, s33, {WB}')
    k('s_mov_b32 s35, 16384')
    k('v_bfe_u32 v22, v1, 2, 2')
    k('v_lshlrev_b32 v22, 6, v22')
    k('v_lshl_add_u32 v22, v21, 9, v22')
    k('v_and_b32 v23, 3, v1')
    k('v_lshl_add_u32 v22, v23, 3, v22')
    k(f'v_add_u32 v22, {WB}, v22')
    k('v_and_b32 v23, 1, v21')
    k('v_lshlrev_b32 v23, 5, v23')
    k('s_and_b32 s46, s30, 1')
    k('s_xor_b32 s47, s46, 1')
    k('s_mov_b32 s40, 0')
    k('s_mov_b32 s41, 0')
    for i in range(4):
        k(f's_add_u32 s34, s30, {i}')
        k('s_and_b32 s34, s34, 3')
        k(f's_and_b32 s{48+i}, s34, 1')
        k('s_lshr_b32 s34, s34, 1')
        k(f's_add_u32 s{42+i}, s34, 1')
    for p in range(6):
        k(f's_lshl_b32 s34, s{46+p}, 5')
        k(f'v_xor_b32 v{5+p}, s34, v23')
        k(f's_lshl_b32 s34, s{40+p}, 15')
        k(f'v_add3_u32 v{5+p}, v{5+p}, s34, v22')
    for v in range(11, 19):
        k(f'v_mov_b32 v{v}, 0')
    k('v_mov_b32 v19, 0x3f803f80')
    for a in range(52):
        k(f'v_accvgpr_write_b32 a{a}, 0')
    k('s_waitcnt lgkmcnt(0)')
    srd(k, 12, 4, 5, XBYTES, 0 if layer == 1 else X2_OFF)
    srd(k, 16, 6, 7, 512 * 1536 * 2)
    srd(k, 20, 8, 9, XBYTES, O_OFF)
    if layer == 1:
        srd(k, 24, 8, 9, 65536, ST_OFF)

    def issue_chunk(c):
        for n in range(6):
            seg = n >> 1
            kk = c * 128 + 64 * (n & 1)
            k(f's_add_u32 s34, s32, {kk * 3072 + seg * 1024}')
            k(f's_add_u32 m0, s33, {seg * 32768 + kk * 64}')
            k('buffer_load_dwordx4 v4, s[16:19], s34 offen lds')
        for s in range(4 * c, 4 * c + 4):
            k(f'buffer_load_dwordx4 v[{XF(0,s)}:{XF(0,s)+3}], v2, s[12:15], 0 offen offset:{s*64}')
            k(f'buffer_load_dwordx4 v[{XF(1,s)}:{XF(1,s)+3}], v2, s[12:15], s35 offen offset:{s*64}')
            k(f'buffer_load_dwordx4 v[{XF(2,s)}:{XF(2,s)+3}], v3, s[12:15], 0 offen offset:{s*64}')

    for c in range(3):
        issue_chunk(c)
    if layer == 1:
        pass

    def wread(p, s):
        k(f'ds_read_b64_tr_b16 v[{WF(p)}:{WF(p)+1}], v{5+p} offset:{s*2048}')
        k(f'ds_read_b64_tr_b16 v[{WF(p)+2}:{WF(p)+3}], v{5+p} offset:{s*2048+256}')

    k('s_waitcnt vmcnt(36)')
    k('s_barrier')
    issue_chunk(3)
    for p in range(6):
        wread(p, 0)
    for s in range(16):
        if s % 4 == 3 and s < 15:
            c = s // 4 + 1
            k(f's_waitcnt vmcnt({(3 - c) * 18})')
            k('s_barrier')
        for p in range(6):
            k('s_waitcnt lgkmcnt(10)' if s < 15 else f's_waitcnt lgkmcnt({10 - 2*p})')
            k(f'v_mfma_f32_16x16x32_bf16 a[{ACC(0,p)}:{ACC(0,p)+3}], v[{WF(p)}:{WF(p)+3}], v[{XF(0,s)}:{XF(0,s)+3}], a[{ACC(0,p)}:{ACC(0,p)+3}]')
            k(f'v_mfma_f32_16x16x32_bf16 a[{ACC(1,p)}:{ACC(1,p)+3}], v[{WF(p)}:{WF(p)+3}], v[{XF(1,s)}:{XF(1,s)+3}], a[{ACC(1,p)}:{ACC(1,p)+3}]')
            if p == 2:
                k(f'v_mfma_f32_16x16x32_bf16 a[{ACCH}:{ACCH+3}], v[{WF(p)}:{WF(p)+3}], v[{XF(2,s)}:{XF(2,s)+3}], a[{ACCH}:{ACCH+3}]')
            if p in (0, 2):
                cs = 17 if p == 0 else 18
                for d in range(4):
                    k(f'v_dot2c_f32_bf16 v{cs}, v{WF(p)+d}, v19')
            t = p // 2
            for d in range(2 * (p & 1), 2 * (p & 1) + 2):
                k(f'v_dot2c_f32_bf16 v{11+2*t}, v{XF(t,s)+d}, v19')
                k(f'v_dot2c_f32_bf16 v{12+2*t}, v{XF(t,s)+d}, v{XF(t,s)+d}')
            if s < 15:
                wread(p, s + 1)
    k('s_mov_b32 s52, 0xffff0000')
    k('s_mov_b32 s53, 0x3b000000')
    k('s_mov_b32 s54, 0x3727c5ac')
    for v in range(11, 19):
        xrow_reduce(k, v, 48 + (v - 11))
    k('v_lshlrev_b32 v56, 2, v20')
    for (p, v) in ((0, 17), (2, 18)):
        k(f's_lshl_b32 s34, s{40+p}, 7')
        k(f's_lshl_b32 s36, s{46+p}, 6')
        k('s_add_u32 s34, s34, s36')
        k('v_add_u32 v57, s34, v56')
        k(f'ds_write_b32 v57, v{v} offset:{CS_BASE}')
    k('s_waitcnt lgkmcnt(0)')
    k('s_barrier')
    k('v_lshlrev_b32 v56, 4, v21')
    for p in range(6):
        k(f's_lshl_b32 s34, s{40+p}, 7')
        k(f's_lshl_b32 s36, s{46+p}, 6')
        k('s_add_u32 s34, s34, s36')
        k('v_add_u32 v57, s34, v56')
        k(f'ds_read_b128 v[{64+4*p}:{64+4*p+3}], v57 offset:{CS_BASE}')
    for t in range(3):
        ln_scalars(k, 11 + 2 * t, 12 + 2 * t, 88 + 2 * t, 89 + 2 * t, 58, 59, 52, 53, 54)
    k('s_lshl_b32 s34, s30, 5')
    k('s_add_u32 s34, s34, 16')
    k('v_add_u32 v94, s34, v20')
    k(f'v_mul_u32_u24 v94, {ROWB}, v94')
    k('v_lshl_add_u32 v94, v21, 3, v94')
    k(f'v_mul_u32_u24 v95, {ROWB}, v20')
    k('v_lshl_add_u32 v95, v21, 3, v95')
    k('s_waitcnt lgkmcnt(0)')

    def out_chain(acc, t, p, addr_v, imm):
        b = 96
        for r in range(4):
            k(f'v_accvgpr_read_b32 v{b+r}, a{acc+r}')
        for r in range(4):
            k(f'v_fma_f32 v{b+r}, -v{88+2*t}, v{64+4*p+r}, v{b+r}')
        for r in range(4):
            k(f'v_mul_f32 v{b+r}, v{b+r}, v{89+2*t}')
        k(f'v_cvt_pk_bf16_f32 v{b+4}, v{b}, v{b+1}')
        k(f'v_cvt_pk_bf16_f32 v{b+5}, v{b+2}, v{b+3}')
        k(f's_lshl_b32 s34, s{40+p}, 6')
        k(f's_lshl_b32 s36, s{46+p}, 5')
        k('s_add_u32 s34, s34, s36')
        k(f'v_add_u32 v{b+6}, s34, v{addr_v}')
        k(f'ds_write_b64 v{b+6}, v[{b+4}:{b+5}] offset:{QKV_BASE + imm}')

    for p in range(6):
        out_chain(ACC(0, p), 0, p, 94, 0)
        out_chain(ACC(1, p), 1, p, 94, 16 * ROWB)
    out_chain(ACCH, 2, 2, 95, 0)
    if layer == 1:
        k('s_cmp_lg_u32 s30, 0')
        k('s_cbranch_scc1 L_k1_nozero')
        k('v_mov_b32 v100, 0')
        k('v_mov_b32 v101, 0')
        k('v_mov_b32 v102, 0')
        k('v_mov_b32 v103, 0')
        k('s_lshl_b32 s34, s2, 8')
        k('v_lshlrev_b32 v104, 4, v1')
        k('v_add_u32 v104, s34, v104')
        k('v_cmp_gt_u32 vcc, 16, v1')
        k('s_and_saveexec_b64 s[56:57], vcc')
        k('buffer_store_dwordx4 v[100:103], v104, s[24:27], 0 offen')
        k('s_mov_b64 exec, s[56:57]')
        k.label('L_k1_nozero')
    k('s_waitcnt lgkmcnt(0)')
    k('s_barrier')
    k('s_lshr_b32 s34, s30, 1')
    k('s_lshl_b32 s34, s34, 6')
    k('v_add_u32 v2, s34, v1')
    k('v_add_u32 v3, s31, v2')
    k('s_and_b32 s36, s30, 1')
    k('s_lshl_b32 s36, s36, 5')
    k('v_add_u32 v4, 2, v2')
    k(f'v_mul_u32_u24 v4, {ROWB}, v4')
    k('v_add_u32 v4, s36, v4')
    Q = 64
    KK = lambda w: 72 + 8 * w
    VV = lambda w: 136 + 8 * w
    k(f'ds_read_b128 v[{Q}:{Q+3}], v4 offset:{QKV_BASE + 14*ROWB}')
    k(f'ds_read_b128 v[{Q+4}:{Q+7}], v4 offset:{QKV_BASE + 14*ROWB + 16}')
    for w in range(8):
        o = QKV_BASE + (14 - 2 * w) * ROWB + 64
        if w == 6:
            k('s_waitcnt lgkmcnt(8)')
        k(f'ds_read_b128 v[{KK(w)}:{KK(w)+3}], v4 offset:{o}')
        k(f'ds_read_b128 v[{KK(w)+4}:{KK(w)+7}], v4 offset:{o+16}')
    k('s_waitcnt lgkmcnt(0)')
    for w in range(7):
        o = QKV_BASE + (14 - 2 * w) * ROWB + 128
        k(f'ds_read_b128 v[{VV(w)}:{VV(w)+3}], v4 offset:{o}')
        k(f'ds_read_b128 v[{VV(w)+4}:{VV(w)+7}], v4 offset:{o+16}')
    L = 8
    for j in range(8):
        for w in range(8):
            src2 = '0' if j == 0 else f'v{L+w}'
            k(f'v_dot2_f32_bf16 v{L+w}, v{Q+j}, v{KK(w)+j}, {src2}')
    k('s_waitcnt lgkmcnt(8)')
    o = QKV_BASE + 128
    k(f'ds_read_b128 v[{VV(7)}:{VV(7)+3}], v4 offset:{o}')
    k(f'ds_read_b128 v[{VV(7)+4}:{VV(7)+7}], v4 offset:{o+16}')
    for w in range(0, 8, 2):
        k(f'v_cvt_pk_bf16_f32 v{16+w//2}, v{L+w}, v{L+w+1}')
    for w in range(0, 8, 2):
        k(f'v_lshlrev_b32 v{L+w}, 16, v{16+w//2}')
        k(f'v_and_b32 v{L+w+1}, s52, v{16+w//2}')
    k('v_mov_b32 v20, 0xcf6e6b28')
    for w in range(1, 8):
        k(f'v_cmp_le_u32 vcc, {2*w}, v3')
        k(f'v_cndmask_b32 v{L+w}, v20, v{L+w}, vcc')
    k(f'v_max3_f32 v21, v{L}, v{L+1}, v{L+2}')
    k(f'v_max3_f32 v22, v{L+3}, v{L+4}, v{L+5}')
    k(f'v_max3_f32 v21, v21, v{L+6}, v{L+7}')
    k('v_max_f32 v21, v21, v22')
    k('s_mov_b32 s34, 0x3eb8aa3b')
    for w in range(8):
        k(f'v_sub_f32 v{L+w}, v{L+w}, v21')
    for w in range(8):
        k(f'v_mul_f32 v{L+w}, s34, v{L+w}')
    for w in range(8):
        k(f'v_exp_f32 v{L+w}, v{L+w}')
    k(f'v_add_f32 v21, v{L}, v{L+1}')
    k(f'v_add_f32 v22, v{L+2}, v{L+3}')
    k(f'v_add_f32 v23, v{L+4}, v{L+5}')
    k(f'v_add_f32 v24, v{L+6}, v{L+7}')
    k('v_add_f32 v21, v21, v22')
    k('v_add_f32 v23, v23, v24')
    k('v_add_f32 v21, v21, v23')
    k('v_rcp_f32 v21, v21')
    for w in range(8):
        k(f'v_mul_f32 v{L+w}, v{L+w}, v21')
    for w in range(0, 8, 2):
        k(f'v_cvt_pk_bf16_f32 v{16+w//2}, v{L+w}, v{L+w+1}')
    k('s_mov_b32 s36, 0x05040100')
    k('s_mov_b32 s37, 0x07060302')
    k('s_waitcnt lgkmcnt(0)')
    OO = 32
    for wp in range(4):
        a, b = 2 * wp, 2 * wp + 1
        for j in range(8):
            k(f'v_perm_b32 v{48+2*j}, v{VV(b)+j}, v{VV(a)+j}, s36')
            k(f'v_perm_b32 v{49+2*j}, v{VV(b)+j}, v{VV(a)+j}, s37')
        for j in range(16):
            src2 = '0' if wp == 0 else f'v{OO+j}'
            k(f'v_dot2_f32_bf16 v{OO+j}, v{48+j}, v{16+wp}, {src2}')
    for j in range(8):
        k(f'v_cvt_pk_bf16_f32 v{24+j}, v{OO+2*j}, v{OO+2*j+1}')
    k('v_lshlrev_b32 v5, 10, v3')
    k('s_lshl_b32 s34, s29, 6')
    k('s_and_b32 s36, s30, 1')
    k('s_lshl_b32 s36, s36, 5')
    k('s_add_u32 s34, s34, s36')
    k('v_add_u32 v5, s34, v5')
    k('buffer_store_dwordx4 v[24:27], v5, s[20:23], 0 offen')
    k('buffer_store_dwordx4 v[28:31], v5, s[20:23], 0 offen offset:16')
    k.label(f'L_k1l{layer}_done')
    k('s_endpgm')
    return k, WB + 98304


def k2(layer):
    k = Kern(f'k2l{layer}_kernel', nvgpr=160, accum_offset=160, nsgpr=64)
    ACC = lambda j: 12 + 4 * j
    WF = lambda j: 28 + 4 * j
    RES = lambda j: 44 + 2 * j
    WR = lambda j: 52 + 2 * j
    OF = lambda s: 64 + 4 * s
    k('s_cmp_ge_u32 s2, 256')
    k(f's_cbranch_scc1 L_k2l{layer}_done')
    k(f's_load_dwordx2 s[4:5], s[0:1], {0 if layer == 1 else 80}')
    k('s_load_dwordx2 s[6:7], s[0:1], 16')
    k('s_load_dwordx2 s[8:9], s[0:1], 80')
    k('s_load_dwordx2 s[10:11], s[0:1], 32')
    k('s_and_b32 s36, s2, 7')
    k('s_lshr_b32 s37, s2, 3')
    k('s_lshl_b32 s36, s36, 2')
    k('s_lshr_b32 s38, s37, 3')
    k('s_add_u32 s36, s36, s38')
    k('s_and_b32 s37, s37, 7')
    k('s_lshl_b32 s36, s36, 6')
    k('s_lshl_b32 s37, s37, 6')
    k('v_and_b32 v1, 63, v0')
    k('v_lshrrev_b32 v2, 6, v0')
    k('v_readfirstlane_b32 s39, v2')
    k('v_and_b32 v60, 15, v1')
    k('v_lshrrev_b32 v61, 4, v1')
    k('s_lshl_b32 s40, s39, 4')
    k('s_add_u32 s40, s40, s36')
    k('v_add_u32 v62, s40, v60')
    k('v_lshlrev_b32 v2, 10, v62')
    k('v_lshl_add_u32 v9, v61, 3, v2')
    k('s_lshl_b32 s41, s37, 1')
    k('v_add_u32 v9, s41, v9')
    k('v_lshl_add_u32 v2, v61, 4, v2')
    k('v_lshlrev_b32 v10, 3, v61')
    k('v_add_u32 v10, s41, v10')
    k('v_lshrrev_b32 v3, 3, v1')
    k('v_bfe_u32 v4, v3, 1, 1')
    k('s_and_b32 s42, s39, 1')
    k('s_lshl_b32 s42, s42, 1')
    k('v_or_b32 v4, s42, v4')
    k('v_bfe_u32 v5, v1, 1, 2')
    k('v_xor_b32 v4, v4, v5')
    k('v_lshlrev_b32 v3, 10, v3')
    k('v_lshl_add_u32 v3, v4, 5, v3')
    k('v_and_b32 v5, 1, v1')
    k('v_lshl_add_u32 v3, v5, 4, v3')
    k('v_add_u32 v3, s41, v3')
    k('s_lshl_b32 s43, s39, 13')
    k('s_lshl_b32 s44, s39, 10')
    k('v_bfe_u32 v4, v1, 2, 2')
    k('v_lshlrev_b32 v11, 7, v4')
    k('v_lshl_add_u32 v11, v61, 10, v11')
    k('v_and_b32 v5, 3, v1')
    k('v_lshl_add_u32 v11, v5, 3, v11')
    k('v_lshrrev_b32 v4, 1, v4')
    k('v_and_b32 v5, 1, v61')
    k('v_lshl_or_b32 v4, v5, 1, v4')
    for j in range(4):
        k(f'v_xor_b32 v{5+j}, {j}, v4')
        k(f'v_lshl_add_u32 v{5+j}, v{5+j}, 5, v11')
    for v in range(12, 28):
        k(f'v_mov_b32 v{v}, 0')
    k('s_waitcnt lgkmcnt(0)')
    srd(k, 12, 8, 9, XBYTES, O_OFF)
    srd(k, 16, 6, 7, 512 * 512 * 2)
    srd(k, 20, 4, 5, XBYTES, 0 if layer == 1 else X2_OFF)
    srd(k, 24, 8, 9, XBYTES, X1_OFF if layer == 1 else X3_OFF)
    srd(k, 28, 8, 9, 32768, ST_OFF + (layer - 1) * 32768)
    srd(k, 32, 10, 11, 1024)
    for c in range(4):
        for n in range(4 * c, 4 * c + 4):
            k(f's_add_u32 s45, s43, {n * 32768}')
            k(f's_add_u32 m0, s44, {n * 4096}')
            k('buffer_load_dwordx4 v3, s[16:19], s45 offen lds')
        for s in range(4 * c, 4 * c + 4):
            k(f'buffer_load_dwordx4 v[{OF(s)}:{OF(s)+3}], v2, s[12:15], 0 offen offset:{s*64}')
    for j in range(4):
        k(f'buffer_load_dwordx2 v[{RES(j)}:{RES(j)+1}], v9, s[20:23], 0 offen offset:{j*32}')
    for j in range(4):
        k(f'buffer_load_dwordx2 v[{WR(j)}:{WR(j)+1}], v10, s[32:35], 0 offen offset:{j*32}')

    def wread(j, s):
        k(f'ds_read_b64_tr_b16 v[{WF(j)}:{WF(j)+1}], v{5+j} offset:{s*4096}')
        k(f'ds_read_b64_tr_b16 v[{WF(j)+2}:{WF(j)+3}], v{5+j} offset:{s*4096+512}')

    k('s_waitcnt vmcnt(32)')
    k('s_barrier')
    for j in range(4):
        wread(j, 0)
    for s in range(16):
        if s % 4 == 3 and s < 15:
            c = s // 4 + 1
            k(f's_waitcnt vmcnt({(3 - c) * 8 + 8})')
            k('s_barrier')
        for j in range(4):
            k('s_waitcnt lgkmcnt(6)' if s < 15 else f's_waitcnt lgkmcnt({6 - 2*j})')
            k(f'v_mfma_f32_16x16x32_bf16 v[{ACC(j)}:{ACC(j)+3}], v[{WF(j)}:{WF(j)+3}], v[{OF(s)}:{OF(s)+3}], v[{ACC(j)}:{ACC(j)+3}]')
            if s < 15:
                wread(j, s + 1)
    k('s_mov_b32 s46, 0xffff0000')
    k('v_mov_b32 v63, 0x3f803f80')
    k('v_mov_b32 v128, 0')
    k('v_mov_b32 v129, 0')
    k('v_mov_b32 v130, 0')
    k('s_waitcnt vmcnt(0)')
    for j in range(4):
        for h in range(2):
            a = ACC(j) + 2 * h
            o = 132 + 2 * j + h
            k(f'v_cvt_pk_bf16_f32 v140, v{a}, v{a+1}')
            k('v_lshlrev_b32 v141, 16, v140')
            k('v_and_b32 v142, s46, v140')
            k(f'v_lshlrev_b32 v143, 16, v{RES(j)+h}')
            k(f'v_and_b32 v144, s46, v{RES(j)+h}')
            k('v_add_f32 v141, v141, v143')
            k('v_add_f32 v142, v142, v144')
            k(f'v_cvt_pk_bf16_f32 v{o}, v141, v142')
            k(f'v_dot2c_f32_bf16 v128, v{o}, v63')
            k(f'v_dot2c_f32_bf16 v129, v{o}, v{o}')
            k(f'v_dot2c_f32_bf16 v130, v{o}, v{WR(j)+h}')
        k(f'buffer_store_dwordx2 v[{132+2*j}:{133+2*j}], v9, s[24:27], 0 offen offset:{j*32}')
    for v in range(128, 131):
        xrow_reduce(k, v, 145 + v - 128)
    k('v_mov_b32 v131, 0')
    k('v_cmp_eq_u32 vcc, 1, v61')
    k('v_cndmask_b32 v128, v128, v129, vcc')
    k('v_cmp_eq_u32 vcc, 2, v61')
    k('v_cndmask_b32 v128, v128, v130, vcc')
    k('v_cmp_eq_u32 vcc, 3, v61')
    k('v_cndmask_b32 v128, v128, v131, vcc')
    k('v_lshlrev_b32 v150, 4, v62')
    k('v_lshl_add_u32 v150, v61, 2, v150')
    k('buffer_atomic_add_f32 v128, v150, s[28:31], 0 offen')
    k.label(f'L_k2l{layer}_done')
    k('s_endpgm')
    return k, 65536


def normalize_dword(k, x, m, rinv, t0, t1, s_mask, out):
    k(f'v_lshlrev_b32 v{t0}, 16, v{x}')
    k(f'v_and_b32 v{t1}, s{s_mask}, v{x}')
    k(f'v_sub_f32 v{t0}, v{t0}, v{m}')
    k(f'v_sub_f32 v{t1}, v{t1}, v{m}')
    k(f'v_cvt_pk_bf16_f32 v{t0}, v{t0}, v{t1}')
    k(f'v_and_b32 v{t1}, s{s_mask}, v{t0}')
    k(f'v_lshlrev_b32 v{t0}, 16, v{t0}')
    k(f'v_mul_f32 v{t0}, v{t0}, v{rinv}')
    k(f'v_mul_f32 v{t1}, v{t1}, v{rinv}')
    k(f'v_cvt_pk_bf16_f32 v{out}, v{t0}, v{t1}')


def add_dwords(k, a, b, t0, t1, t2, t3, s_mask, out):
    k(f'v_lshlrev_b32 v{t0}, 16, v{a}')
    k(f'v_and_b32 v{t1}, s{s_mask}, v{a}')
    k(f'v_lshlrev_b32 v{t2}, 16, v{b}')
    k(f'v_and_b32 v{t3}, s{s_mask}, v{b}')
    k(f'v_add_f32 v{t0}, v{t0}, v{t2}')
    k(f'v_add_f32 v{t1}, v{t1}, v{t3}')
    k(f'v_cvt_pk_bf16_f32 v{out}, v{t0}, v{t1}')


def dpp_max_reduce(k, src, t):
    k(f'v_max_u32_dpp v{t}, v{src}, v{src} quad_perm:[1,0,3,2] row_mask:0xf bank_mask:0xf')
    k(f'v_max_u32_dpp v{t}, v{t}, v{t} quad_perm:[2,3,0,1] row_mask:0xf bank_mask:0xf')
    k(f'v_max_u32_dpp v{t}, v{t}, v{t} row_half_mirror row_mask:0xf bank_mask:0xf')
    k(f'v_max_u32_dpp v{t}, v{t}, v{t} row_mirror row_mask:0xf bank_mask:0xf')
    k(f'v_max_u32_dpp v{t}, v{t}, v{t} row_bcast:15 row_mask:0xa bank_mask:0xf')
    k(f'v_max_u32_dpp v{t}, v{t}, v{t} row_bcast:31 row_mask:0xc bank_mask:0xf')


NFFN = 112
NLN = 128


def k4(layer):
    k = Kern(f'k4l{layer}_kernel', nvgpr=128, accum_offset=128, nsgpr=96)
    RED = 32768
    CAND = 32768 + 8192
    k(f's_cmp_ge_u32 s2, {NFFN + NLN}')
    k(f's_cbranch_scc1 L_k4l{layer}_done')
    k('s_load_dwordx2 s[4:5], s[0:1], 80')
    k('s_load_dwordx2 s[6:7], s[0:1], 40')
    k('s_load_dwordx2 s[8:9], s[0:1], 48')
    k('s_load_dwordx2 s[10:11], s[0:1], 32')
    k('s_load_dwordx2 s[70:71], s[0:1], 64')
    k('v_and_b32 v1, 63, v0')
    k('v_lshrrev_b32 v2, 6, v0')
    k('v_readfirstlane_b32 s68, v2')
    k('s_mov_b32 s72, 0xffff0000')
    k('s_mov_b32 s73, 0x3b000000')
    k('s_mov_b32 s74, 0x3727c5ac')
    k('s_waitcnt lgkmcnt(0)')
    srd(k, 12, 4, 5, XBYTES, X1_OFF if layer == 1 else X3_OFF)
    srd(k, 24, 4, 5, 32768, ST_OFF + (layer - 1) * 32768)
    k(f's_cmp_ge_u32 s2, {NFFN}')
    k(f's_cbranch_scc1 L_k4l{layer}_ln')
    srd(k, 16, 6, 7, 512 * 1792 * 2)
    srd(k, 20, 8, 9, 512 * 1792 * 2)
    srd(k, 28, 10, 11, 1024)
    srd(k, 32, 4, 5, SM_SIZE, SM_OFF)
    k('s_and_b32 s69, s2, 7')
    k('s_mul_i32 s69, s69, 14')
    k('s_lshr_b32 s75, s2, 3')
    k('s_add_u32 s69, s69, s75')
    k('v_lshlrev_b32 v3, 4, v0')
    for i in range(8):
        k(f's_mov_b32 s40, {4096 * i}')
        k(f'buffer_load_dwordx4 v[{32+4*i}:{35+4*i}], v3, s[24:27], s40 offen')
    k('v_lshlrev_b32 v4, 4, v1')
    k('buffer_load_dwordx4 v[64:67], v4, s[28:31], 0 offen')
    k('v_lshrrev_b32 v5, 1, v1')
    k('v_and_b32 v6, 0x13, v5')
    k('v_bfe_u32 v7, v5, 2, 1')
    k('v_lshl_or_b32 v6, v7, 3, v6')
    k('v_bfe_u32 v7, v5, 3, 1')
    k('v_lshl_or_b32 v6, v7, 2, v6')
    k('v_mul_u32_u24 v6, 3584, v6')
    k('v_and_b32 v7, 1, v1')
    k('v_lshl_add_u32 v6, v7, 4, v6')
    k('s_lshl_b32 s75, s69, 5')
    k('v_add_u32 v6, s75, v6')
    k('s_mul_i32 s76, s68, 458752')
    k('s_lshl_b32 s77, s68, 12')
    for mat in range(2):
        for s in range(4):
            k(f's_add_u32 s40, s76, {32 * s * 3584}')
            k(f's_add_u32 m0, s77, {mat * 16384 + s * 1024}')
            k(f'buffer_load_dwordx4 v6, s[{16+4*mat}:{19+4*mat}], s40 offen lds')
    k('v_mov_b32 v8, 0x3f803f80')
    k('v_mov_b32 v9, 0')
    k('s_waitcnt vmcnt(8)')
    for d in range(4):
        k(f'v_dot2c_f32_bf16 v9, v{64+d}, v8')
    k('v_add_f32_dpp v9, v9, v9 quad_perm:[1,0,3,2] row_mask:0xf bank_mask:0xf')
    k('v_add_f32_dpp v9, v9, v9 quad_perm:[2,3,0,1] row_mask:0xf bank_mask:0xf')
    k('v_add_f32_dpp v9, v9, v9 row_half_mirror row_mask:0xf bank_mask:0xf')
    k('v_add_f32_dpp v9, v9, v9 row_mirror row_mask:0xf bank_mask:0xf')
    xrow_reduce(k, 9, 10)
    for i in range(8):
        b = 32 + 4 * i
        ln_scalars(k, b, b + 1, 10, 11, 12, 13, 72, 73, 74)
        k(f'v_fma_f32 v12, -v10, v9, v{b+2}')
        k('v_mul_f32 v12, v12, v11')
        k('v_cvt_pk_bf16_f32 v12, v12, v12')
        k('v_lshlrev_b32 v12, 16, v12')
        k('v_ashrrev_i32 v13, 31, v12')
        k('v_or_b32 v13, 0x80000000, v13')
        k('v_xor_b32 v12, v12, v13')
        k(f'v_sub_u32 v13, {2047 - 256 * i}, v0')
        k(f'v_and_or_b32 v{16+i}, v12, s72, v13')
    regs = list(range(16, 24))
    spare = 24
    net = [(0, 1), (2, 3), (4, 5), (6, 7), (0, 2), (1, 3), (4, 6), (5, 7), (1, 2), (5, 6), (0, 4), (3, 7),
           (1, 5), (2, 6), (1, 4), (3, 6), (2, 4), (3, 5), (3, 4)]
    for (a, b) in net:
        k(f'v_max_u32 v{spare}, v{regs[a]}, v{regs[b]}')
        k(f'v_min_u32 v{regs[b]}, v{regs[a]}, v{regs[b]}')
        regs[a], spare = spare, regs[a]
    k('v_mov_b32 v26, 0')
    for n in range(8):
        dpp_max_reduce(k, regs[0], 25)
        k(f'v_readlane_b32 s{50+n}, v25, 63')
        k(f'v_writelane_b32 v26, s{50+n}, {n}')
        if n < 7:
            k(f'v_cmp_eq_u32 vcc, s{50+n}, v{regs[0]}')
            for i in range(7 - n):
                k(f'v_cndmask_b32 v{regs[i]}, v{regs[i]}, v{regs[i+1]}, vcc')
    k('s_lshl_b32 s40, s68, 5')
    k('v_lshlrev_b32 v27, 2, v1')
    k('v_add_u32 v27, s40, v27')
    k('v_cmp_gt_u32 vcc, 8, v1')
    k('s_and_saveexec_b64 s[78:79], vcc')
    k(f'ds_write_b32 v27, v26 offset:{CAND}')
    k('s_mov_b64 exec, s[78:79]')
    k('s_waitcnt lgkmcnt(0)')
    k('s_barrier')
    k('v_and_b32 v27, 31, v1')
    k('v_lshlrev_b32 v27, 2, v27')
    k(f'ds_read_b32 v28, v27 offset:{CAND}')
    k('v_mov_b32 v26, 0')
    k('s_waitcnt lgkmcnt(0)')
    for n in range(8):
        dpp_max_reduce(k, 28, 25)
        k(f'v_readlane_b32 s{60+n}, v25, 63')
        k(f'v_writelane_b32 v26, s{60+n}, {n}')
        if n < 7:
            k(f'v_cmp_eq_u32 vcc, s{60+n}, v28')
            k('v_cndmask_b32 v28, v28, 0, vcc')
    k('s_or_b32 s40, s2, s68')
    k('s_cmp_lg_u32 s40, 0')
    k(f's_cbranch_scc1 L_k4l{layer}_nokeys')
    k('v_lshlrev_b32 v27, 2, v1')
    k('v_cmp_gt_u32 vcc, 8, v1')
    k('s_and_saveexec_b64 s[78:79], vcc')
    k(f's_mov_b32 s40, {SEL_REL}')
    k('buffer_store_dword v26, v27, s[32:35], s40 offen')
    k('s_mov_b64 exec, s[78:79]')
    k.label(f'L_k4l{layer}_nokeys')
    k('v_and_b32 v27, 7, v1')
    k('v_lshlrev_b32 v27, 2, v27')
    k('ds_bpermute_b32 v28, v27, v26')
    k('v_lshrrev_b32 v61, 4, v1')
    k('s_waitcnt lgkmcnt(0)')
    k('v_and_b32 v28, 0x7ff, v28')
    k('v_sub_u32 v28, 2047, v28')
    k('v_lshlrev_b32 v29, 10, v28')
    k('v_lshl_add_u32 v29, v61, 4, v29')
    k('s_lshl_b32 s40, s68, 8')
    k('v_lshlrev_b32 v30, 4, v28')
    k('buffer_load_dwordx2 v[14:15], v30, s[24:27], 0 offen')
    for s in range(4):
        k(f'buffer_load_dwordx4 v[{32+4*s}:{35+4*s}], v29, s[12:15], s40 offen offset:{s*64}')
    k('v_bfe_u32 v62, v1, 2, 2')
    k('v_and_b32 v63, 1, v61')
    k('v_lshl_or_b32 v62, v63, 2, v62')
    k('v_lshrrev_b32 v63, 1, v61')
    k('v_lshl_or_b32 v62, v63, 4, v62')
    k('v_lshlrev_b32 v62, 5, v62')
    k('v_and_b32 v63, 3, v1')
    k('v_lshl_add_u32 v62, v63, 3, v62')
    k('v_add_u32 v62, s77, v62')
    k('s_waitcnt vmcnt(5)')
    for mat in range(2):
        for s in range(4):
            b = 64 + (mat * 4 + s) * 4
            if mat == 1 and s == 2:
                k('s_waitcnt lgkmcnt(6)')
            k(f'ds_read_b64_tr_b16 v[{b}:{b+1}], v62 offset:{mat*16384 + s*1024}')
            k(f'ds_read_b64_tr_b16 v[{b+2}:{b+3}], v62 offset:{mat*16384 + s*1024 + 256}')
    for v in range(96, 104):
        k(f'v_mov_b32 v{v}, 0')
    k('s_waitcnt vmcnt(4)')
    ln_scalars(k, 14, 15, 10, 11, 12, 13, 72, 73, 74)
    k('s_waitcnt vmcnt(0)')
    for d in range(16):
        normalize_dword(k, 32 + d, 10, 11, 12, 13, 72, 32 + d)
    k('s_waitcnt lgkmcnt(0)')
    for s in range(4):
        for mat in range(2):
            b = 64 + (mat * 4 + s) * 4
            a = 96 + 4 * mat
            k(f'v_mfma_f32_16x16x32_bf16 v[{a}:{a+3}], v[{b}:{b+3}], v[{32+4*s}:{35+4*s}], v[{a}:{a+3}]')
    k('s_lshl_b32 s40, s68, 11')
    k('v_lshlrev_b32 v27, 4, v1')
    k('v_add_u32 v28, s40, v27')
    k(f'ds_write_b128 v28, v[96:99] offset:{RED}')
    k(f'ds_write_b128 v28, v[100:103] offset:{RED+1024}')
    k('s_waitcnt lgkmcnt(0)')
    k('s_barrier')
    k('s_cmp_lg_u32 s68, 0')
    k(f's_cbranch_scc1 L_k4l{layer}_done')
    for w in range(4):
        k(f'ds_read_b128 v[{64+8*w}:{67+8*w}], v27 offset:{RED + w*2048}')
        k(f'ds_read_b128 v[{68+8*w}:{71+8*w}], v27 offset:{RED + w*2048 + 1024}')
    k('s_waitcnt lgkmcnt(0)')
    for e in range(8):
        k(f'v_add_f32 v{64+e}, v{64+e}, v{72+e}')
        k(f'v_add_f32 v{80+e}, v{80+e}, v{88+e}')
    for e in range(8):
        k(f'v_add_f32 v{64+e}, v{64+e}, v{80+e}')
    for e in range(0, 8, 2):
        k(f'v_cvt_pk_bf16_f32 v72, v{64+e}, v{65+e}')
        k(f'v_lshlrev_b32 v{64+e}, 16, v72')
        k(f'v_and_b32 v{65+e}, s72, v72')
    k('s_mov_b32 s40, 0xbfb8aa3b')
    for e in range(4):
        k(f'v_mul_f32 v{72+e}, s40, v{64+e}')
    for e in range(4):
        k(f'v_exp_f32 v{72+e}, v{72+e}')
    for e in range(4):
        k(f'v_add_f32 v{72+e}, 1.0, v{72+e}')
    for e in range(4):
        k(f'v_rcp_f32 v{72+e}, v{72+e}')
    for e in range(4):
        k(f'v_mul_f32 v{64+e}, v{64+e}, v{72+e}')
    for e in range(0, 4, 2):
        k(f'v_cvt_pk_bf16_f32 v72, v{64+e}, v{65+e}')
        k(f'v_lshlrev_b32 v{64+e}, 16, v72')
        k(f'v_and_b32 v{65+e}, s72, v72')
    for e in range(4):
        k(f'v_mul_f32 v{64+e}, v{64+e}, v{68+e}')
    k('v_cvt_pk_bf16_f32 v76, v64, v65')
    k('v_cvt_pk_bf16_f32 v77, v66, v67')
    k('v_and_b32 v27, 15, v1')
    k('v_mul_u32_u24 v28, 3584, v27')
    k('v_lshl_add_u32 v28, v61, 3, v28')
    k('v_add_u32 v28, s75, v28')
    k('v_cmp_gt_u32 vcc, 8, v27')
    k('s_and_saveexec_b64 s[78:79], vcc')
    k('buffer_store_dwordx2 v[76:77], v28, s[32:35], 0 offen')
    k(f's_branch L_k4l{layer}_done')
    k.label(f'L_k4l{layer}_ln')
    if layer == 1:
        srd(k, 36, 4, 5, XBYTES, X2_OFF)
    else:
        srd(k, 36, 70, 71, XBYTES)
    k(f's_sub_u32 s40, s2, {NFFN}')
    k('s_lshl_b32 s40, s40, 4')
    k('v_lshrrev_b32 v2, 4, v0')
    k('v_add_u32 v2, s40, v2')
    k('v_lshlrev_b32 v3, 4, v2')
    k('buffer_load_dwordx2 v[14:15], v3, s[24:27], 0 offen')
    k('v_and_b32 v4, 15, v0')
    k('v_lshlrev_b32 v3, 10, v2')
    k('v_lshl_add_u32 v3, v4, 6, v3')
    for s in range(4):
        k(f'buffer_load_dwordx4 v[{32+4*s}:{35+4*s}], v3, s[12:15], 0 offen offset:{s*16}')
    k('s_waitcnt vmcnt(4)')
    ln_scalars(k, 14, 15, 10, 11, 12, 13, 72, 73, 74)
    for s in range(4):
        k(f's_waitcnt vmcnt({3 - s + s})' if False else 's_waitcnt vmcnt(0)' if s == 0 else '')
        for d in range(4):
            x = 32 + 4 * s + d
            normalize_dword(k, x, 10, 11, 12, 13, 72, 16)
            add_dwords(k, x, 16, 12, 13, 17, 18, 72, 48 + 4 * s + d)
        k(f'buffer_store_dwordx4 v[{48+4*s}:{51+4*s}], v3, s[36:39], 0 offen offset:{s*16}')
    k.label(f'L_k4l{layer}_done')
    k('s_endpgm')
    return k, CAND + 128


def k5(layer):
    k = Kern(f'k5l{layer}_kernel', nvgpr=128, accum_offset=128, nsgpr=96)
    RED = 57344
    k('s_cmp_ge_u32 s2, 32')
    k(f's_cbranch_scc1 L_k5l{layer}_done')
    k('s_load_dwordx2 s[4:5], s[0:1], 80')
    k('s_load_dwordx2 s[6:7], s[0:1], 56')
    k('s_load_dwordx2 s[70:71], s[0:1], 64')
    k('v_and_b32 v1, 63, v0')
    k('v_lshrrev_b32 v2, 6, v0')
    k('v_readfirstlane_b32 s68, v2')
    k('s_mov_b32 s72, 0xffff0000')
    k('s_mov_b32 s73, 0x3b000000')
    k('s_mov_b32 s74, 0x3727c5ac')
    k('s_and_b32 s69, s2, 7')
    k('s_lshl_b32 s69, s69, 2')
    k('s_lshr_b32 s75, s2, 3')
    k('s_add_u32 s69, s69, s75')
    k('s_lshl_b32 s75, s69, 5')
    k('v_lshrrev_b32 v61, 4, v1')
    k('v_lshrrev_b32 v5, 1, v1')
    k('v_and_b32 v6, 0x13, v5')
    k('v_bfe_u32 v7, v5, 2, 1')
    k('v_lshl_or_b32 v6, v7, 3, v6')
    k('v_bfe_u32 v7, v5, 3, 1')
    k('v_lshl_or_b32 v6, v7, 2, v6')
    k('v_lshlrev_b32 v6, 10, v6')
    k('v_and_b32 v7, 1, v1')
    k('v_lshl_add_u32 v6, v7, 4, v6')
    k('v_add_u32 v6, s75, v6')
    k('s_mul_i32 s76, s68, 229376')
    k('s_mul_i32 s77, s68, 7168')
    k('s_waitcnt lgkmcnt(0)')
    srd(k, 12, 4, 5, XBYTES, X1_OFF if layer == 1 else X3_OFF)
    srd(k, 16, 6, 7, 1792 * 512 * 2)
    srd(k, 24, 4, 5, 32768, ST_OFF + (layer - 1) * 32768)
    srd(k, 32, 4, 5, SM_SIZE, SM_OFF)
    if layer == 1:
        srd(k, 36, 4, 5, XBYTES, X2_OFF)
    else:
        srd(k, 36, 70, 71, XBYTES)
    k('v_and_b32 v27, 7, v1')
    k('v_lshlrev_b32 v28, 2, v27')
    k(f's_mov_b32 s40, {SEL_REL}')
    k('buffer_load_dword v26, v28, s[32:35], s40 offen')
    k('v_mul_u32_u24 v29, 3584, v27')
    k('v_lshl_add_u32 v29, v61, 4, v29')
    k('s_mul_i32 s40, s68, 448')
    for s in range(7):
        k(f'buffer_load_dwordx4 v[{32+4*s}:{35+4*s}], v29, s[32:35], s40 offen offset:{s*64}')
    for s in range(7):
        k(f's_add_u32 s40, s76, {32 * s * 1024}')
        k(f's_add_u32 m0, s77, {s * 1024}')
        k('buffer_load_dwordx4 v6, s[16:19], s40 offen lds')
    k('v_bfe_u32 v62, v1, 2, 2')
    k('v_and_b32 v63, 1, v61')
    k('v_lshl_or_b32 v62, v63, 2, v62')
    k('v_lshrrev_b32 v63, 1, v61')
    k('v_lshl_or_b32 v62, v63, 4, v62')
    k('v_lshlrev_b32 v62, 5, v62')
    k('v_and_b32 v63, 3, v1')
    k('v_lshl_add_u32 v62, v63, 3, v62')
    k('v_add_u32 v62, s77, v62')
    for v in range(96, 100):
        k(f'v_mov_b32 v{v}, 0')
    k('s_waitcnt vmcnt(14)')
    k('v_and_b32 v28, 0x7ff, v26')
    k('v_sub_u32 v28, 2047, v28')
    k('v_lshlrev_b32 v30, 4, v28')
    k('buffer_load_dwordx2 v[14:15], v30, s[24:27], 0 offen')
    k('v_lshlrev_b32 v31, 10, v28')
    k('v_lshl_add_u32 v31, v61, 3, v31')
    k('v_add_u32 v31, s75, v31')
    k('buffer_load_dwordx2 v[16:17], v31, s[12:15], 0 offen')
    k('s_waitcnt vmcnt(2)')
    for s in range(7):
        b = 64 + 4 * s
        k(f'ds_read_b64_tr_b16 v[{b}:{b+1}], v62 offset:{s*1024}')
        k(f'ds_read_b64_tr_b16 v[{b+2}:{b+3}], v62 offset:{s*1024 + 256}')
    for s in range(7):
        b = 64 + 4 * s
        k(f's_waitcnt lgkmcnt({12 - 2*s})')
        k(f'v_mfma_f32_16x16x32_bf16 v[96:99], v[{b}:{b+3}], v[{32+4*s}:{35+4*s}], v[96:99]')
    k('s_lshl_b32 s40, s68, 10')
    k('v_lshlrev_b32 v27, 4, v1')
    k('v_add_u32 v28, s40, v27')
    k(f'ds_write_b128 v28, v[96:99] offset:{RED}')
    k('s_waitcnt lgkmcnt(0)')
    k('s_barrier')
    k('s_cmp_lg_u32 s68, 0')
    k(f's_cbranch_scc1 L_k5l{layer}_done')
    for w in range(8):
        k(f'ds_read_b128 v[{64+4*w}:{67+4*w}], v27 offset:{RED + w*1024}')
    k('s_waitcnt lgkmcnt(0)')
    for e in range(4):
        k(f'v_add_f32 v{64+e}, v{64+e}, v{68+e}')
        k(f'v_add_f32 v{72+e}, v{72+e}, v{76+e}')
        k(f'v_add_f32 v{80+e}, v{80+e}, v{84+e}')
        k(f'v_add_f32 v{88+e}, v{88+e}, v{92+e}')
    for e in range(4):
        k(f'v_add_f32 v{64+e}, v{64+e}, v{72+e}')
        k(f'v_add_f32 v{80+e}, v{80+e}, v{88+e}')
    for e in range(4):
        k(f'v_add_f32 v{64+e}, v{64+e}, v{80+e}')
    for e in range(0, 4, 2):
        k(f'v_cvt_pk_bf16_f32 v72, v{64+e}, v{65+e}')
        k(f'v_lshlrev_b32 v{64+e}, 16, v72')
        k(f'v_and_b32 v{65+e}, s72, v72')
    k('v_and_b32 v20, s72, v26')
    k('v_ashrrev_i32 v21, 31, v20')
    k('v_not_b32 v21, v21')
    k('v_or_b32 v21, 0x80000000, v21')
    k('v_xor_b32 v20, v20, v21')
    k('v_and_b32 v20, s72, v20')
    k('s_mov_b32 s40, 0xbfb8aa3b')
    k('v_mul_f32 v20, s40, v20')
    k('v_exp_f32 v20, v20')
    k('v_add_f32 v20, 1.0, v20')
    k('v_rcp_f32 v20, v20')
    k('v_cvt_pk_bf16_f32 v20, v20, v20')
    k('v_lshlrev_b32 v20, 16, v20')
    for e in range(4):
        k(f'v_mul_f32 v{64+e}, v{64+e}, v20')
    k('v_cvt_pk_bf16_f32 v76, v64, v65')
    k('v_cvt_pk_bf16_f32 v77, v66, v67')
    k('s_waitcnt vmcnt(0)')
    ln_scalars(k, 14, 15, 10, 11, 12, 13, 72, 73, 74)
    for d in range(2):
        normalize_dword(k, 16 + d, 10, 11, 12, 13, 72, 18)
        add_dwords(k, 18, 76 + d, 12, 13, 19, 22, 72, 18)
        add_dwords(k, 16 + d, 18, 12, 13, 19, 22, 72, 78 + d)
    k('v_and_b32 v27, 15, v1')
    k('v_cmp_gt_u32 vcc, 8, v27')
    k('s_and_saveexec_b64 s[78:79], vcc')
    k('buffer_store_dwordx2 v[78:79], v31, s[36:39], 0 offen')
    k.label(f'L_k5l{layer}_done')
    k('s_endpgm')
    return k, RED + 8192


def build(path, extra_launch=0):
    hdr = open('interleave_layers__sliding_local_dilated__moe_arch_mod__prompt.s.ref').read().split('; Override')[0]
    ks = []
    launches = []
    for layer in (1, 2):
        for fn, grid, blk in ((k1, 256, 256), (k2, 256, 256), (k4, NFFN + NLN, 256), (k5, 32, 512)):
            kk, lds = fn(layer)
            ks.append(kk)
            launches.append(f'; @launch kernel={kk.name} grid=({grid},1,1) block=({blk},1,1) lds={lds}')
    if extra_launch:
        e = Kern('nop_kernel', nvgpr=8, accum_offset=8, nsgpr=16)
        e('s_endpgm')
        ks.append(e)
        for i in range(extra_launch):
            launches.append('; @launch kernel=nop_kernel grid=(256,1,1) block=(256,1,1) lds=0')
    out = hdr + '\n'.join(launches) + '\n.amdgcn_target "amdgcn-amd-amdhsa--gfx950"\n.text\n'
    for kk in ks:
        out += kk.text()
    out += '.section .rodata,"a"\n'
    for kk in ks:
        out += kk.desc()
    open(path, 'w').write(out)


if __name__ == '__main__':
    path = sys.argv[1] if len(sys.argv) > 1 else 'interleave_layers__sliding_local_dilated__moe_arch_mod__prompt.s'
    build(path, int(sys.argv[2]) if len(sys.argv) > 2 else 0)
```

```python
import sys
sys.path.insert(0, 'gen')
from asmlib import Kern

MB = 1 << 20
O_OFF = 0
X1_OFF = 2 * MB
X2_OFF = 4 * MB
X3_OFF = 6 * MB
ST_OFF = 8 * MB
SM_OFF = 8 * MB + 65536
H_REL = 0
SEL_REL = 32768
SM_SIZE = 65536

XBYTES = 2048 * 512 * 2


def srd(k, d, lo, hi, size, add=0):
    if add:
        k(f's_add_u32 s{d}, s{lo}, {add}')
        k(f's_addc_u32 s{d+1}, s{hi}, 0')
        k(f's_and_b32 s{d+1}, s{d+1}, 0xffff')
    else:
        k(f's_mov_b32 s{d}, s{lo}')
        k(f's_and_b32 s{d+1}, s{hi}, 0xffff')
    k(f's_mov_b32 s{d+2}, {size}')
    k(f's_mov_b32 s{d+3}, 0x00020000')


DIAG = False
DBG_OFF = 16 * MB


class Stamps:
    def __init__(self, k, base=64):
        self.k = k
        self.n = 0
        self.base = base

    def __call__(self):
        if DIAG:
            b = self.base + 2 * self.n
            self.k(f's_memtime s[{b}:{b+1}]')
            self.n += 1

    def flush(self, ws_lo, ws_hi, slot, vt0, vt1, sd):
        if not DIAG:
            return
        k = self.k
        k('s_waitcnt lgkmcnt(0)')
        srd(k, sd, ws_lo, ws_hi, 1 << 20, DBG_OFF + slot * (1 << 18))
        k(f'v_mov_b32 v{vt0}, 0')
        for i in range(self.n):
            k(f'v_writelane_b32 v{vt0}, s{self.base + 2*i}, {i}')
        k(f'v_lshrrev_b32 v{vt1}, 6, v0')
        k(f's_lshl_b32 s{self.base}, s2, 3')
        k(f'v_add_u32 v{vt1}, s{self.base}, v{vt1}')
        k(f'v_lshlrev_b32 v{vt1}, 6, v{vt1}')
        k(f'v_and_b32 v{vt0+1 if False else vt1+1}, 63, v0')
        k(f'v_lshl_add_u32 v{vt1}, v{vt1+1}, 2, v{vt1}')
        k(f'v_cmp_gt_u32 vcc, 16, v{vt1+1}')
        k('s_and_b64 exec, exec, vcc')
        k(f'buffer_store_dword v{vt0}, v{vt1}, s[{sd}:{sd+3}], 0 offen')


def xrow_reduce(k, v, tmp):
    k(f'v_mov_b32 v{tmp}, v{v}')
    k(f'v_permlane16_swap_b32 v{v}, v{tmp}')
    k(f'v_add_f32 v{v}, v{v}, v{tmp}')
    k(f'v_mov_b32 v{tmp}, v{v}')
    k(f'v_permlane32_swap_b32 v{v}, v{tmp}')
    k(f'v_add_f32 v{v}, v{v}, v{tmp}')


def ln_scalars(k, s1, s2, m, rinv, t1, t2, s_mask, s_inv512, s_eps):
    k(f'v_mul_f32 v{t1}, s{s_inv512}, v{s1}')
    k(f'v_mul_f32 v{t2}, s{s_inv512}, v{s2}')
    k(f'v_fma_f32 v{t2}, -v{t1}, v{t1}, v{t2}')
    k(f'v_max_f32 v{t2}, 0, v{t2}')
    k(f'v_cvt_pk_bf16_f32 v{t1}, v{t1}, v{t2}')
    k(f'v_lshlrev_b32 v{m}, 16, v{t1}')
    k(f'v_and_b32 v{t2}, s{s_mask}, v{t1}')
    k(f'v_add_f32 v{t2}, s{s_eps}, v{t2}')
    k(f'v_cvt_pk_bf16_f32 v{t2}, v{t2}, v{t2}')
    k(f'v_lshlrev_b32 v{t2}, 16, v{t2}')
    k(f'v_sqrt_f32 v{t2}, v{t2}')
    k(f'v_cvt_pk_bf16_f32 v{t2}, v{t2}, v{t2}')
    k(f'v_lshlrev_b32 v{t2}, 16, v{t2}')
    k(f'v_rcp_f32 v{rinv}, v{t2}')


def k1(layer):
    k = Kern(f'k1l{layer}_kernel', nvgpr=200, accum_offset=200, nsgpr=100)
    st = Stamps(k)
    SLOT = 34816
    WOFF = 10240
    STAT = 0
    QKVA = 512
    ROWB = 112
    ACC = lambda sg, t: 16 + (sg * 5 + t) * 4
    CS = lambda sg: 76 + 4 * sg
    XFB = lambda b, t: 88 + b * 24 + t * 4
    WFB = lambda b, sg: 136 + b * 12 + sg * 4
    ONES = 160
    k('s_cmp_ge_u32 s2, 256')
    k(f's_cbranch_scc1 L_k1l{layer}_done')
    st()
    k(f's_load_dwordx2 s[4:5], s[0:1], {0 if layer == 1 else 80}')
    k('s_load_dwordx2 s[6:7], s[0:1], 8')
    k('s_load_dwordx2 s[8:9], s[0:1], 80')
    k('s_and_b32 s28, s2, 7')
    k('s_lshr_b32 s29, s2, 3')
    k('s_lshr_b32 s30, s28, 1')
    k('s_lshl_b32 s30, s30, 3')
    k('s_lshr_b32 s31, s29, 2')
    k('s_add_u32 s30, s30, s31')
    k('s_and_b32 s28, s28, 1')
    k('s_lshl_b32 s28, s28, 2')
    k('s_and_b32 s29, s29, 3')
    k('s_add_u32 s29, s28, s29')
    k('s_lshl_b32 s31, s30, 6')
    k('v_and_b32 v1, 63, v0')
    k('v_lshrrev_b32 v2, 6, v0')
    k('v_readfirstlane_b32 s30, v2')
    k('v_lshrrev_b32 v10, 3, v1')
    k('v_and_b32 v11, 7, v1')
    k('v_lshrrev_b32 v12, 4, v1')
    k('s_lshl_b32 s34, s30, 4')
    k('s_add_u32 s34, s34, s31')
    k('v_add_u32 v13, s34, v10')
    k('v_lshlrev_b32 v13, 10, v13')
    k('v_xor_b32 v14, v11, v12')
    k('v_lshl_add_u32 v2, v14, 4, v13')
    k('v_xor_b32 v14, 4, v14')
    k('v_lshl_add_u32 v3, v14, 4, v13')
    k('v_add_u32 v3, 8192, v3')
    k('s_lshl_b32 s34, s30, 2')
    k('s_add_u32 s34, s34, s31')
    k('s_sub_u32 s34, s34, 16')
    k('v_add_u32 v13, s34, v10')
    k('v_lshlrev_b32 v13, 10, v13')
    k('s_lshl_b32 s34, s30, 1')
    k('v_add_u32 v14, s34, v12')
    k('v_and_b32 v14, 7, v14')
    k('v_xor_b32 v14, v11, v14')
    k('v_lshl_add_u32 v4, v14, 4, v13')
    k('v_bfe_u32 v13, v10, 1, 1')
    k('s_and_b32 s34, s30, 1')
    k('s_lshl_b32 s34, s34, 1')
    k('v_or_b32 v13, s34, v13')
    k('v_lshrrev_b32 v14, 1, v11')
    k('v_xor_b32 v13, v13, v14')
    k('v_mul_u32_u24 v5, 3072, v10')
    k('v_lshl_add_u32 v5, v13, 5, v5')
    k('v_and_b32 v14, 1, v11')
    k('v_lshl_add_u32 v5, v14, 4, v5')
    k('s_lshl_b32 s34, s29, 7')
    k('v_add_u32 v5, s34, v5')
    k('s_mul_i32 s32, s30, 24576')
    k('s_lshl_b32 s33, s30, 10')
    k('s_lshl_b32 s35, s30, 11')
    k('s_add_u32 s35, s35, 2048')
    k('s_lshl_b32 s36, s30, 9')
    k('s_waitcnt lgkmcnt(0)')
    srd(k, 12, 4, 5, XBYTES, 0 if layer == 1 else X2_OFF)
    srd(k, 16, 6, 7, 512 * 1536 * 2)
    k('s_mov_b64 s[56:57], 0xffffffff')

    def issue_chunk(c):
        sb = (c % 4) * SLOT
        k(f's_mov_b32 s37, {c * 128}')
        k(f's_add_u32 m0, s35, {sb}')
        k('buffer_load_dwordx4 v2, s[12:15], s37 offen lds')
        k(f's_add_u32 m0, s35, {sb + 1024}')
        k('buffer_load_dwordx4 v3, s[12:15], s37 offen lds')
        k(f's_add_u32 m0, s36, {sb}')
        k('s_mov_b64 exec, s[56:57]')
        k('buffer_load_dwordx4 v4, s[12:15], s37 offen lds')
        k('s_mov_b64 exec, -1')
        for sg in range(3):
            for i in range(2):
                k(f's_add_u32 s34, s32, {(c * 64 + 32 * i) * 3072 + sg * 1024}')
                k(f's_add_u32 m0, s33, {sb + WOFF + sg * 8192 + i * 4096}')
                k('buffer_load_dwordx4 v5, s[16:19], s34 offen lds')

    st()
    for c in range(4):
        issue_chunk(c)
    st()
    srd(k, 20, 8, 9, XBYTES, O_OFF)
    if layer == 1:
        srd(k, 24, 8, 9, 65536, ST_OFF)
    k('v_and_b32 v10, 15, v1')
    k('v_lshrrev_b32 v13, 1, v10')
    k('v_xor_b32 v13, v13, v12')
    k('v_lshlrev_b32 v6, 7, v10')
    k('v_lshl_add_u32 v6, v13, 4, v6')
    k('v_xor_b32 v7, 64, v6')
    k('v_add_u32 v8, s35, v6')
    k('v_add_u32 v9, s35, v7')
    k('v_bfe_u32 v13, v1, 2, 2')
    k('v_lshl_add_u32 v14, v12, 3, v13')
    k('v_lshlrev_b32 v164, 7, v14')
    k('v_lshrrev_b32 v13, 1, v13')
    k('v_and_b32 v14, 1, v12')
    k('v_lshl_or_b32 v13, v14, 1, v13')
    k('v_xor_b32 v13, s30, v13')
    k('v_lshl_add_u32 v164, v13, 5, v164')
    k('v_and_b32 v14, 3, v1')
    k('v_lshl_add_u32 v164, v14, 3, v164')
    k(f'v_add_u32 v164, {WOFF}, v164')
    for (d, sreg) in ((165, 6), (166, 7), (167, 8), (168, 9), (169, 164)):
        k(f'v_add_u32 v{d}, {2 * SLOT}, v{sreg}')
    for v in range(16, 88):
        k(f'v_mov_b32 v{v}, 0')
    for v in range(ONES, ONES + 4):
        k(f'v_mov_b32 v{v}, 0x3f803f80')
    for v in range(170, 174):
        k(f'v_mov_b32 v{v}, 0')

    def fread(s):
        c, q, b = s // 2, s & 1, s & 1
        slot = c % 4
        hi = slot >= 2
        so = (slot & 1) * SLOT
        xb = (166 if q else 165) if hi else (7 if q else 6)
        sbase = (168 if q else 167) if hi else (9 if q else 8)
        wb = 169 if hi else 164
        for sg in range(3):
            o = so + sg * 8192 + q * 4096
            k(f'ds_read_b64_tr_b16 v[{WFB(b,sg)}:{WFB(b,sg)+1}], v{wb} offset:{o}')
            k(f'ds_read_b64_tr_b16 v[{WFB(b,sg)+2}:{WFB(b,sg)+3}], v{wb} offset:{o+512}')
        for t in range(4):
            k(f'ds_read_b128 v[{XFB(b,t)}:{XFB(b,t)+3}], v{xb} offset:{so + 2048 + t * 2048}')
        k(f'ds_read_b128 v[{XFB(b,4)}:{XFB(b,4)+3}], v{xb} offset:{so}')
        k(f'ds_read_b128 v[{XFB(b,5)}:{XFB(b,5)+3}], v{sbase} offset:{so}')

    k('s_waitcnt vmcnt(27)')
    k('s_barrier')
    st()
    fread(0)
    for s in range(16):
        c, q, b = s // 2, s & 1, s & 1
        if q == 1 and c < 7:
            outstanding = (min(c + 2, 7) - (c + 1)) * 9 if c >= 1 else 18
            if c in (1, 2, 3, 5): st()
            k(f's_waitcnt vmcnt({outstanding})')
            k('s_barrier')
            if c in (1, 2, 3, 5): st()
            if c >= 1 and c + 3 <= 7:
                issue_chunk(c + 3)
        k('s_waitcnt lgkmcnt(0)')
        if s < 15:
            fread(s + 1)
        n = 0
        dots = []
        for d in range(4):
            dots.append(f'v_dot2c_f32_bf16 v170, v{XFB(b,5)+d}, v{ONES}')
            dots.append(f'v_dot2c_f32_bf16 v171, v{XFB(b,5)+d}, v{XFB(b,5)+d}')
            dots.append(f'v_dot2c_f32_bf16 v172, v{XFB(b,4)+d}, v{ONES}')
            dots.append(f'v_dot2c_f32_bf16 v173, v{XFB(b,4)+d}, v{XFB(b,4)+d}')
        for sg in range(3):
            w = WFB(b, sg)
            for t in range(5):
                if sg == 0 and t == 4:
                    continue
                a = ACC(sg, t)
                k(f'v_mfma_f32_16x16x32_bf16 v[{a}:{a+3}], v[{w}:{w+3}], v[{XFB(b,t)}:{XFB(b,t)+3}], v[{a}:{a+3}]')
            a = CS(sg)
            k(f'v_mfma_f32_16x16x32_bf16 v[{a}:{a+3}], v[{w}:{w+3}], v[{ONES}:{ONES+3}], v[{a}:{a+3}]')
        while dots:
            k(dots.pop(0))
    st()
    k('s_mov_b32 s52, 0xffff0000')
    k('s_mov_b32 s53, 0x3b000000')
    k('s_mov_b32 s54, 0x3727c5ac')
    for v in range(170, 174):
        xrow_reduce(k, v, 174 + (v - 170))
    ln_scalars(k, 170, 171, 88, 89, 178, 179, 52, 53, 54)
    ln_scalars(k, 172, 173, 98, 99, 180, 181, 52, 53, 54)
    k('s_lshl_b32 s34, s30, 7')
    k('v_lshlrev_b32 v13, 3, v10')
    k('v_add_u32 v14, s34, v13')
    k(f'ds_write_b64 v14, v[88:89] offset:{STAT}')
    if layer == 1:
        k('s_cmp_lg_u32 s30, 0')
        k('s_cbranch_scc1 L_k1_nozero')
        k('v_mov_b32 v100, 0')
        k('v_mov_b32 v101, 0')
        k('v_mov_b32 v102, 0')
        k('v_mov_b32 v103, 0')
        k('s_lshl_b32 s34, s2, 8')
        k('v_lshlrev_b32 v104, 4, v1')
        k('v_add_u32 v104, s34, v104')
        k('v_cmp_gt_u32 vcc, 16, v1')
        k('s_and_saveexec_b64 s[58:59], vcc')
        k('buffer_store_dwordx4 v[100:103], v104, s[24:27], 0 offen')
        k('s_mov_b64 exec, s[58:59]')
        k.label('L_k1_nozero')
    k('s_waitcnt lgkmcnt(0)')
    k('s_barrier')
    for t in range(4):
        k(f'ds_read_b64 v[{90+2*t}:{91+2*t}], v13 offset:{STAT + t * 128}')
    k(f'v_mul_u32_u24 v14, {ROWB}, v10')
    k('v_lshl_add_u32 v14, v12, 3, v14')
    k('s_mul_i32 s34, s30, 8960')
    k('v_add_u32 v14, s34, v14')
    k('s_waitcnt lgkmcnt(0)')
    for sg in range(3):
        for t in range(5):
            if sg == 0 and t == 4:
                continue
            a = ACC(sg, t)
            m, ri = (90 + 2 * t, 91 + 2 * t)
            for r in range(4):
                k(f'v_fma_f32 v{a+r}, -v{m}, v{CS(sg)+r}, v{a+r}')
            for r in range(4):
                k(f'v_mul_f32 v{a+r}, v{a+r}, v{ri}')
            k(f'v_cvt_pk_bf16_f32 v{a}, v{a}, v{a+1}')
            k(f'v_cvt_pk_bf16_f32 v{a+1}, v{a+2}, v{a+3}')
            rowoff = 0 if t == 4 else (16 + 16 * t) * ROWB
            k(f'ds_write_b64 v14, v[{a}:{a+1}] offset:{QKVA + rowoff + sg * 32}')
    st()
    k('v_add_u32 v3, s31, v1')
    k('v_add_u32 v4, 2, v1')
    k(f'v_mul_u32_u24 v4, {ROWB}, v4')
    k('v_add_u32 v4, s34, v4')
    Q = 16
    KK = lambda w: 24 + 8 * w
    VV = lambda w: 88 + 8 * w
    k('s_waitcnt lgkmcnt(0)')
    k(f'ds_read_b128 v[{Q}:{Q+3}], v4 offset:{QKVA + 14*ROWB}')
    k(f'ds_read_b128 v[{Q+4}:{Q+7}], v4 offset:{QKVA + 14*ROWB + 16}')
    for w in range(8):
        o = QKVA + (14 - 2 * w) * ROWB + 32
        if w == 6:
            k('s_waitcnt lgkmcnt(8)')
        k(f'ds_read_b128 v[{KK(w)}:{KK(w)+3}], v4 offset:{o}')
        k(f'ds_read_b128 v[{KK(w)+4}:{KK(w)+7}], v4 offset:{o+16}')
    k('s_waitcnt lgkmcnt(0)')
    for w in range(7):
        o = QKVA + (14 - 2 * w) * ROWB + 64
        k(f'ds_read_b128 v[{VV(w)}:{VV(w)+3}], v4 offset:{o}')
        k(f'ds_read_b128 v[{VV(w)+4}:{VV(w)+7}], v4 offset:{o+16}')
    L = 152
    for j in range(8):
        for w in range(8):
            src2 = '0' if j == 0 else f'v{L+w}'
            k(f'v_dot2_f32_bf16 v{L+w}, v{Q+j}, v{KK(w)+j}, {src2}')
    k('s_waitcnt lgkmcnt(8)')
    o = QKVA + 64
    k(f'ds_read_b128 v[{VV(7)}:{VV(7)+3}], v4 offset:{o}')
    k(f'ds_read_b128 v[{VV(7)+4}:{VV(7)+7}], v4 offset:{o+16}')
    P = 160
    for w in range(0, 8, 2):
        k(f'v_cvt_pk_bf16_f32 v{P+w//2}, v{L+w}, v{L+w+1}')
    for w in range(0, 8, 2):
        k(f'v_lshlrev_b32 v{L+w}, 16, v{P+w//2}')
        k(f'v_and_b32 v{L+w+1}, s52, v{P+w//2}')
    k('v_mov_b32 v164, 0xcf6e6b28')
    for w in range(1, 8):
        k(f'v_cmp_le_u32 vcc, {2*w}, v3')
        k(f'v_cndmask_b32 v{L+w}, v164, v{L+w}, vcc')
    k(f'v_max3_f32 v165, v{L}, v{L+1}, v{L+2}')
    k(f'v_max3_f32 v166, v{L+3}, v{L+4}, v{L+5}')
    k(f'v_max3_f32 v165, v165, v{L+6}, v{L+7}')
    k('v_max_f32 v165, v165, v166')
    k('s_mov_b32 s34, 0x3eb8aa3b')
    for w in range(8):
        k(f'v_sub_f32 v{L+w}, v{L+w}, v165')
    for w in range(8):
        k(f'v_mul_f32 v{L+w}, s34, v{L+w}')
    for w in range(8):
        k(f'v_exp_f32 v{L+w}, v{L+w}')
    k(f'v_add_f32 v165, v{L}, v{L+1}')
    k(f'v_add_f32 v166, v{L+2}, v{L+3}')
    k(f'v_add_f32 v167, v{L+4}, v{L+5}')
    k(f'v_add_f32 v168, v{L+6}, v{L+7}')
    k('v_add_f32 v165, v165, v166')
    k('v_add_f32 v167, v167, v168')
    k('v_add_f32 v165, v165, v167')
    k('v_rcp_f32 v165, v165')
    for w in range(8):
        k(f'v_mul_f32 v{L+w}, v{L+w}, v165')
    for w in range(0, 8, 2):
        k(f'v_cvt_pk_bf16_f32 v{P+w//2}, v{L+w}, v{L+w+1}')
    k('s_mov_b32 s36, 0x05040100')
    k('s_mov_b32 s37, 0x07060302')
    k('s_waitcnt lgkmcnt(0)')
    OO = 24
    for wp in range(4):
        a, b = 2 * wp, 2 * wp + 1
        for j in range(8):
            k(f'v_perm_b32 v{40+2*j}, v{VV(b)+j}, v{VV(a)+j}, s36')
            k(f'v_perm_b32 v{41+2*j}, v{VV(b)+j}, v{VV(a)+j}, s37')
        for j in range(16):
            src2 = '0' if wp == 0 else f'v{OO+j}'
            k(f'v_dot2_f32_bf16 v{OO+j}, v{40+j}, v{P+wp}, {src2}')
    for j in range(8):
        k(f'v_cvt_pk_bf16_f32 v{56+j}, v{OO+2*j}, v{OO+2*j+1}')
    k('v_lshlrev_b32 v5, 10, v3')
    k('s_lshl_b32 s34, s29, 7')
    k('s_lshl_b32 s36, s30, 5')
    k('s_add_u32 s34, s34, s36')
    k('v_add_u32 v5, s34, v5')
    k('buffer_store_dwordx4 v[56:59], v5, s[20:23], 0 offen')
    k('buffer_store_dwordx4 v[60:63], v5, s[20:23], 0 offen offset:16')
    st()
    k('s_waitcnt vmcnt(0)' if DIAG else '')
    st()
    st.flush(8, 9, layer - 1, 6, 7, 60)
    k.label(f'L_k1l{layer}_done')
    k('s_endpgm')
    return k, 4 * SLOT


def k2(layer):
    k = Kern(f'k2l{layer}_kernel', nvgpr=128, accum_offset=128, nsgpr=100)
    st = Stamps(k)
    CH = 16384
    ACC = lambda j: 12 + 4 * j
    RES = lambda j: 44 + 2 * j
    WR = lambda j: 52 + 2 * j
    WF = lambda b, j: 64 + b * 20 + 4 * j
    OF = lambda b: 64 + b * 20 + 16
    k('s_cmp_ge_u32 s2, 256')
    k(f's_cbranch_scc1 L_k2l{layer}_done')
    st()
    k(f's_load_dwordx2 s[4:5], s[0:1], {0 if layer == 1 else 80}')
    k('s_load_dwordx2 s[6:7], s[0:1], 16')
    k('s_load_dwordx2 s[8:9], s[0:1], 80')
    k('s_load_dwordx2 s[10:11], s[0:1], 32')
    k('s_and_b32 s36, s2, 7')
    k('s_lshr_b32 s37, s2, 3')
    k('s_lshl_b32 s36, s36, 2')
    k('s_lshr_b32 s38, s37, 3')
    k('s_add_u32 s36, s36, s38')
    k('s_and_b32 s37, s37, 7')
    k('s_lshl_b32 s36, s36, 6')
    k('s_lshl_b32 s41, s37, 7')
    k('v_and_b32 v1, 63, v0')
    k('v_lshrrev_b32 v2, 6, v0')
    k('v_readfirstlane_b32 s39, v2')
    k('v_lshrrev_b32 v10, 3, v1')
    k('v_and_b32 v11, 7, v1')
    k('v_lshrrev_b32 v61, 4, v1')
    k('s_lshl_b32 s40, s39, 4')
    k('s_add_u32 s40, s40, s36')
    k('v_add_u32 v4, s40, v10')
    k('v_lshlrev_b32 v4, 10, v4')
    k('v_xor_b32 v5, v11, v61')
    k('v_lshl_add_u32 v2, v5, 4, v4')
    k('v_xor_b32 v5, 4, v5')
    k('v_lshl_add_u32 v3, v5, 4, v4')
    k('v_add_u32 v3, 8192, v3')
    k('v_bfe_u32 v4, v10, 1, 1')
    k('s_and_b32 s42, s39, 1')
    k('s_lshl_b32 s42, s42, 1')
    k('v_or_b32 v4, s42, v4')
    k('v_lshrrev_b32 v5, 1, v11')
    k('v_xor_b32 v4, v4, v5')
    k('v_lshlrev_b32 v6, 10, v10')
    k('v_lshl_add_u32 v6, v4, 5, v6')
    k('v_and_b32 v5, 1, v11')
    k('v_lshl_add_u32 v6, v5, 4, v6')
    k('v_add_u32 v6, s41, v6')
    k('s_lshl_b32 s43, s39, 13')
    k('s_lshl_b32 s44, s39, 10')
    k('s_lshl_b32 s45, s39, 11')
    k('s_waitcnt lgkmcnt(0)')
    srd(k, 12, 8, 9, XBYTES, O_OFF)
    srd(k, 16, 6, 7, 512 * 512 * 2)
    st()
    for c in range(8):
        k(f's_mov_b32 s46, {c * 128}')
        k(f's_add_u32 m0, s45, {c * CH}')
        k('buffer_load_dwordx4 v2, s[12:15], s46 offen lds')
        k(f's_add_u32 m0, s45, {c * CH + 1024}')
        k('buffer_load_dwordx4 v3, s[12:15], s46 offen lds')
        for i in range(2):
            k(f's_add_u32 s47, s43, {(c * 64 + 32 * i) * 1024}')
            k(f's_add_u32 m0, s44, {c * CH + 8192 + i * 4096}')
            k('buffer_load_dwordx4 v6, s[16:19], s47 offen lds')
    st()
    srd(k, 20, 4, 5, XBYTES, 0 if layer == 1 else X2_OFF)
    srd(k, 24, 8, 9, XBYTES, X1_OFF if layer == 1 else X3_OFF)
    srd(k, 28, 8, 9, 32768, ST_OFF + (layer - 1) * 32768)
    srd(k, 32, 10, 11, 1024)
    k('v_and_b32 v60, 15, v1')
    k('v_add_u32 v62, s40, v60')
    k('v_lshlrev_b32 v9, 10, v62')
    k('v_lshl_add_u32 v9, v61, 3, v9')
    k('v_add_u32 v9, s41, v9')
    k('v_lshlrev_b32 v10, 3, v61')
    k('v_add_u32 v10, s41, v10')
    for j in range(4):
        k(f'buffer_load_dwordx2 v[{RES(j)}:{RES(j)+1}], v9, s[20:23], 0 offen offset:{j*32}')
    for j in range(4):
        k(f'buffer_load_dwordx2 v[{WR(j)}:{WR(j)+1}], v10, s[32:35], 0 offen offset:{j*32}')
    k('v_lshrrev_b32 v4, 1, v60')
    k('v_xor_b32 v4, v4, v61')
    k('v_lshlrev_b32 v2, 7, v60')
    k('v_lshl_add_u32 v2, v4, 4, v2')
    k('v_add_u32 v2, s45, v2')
    k('v_xor_b32 v3, 64, v2')
    k('v_bfe_u32 v8, v1, 2, 2')
    k('v_lshl_add_u32 v11, v61, 3, v8')
    k('v_lshlrev_b32 v11, 7, v11')
    k('v_and_b32 v5, 3, v1')
    k('v_lshl_add_u32 v11, v5, 3, v11')
    k('v_add_u32 v11, 8192, v11')
    k('v_lshrrev_b32 v8, 1, v8')
    k('v_and_b32 v5, 1, v61')
    k('v_lshl_or_b32 v8, v5, 1, v8')
    for j in range(4):
        k(f'v_xor_b32 v{4+j}, {j}, v8')
        k(f'v_lshl_add_u32 v{4+j}, v{4+j}, 5, v11')
    for i in range(6):
        k(f'v_add_u32 v{28+i}, 65536, v{2+i}')
    for v in range(12, 28):
        k(f'v_mov_b32 v{v}, 0')

    def fread(s):
        c, q, b = s // 2, s & 1, s & 1
        hi = c >= 4
        co = (c & 3) * CH
        base = 28 if hi else 2
        for j in range(4):
            k(f'ds_read_b64_tr_b16 v[{WF(b,j)}:{WF(b,j)+1}], v{base+2+j} offset:{co + q*4096}')
            k(f'ds_read_b64_tr_b16 v[{WF(b,j)+2}:{WF(b,j)+3}], v{base+2+j} offset:{co + q*4096 + 512}')
        k(f'ds_read_b128 v[{OF(b)}:{OF(b)+3}], v{base+q} offset:{co}')

    k('s_waitcnt vmcnt(36)')
    k('s_barrier')
    st()
    fread(0)
    for s in range(16):
        c, q, b = s // 2, s & 1, s & 1
        if q == 1 and c < 7:
            k(f's_waitcnt vmcnt({(6 - c) * 4 + 8})')
            k('s_barrier')
        k('s_waitcnt lgkmcnt(0)')
        if s < 15:
            fread(s + 1)
        for j in range(4):
            k(f'v_mfma_f32_16x16x32_bf16 v[{ACC(j)}:{ACC(j)+3}], v[{WF(b,j)}:{WF(b,j)+3}], v[{OF(b)}:{OF(b)+3}], v[{ACC(j)}:{ACC(j)+3}]')
    st()
    k('s_mov_b32 s46, 0xffff0000')
    k('v_mov_b32 v63, 0x3f803f80')
    k('v_mov_b32 v108, 0')
    k('v_mov_b32 v109, 0')
    k('v_mov_b32 v110, 0')
    k('s_waitcnt vmcnt(0)')
    for j in range(4):
        for h in range(2):
            a = ACC(j) + 2 * h
            o = 112 + 2 * j + h
            k(f'v_cvt_pk_bf16_f32 v120, v{a}, v{a+1}')
            k('v_lshlrev_b32 v121, 16, v120')
            k('v_and_b32 v122, s46, v120')
            k(f'v_lshlrev_b32 v123, 16, v{RES(j)+h}')
            k(f'v_and_b32 v124, s46, v{RES(j)+h}')
            k('v_add_f32 v121, v121, v123')
            k('v_add_f32 v122, v122, v124')
            k(f'v_cvt_pk_bf16_f32 v{o}, v121, v122')
            k(f'v_dot2c_f32_bf16 v108, v{o}, v63')
            k(f'v_dot2c_f32_bf16 v109, v{o}, v{o}')
            k(f'v_dot2c_f32_bf16 v110, v{o}, v{WR(j)+h}')
        k(f'buffer_store_dwordx2 v[{112+2*j}:{113+2*j}], v9, s[24:27], 0 offen offset:{j*32}')
    for v in range(108, 111):
        xrow_reduce(k, v, 125 + v - 108)
    k('v_mov_b32 v111, 0')
    k('v_cmp_eq_u32 vcc, 1, v61')
    k('v_cndmask_b32 v108, v108, v109, vcc')
    k('v_cmp_eq_u32 vcc, 2, v61')
    k('v_cndmask_b32 v108, v108, v110, vcc')
    k('v_cmp_eq_u32 vcc, 3, v61')
    k('v_cndmask_b32 v108, v108, v111, vcc')
    k('v_lshlrev_b32 v120, 4, v62')
    k('v_lshl_add_u32 v120, v61, 2, v120')
    k('buffer_atomic_add_f32 v108, v120, s[28:31], 0 offen')
    st()
    k('s_waitcnt vmcnt(0)' if DIAG else '')
    st()
    st.flush(8, 9, 2 + layer - 1, 6, 7, 60)
    k.label(f'L_k2l{layer}_done')
    k('s_endpgm')
    return k, 131072


def normalize_dword(k, x, m, rinv, t0, t1, s_mask, out):
    k(f'v_lshlrev_b32 v{t0}, 16, v{x}')
    k(f'v_and_b32 v{t1}, s{s_mask}, v{x}')
    k(f'v_sub_f32 v{t0}, v{t0}, v{m}')
    k(f'v_sub_f32 v{t1}, v{t1}, v{m}')
    k(f'v_cvt_pk_bf16_f32 v{t0}, v{t0}, v{t1}')
    k(f'v_and_b32 v{t1}, s{s_mask}, v{t0}')
    k(f'v_lshlrev_b32 v{t0}, 16, v{t0}')
    k(f'v_mul_f32 v{t0}, v{t0}, v{rinv}')
    k(f'v_mul_f32 v{t1}, v{t1}, v{rinv}')
    k(f'v_cvt_pk_bf16_f32 v{out}, v{t0}, v{t1}')


def add_dwords(k, a, b, t0, t1, t2, t3, s_mask, out):
    k(f'v_lshlrev_b32 v{t0}, 16, v{a}')
    k(f'v_and_b32 v{t1}, s{s_mask}, v{a}')
    k(f'v_lshlrev_b32 v{t2}, 16, v{b}')
    k(f'v_and_b32 v{t3}, s{s_mask}, v{b}')
    k(f'v_add_f32 v{t0}, v{t0}, v{t2}')
    k(f'v_add_f32 v{t1}, v{t1}, v{t3}')
    k(f'v_cvt_pk_bf16_f32 v{out}, v{t0}, v{t1}')


def dpp_max_reduce(k, src, t):
    k(f'v_max_u32_dpp v{t}, v{src}, v{src} quad_perm:[1,0,3,2] row_mask:0xf bank_mask:0xf')
    k(f'v_max_u32_dpp v{t}, v{t}, v{t} quad_perm:[2,3,0,1] row_mask:0xf bank_mask:0xf')
    k(f'v_max_u32_dpp v{t}, v{t}, v{t} row_half_mirror row_mask:0xf bank_mask:0xf')
    k(f'v_max_u32_dpp v{t}, v{t}, v{t} row_mirror row_mask:0xf bank_mask:0xf')
    k(f'v_max_u32_dpp v{t}, v{t}, v{t} row_bcast:15 row_mask:0xa bank_mask:0xf')
    k(f'v_max_u32_dpp v{t}, v{t}, v{t} row_bcast:31 row_mask:0xc bank_mask:0xf')


NFFN = 56
NLN = 128
PART_OFF = 9 * MB


def k4(layer):
    k = Kern(f'k4l{layer}_kernel', nvgpr=128, accum_offset=128, nsgpr=100)
    st = Stamps(k, base=80)
    GOFF, UOFF, DOFF, RED = 0, 32768, 65536, 98304
    CAND = RED + 16384
    HB = CAND + 128
    k(f's_cmp_ge_u32 s2, {NFFN + NLN}')
    k(f's_cbranch_scc1 L_k4l{layer}_done')
    st()
    k('s_load_dwordx2 s[4:5], s[0:1], 80')
    k('s_load_dwordx2 s[6:7], s[0:1], 40')
    k('s_load_dwordx2 s[8:9], s[0:1], 48')
    k('s_load_dwordx2 s[10:11], s[0:1], 32')
    k('s_load_dwordx2 s[70:71], s[0:1], 64')
    k('s_load_dwordx2 s[66:67], s[0:1], 56')
    k('v_and_b32 v1, 63, v0')
    k('v_lshrrev_b32 v2, 6, v0')
    k('v_readfirstlane_b32 s68, v2')
    k('s_mov_b32 s72, 0xffff0000')
    k('s_mov_b32 s73, 0x3b000000')
    k('s_mov_b32 s74, 0x3727c5ac')
    k('v_lshlrev_b32 v3, 4, v0')
    k('s_waitcnt lgkmcnt(0)')
    srd(k, 12, 4, 5, XBYTES, X1_OFF if layer == 1 else X3_OFF)
    srd(k, 24, 4, 5, 32768, ST_OFF + (layer - 1) * 32768)
    k(f's_cmp_ge_u32 s2, {NFFN}')
    k(f's_cbranch_scc1 L_k4l{layer}_ln')
    for i in range(8):
        k(f's_mov_b32 s40, {4096 * i}')
        k(f'buffer_load_dwordx4 v[{32+4*i}:{35+4*i}], v3, s[24:27], s40 offen')
    srd(k, 28, 10, 11, 1024)
    k('v_lshlrev_b32 v4, 4, v1')
    k('buffer_load_dwordx4 v[64:67], v4, s[28:31], 0 offen')
    srd(k, 16, 6, 7, 512 * 1792 * 2)
    srd(k, 20, 8, 9, 512 * 1792 * 2)
    srd(k, 44, 66, 67, 1792 * 512 * 2)
    srd(k, 32, 4, 5, SM_SIZE, SM_OFF)
    k('s_and_b32 s69, s2, 7')
    k('s_mul_i32 s69, s69, 7')
    k('s_lshr_b32 s75, s2, 3')
    k('s_add_u32 s69, s69, s75')
    k('v_lshrrev_b32 v5, 2, v1')
    k('v_mul_u32_u24 v6, 3584, v5')
    k('v_lshrrev_b32 v7, 5, v1')
    k('v_lshlrev_b32 v7, 1, v7')
    k('v_and_b32 v8, 3, v1')
    k('v_xor_b32 v7, v7, v8')
    k('v_lshl_add_u32 v6, v7, 4, v6')
    k('s_lshl_b32 s75, s69, 6')
    k('v_add_u32 v6, s75, v6')
    k('s_mul_i32 s76, s68, 458752')
    k('s_lshl_b32 s77, s68, 13')
    for mat in range(2):
        for i in range(8):
            k(f's_add_u32 s40, s76, {16 * i * 3584}')
            k(f's_add_u32 m0, s77, {mat * 32768 + i * 1024}')
            k(f'buffer_load_dwordx4 v6, s[{16+4*mat}:{19+4*mat}], s40 offen lds')
    k('v_lshrrev_b32 v7, 1, v1')
    k('v_and_b32 v8, 1, v1')
    k('s_lshl_b32 s78, s69, 15')
    k('s_lshl_b32 s79, s68, 13')
    k('s_add_u32 s78, s78, s79')
    for i in range(8):
        k('s_and_b32 s40, s68, 1')
        k('s_lshl_b32 s40, s40, 2')
        k(f's_or_b32 s40, s40, {i & 3}')
        k('v_xor_b32 v9, s40, v7')
        k('v_lshlrev_b32 v9, 5, v9')
        k('v_lshl_add_u32 v9, v8, 4, v9')
        k(f's_add_u32 s41, s78, {i * 1024}')
        k(f's_add_u32 m0, s79, {DOFF + i * 1024}')
        k('buffer_load_dwordx4 v9, s[44:47], s41 offen lds')
    st()
    k('v_mov_b32 v8, 0x3f803f80')
    k('v_mov_b32 v9, 0')
    k('s_waitcnt vmcnt(24)')
    st()
    for d in range(4):
        k(f'v_dot2c_f32_bf16 v9, v{64+d}, v8')
    k('v_add_f32_dpp v9, v9, v9 quad_perm:[1,0,3,2] row_mask:0xf bank_mask:0xf')
    k('v_add_f32_dpp v9, v9, v9 quad_perm:[2,3,0,1] row_mask:0xf bank_mask:0xf')
    k('v_add_f32_dpp v9, v9, v9 row_half_mirror row_mask:0xf bank_mask:0xf')
    k('v_add_f32_dpp v9, v9, v9 row_mirror row_mask:0xf bank_mask:0xf')
    xrow_reduce(k, 9, 10)
    for i in range(8):
        b = 32 + 4 * i
        ln_scalars(k, b, b + 1, 10, 11, 12, 13, 72, 73, 74)
        k(f'v_fma_f32 v12, -v10, v9, v{b+2}')
        k('v_mul_f32 v12, v12, v11')
        k('v_cvt_pk_bf16_f32 v12, v12, v12')
        k('v_lshlrev_b32 v12, 16, v12')
        k('v_ashrrev_i32 v13, 31, v12')
        k('v_or_b32 v13, 0x80000000, v13')
        k('v_xor_b32 v12, v12, v13')
        k(f'v_sub_u32 v13, {2047 - 256 * i}, v0')
        k(f'v_and_or_b32 v{16+i}, v12, s72, v13')
    regs = list(range(16, 24))
    spare = 24
    net = [(0, 1), (2, 3), (4, 5), (6, 7), (0, 2), (1, 3), (4, 6), (5, 7), (1, 2), (5, 6), (0, 4), (3, 7),
           (1, 5), (2, 6), (1, 4), (3, 6), (2, 4), (3, 5), (3, 4)]
    for (a, b) in net:
        k(f'v_max_u32 v{spare}, v{regs[a]}, v{regs[b]}')
        k(f'v_min_u32 v{regs[b]}, v{regs[a]}, v{regs[b]}')
        regs[a], spare = spare, regs[a]
    k('v_mov_b32 v26, 0')
    st()
    for n in range(8):
        dpp_max_reduce(k, regs[0], 25)
        k(f'v_readlane_b32 s{50+n}, v25, 63')
        k(f'v_writelane_b32 v26, s{50+n}, {n}')
        if n < 7:
            k(f'v_cmp_eq_u32 vcc, s{50+n}, v{regs[0]}')
            for i in range(7 - n):
                k(f'v_cndmask_b32 v{regs[i]}, v{regs[i]}, v{regs[i+1]}, vcc')
    k('s_lshl_b32 s40, s68, 5')
    k('v_lshlrev_b32 v27, 2, v1')
    k('v_add_u32 v27, s40, v27')
    k(f'v_add_u32 v27, {RED}, v27')
    k('v_cmp_gt_u32 vcc, 8, v1')
    k('s_and_saveexec_b64 s[48:49], vcc')
    k(f'ds_write_b32 v27, v26 offset:{CAND - RED}')
    k('s_mov_b64 exec, s[48:49]')
    k('s_waitcnt lgkmcnt(0)')
    k('s_barrier')
    k('v_and_b32 v27, 31, v1')
    k('v_lshlrev_b32 v27, 2, v27')
    k(f'v_add_u32 v27, {RED}, v27')
    k(f'ds_read_b32 v28, v27 offset:{CAND - RED}')
    k('v_mov_b32 v26, 0')
    k('s_waitcnt lgkmcnt(0)')
    st()
    for n in range(8):
        dpp_max_reduce(k, 28, 25)
        k(f'v_readlane_b32 s{58+n}, v25, 63')
        k(f'v_writelane_b32 v26, s{58+n}, {n}')
        if n < 7:
            k(f'v_cmp_eq_u32 vcc, s{58+n}, v28')
            k('v_cndmask_b32 v28, v28, 0, vcc')
    st()
    k('v_and_b32 v27, 7, v1')
    k('v_lshlrev_b32 v27, 2, v27')
    k('ds_bpermute_b32 v28, v27, v26')
    k('v_lshrrev_b32 v61, 4, v1')
    k('s_or_b32 s40, s2, s68')
    k('s_cmp_lg_u32 s40, 0')
    k(f's_cbranch_scc1 L_k4l{layer}_nokeys')
    k('v_lshlrev_b32 v27, 2, v1')
    k('v_cmp_gt_u32 vcc, 8, v1')
    k('s_and_saveexec_b64 s[48:49], vcc')
    k(f's_mov_b32 s40, {SEL_REL}')
    k('buffer_store_dword v26, v27, s[32:35], s40 offen')
    k('s_mov_b64 exec, s[48:49]')
    k.label(f'L_k4l{layer}_nokeys')
    k('s_waitcnt lgkmcnt(0)')
    k('v_and_b32 v28, 0x7ff, v28')
    k('v_sub_u32 v28, 2047, v28')
    k('v_lshlrev_b32 v29, 10, v28')
    k('v_lshl_add_u32 v29, v61, 4, v29')
    k('s_lshl_b32 s40, s68, 8')
    k('v_lshlrev_b32 v30, 4, v28')
    k('buffer_load_dwordx2 v[14:15], v30, s[24:27], 0 offen')
    for s in range(4):
        k(f'buffer_load_dwordx4 v[{32+4*s}:{35+4*s}], v29, s[12:15], s40 offen offset:{s*64}')
    k('v_bfe_u32 v62, v1, 2, 2')
    k('v_lshl_add_u32 v62, v61, 3, v62')
    k('v_lshlrev_b32 v62, 6, v62')
    k('v_and_b32 v63, 1, v61')
    k('v_lshl_add_u32 v62, v63, 5, v62')
    k('v_and_b32 v63, 3, v1')
    k('v_lshl_add_u32 v62, v63, 3, v62')
    k('v_add_u32 v62, s77, v62')
    k('v_xor_b32 v63, 32, v62')
    k('s_waitcnt vmcnt(5)')
    st()
    FR = lambda mat, tl, s: 64 + ((mat * 2 + tl) * 4 + s) * 4
    cnt = 0
    for s in range(4):
        for mat in range(2):
            for tl in range(2):
                b = FR(mat, tl, s)
                if cnt >= 12:
                    k('s_waitcnt lgkmcnt(10)')
                k(f'ds_read_b64_tr_b16 v[{b}:{b+1}], v{62+tl} offset:{mat*32768 + s*2048}')
                k(f'ds_read_b64_tr_b16 v[{b+2}:{b+3}], v{62+tl} offset:{mat*32768 + s*2048 + 256}')
                cnt += 2
    k('s_waitcnt vmcnt(4)')
    ln_scalars(k, 14, 15, 10, 11, 12, 13, 72, 73, 74)
    k('s_waitcnt vmcnt(0)')
    for d in range(16):
        normalize_dword(k, 32 + d, 10, 11, 12, 13, 72, 32 + d)
    for v in range(48, 64):
        if v not in (61,):
            pass
    AC = lambda mat, tl: 16 + (mat * 2 + tl) * 4
    for v in range(16, 32):
        k(f'v_mov_b32 v{v}, 0')
    k('s_waitcnt lgkmcnt(0)')
    for s in range(4):
        for mat in range(2):
            for tl in range(2):
                b = FR(mat, tl, s)
                a = AC(mat, tl)
                k(f'v_mfma_f32_16x16x32_bf16 v[{a}:{a+3}], v[{b}:{b+3}], v[{32+4*s}:{35+4*s}], v[{a}:{a+3}]')
    st()
    k('s_lshl_b32 s40, s68, 12')
    k('v_lshlrev_b32 v56, 4, v1')
    k(f'v_add_u32 v56, {RED}, v56')
    k('v_add_u32 v57, s40, v56')
    for q in range(4):
        k(f'ds_write_b128 v57, v[{16+4*q}:{19+4*q}] offset:{q*1024}')
    k('s_waitcnt lgkmcnt(0)')
    k('s_barrier')
    k('s_cmp_ge_u32 s68, 2')
    k(f's_cbranch_scc1 L_k4l{layer}_skiph')
    k('s_lshl_b32 s40, s68, 10')
    k('v_add_u32 v57, s40, v56')
    for w in range(4):
        k(f'ds_read_b128 v[{64+8*w}:{67+8*w}], v57 offset:{w*4096}')
        k(f'ds_read_b128 v[{68+8*w}:{71+8*w}], v57 offset:{w*4096 + 2048}')
    k('s_waitcnt lgkmcnt(0)')
    for e in range(8):
        k(f'v_add_f32 v{64+e}, v{64+e}, v{72+e}')
        k(f'v_add_f32 v{80+e}, v{80+e}, v{88+e}')
    for e in range(8):
        k(f'v_add_f32 v{64+e}, v{64+e}, v{80+e}')
    for e in range(0, 8, 2):
        k(f'v_cvt_pk_bf16_f32 v72, v{64+e}, v{65+e}')
        k(f'v_lshlrev_b32 v{64+e}, 16, v72')
        k(f'v_and_b32 v{65+e}, s72, v72')
    k('s_mov_b32 s40, 0xbfb8aa3b')
    for e in range(4):
        k(f'v_mul_f32 v{72+e}, s40, v{64+e}')
    for e in range(4):
        k(f'v_exp_f32 v{72+e}, v{72+e}')
    for e in range(4):
        k(f'v_add_f32 v{72+e}, 1.0, v{72+e}')
    for e in range(4):
        k(f'v_rcp_f32 v{72+e}, v{72+e}')
    for e in range(4):
        k(f'v_mul_f32 v{64+e}, v{64+e}, v{72+e}')
    for e in range(0, 4, 2):
        k(f'v_cvt_pk_bf16_f32 v72, v{64+e}, v{65+e}')
        k(f'v_lshlrev_b32 v{64+e}, 16, v72')
        k(f'v_and_b32 v{65+e}, s72, v72')
    for e in range(4):
        k(f'v_mul_f32 v{64+e}, v{64+e}, v{68+e}')
    k('v_cvt_pk_bf16_f32 v76, v64, v65')
    k('v_cvt_pk_bf16_f32 v77, v66, v67')
    k('v_and_b32 v58, 15, v1')
    k('v_lshlrev_b32 v58, 6, v58')
    k('v_lshl_add_u32 v58, v61, 3, v58')
    k('s_lshl_b32 s40, s68, 5')
    k('v_add_u32 v58, s40, v58')
    k(f'v_add_u32 v58, {RED}, v58')
    k(f'ds_write_b64 v58, v[76:77] offset:{HB - RED}')
    k.label(f'L_k4l{layer}_skiph')
    k('s_waitcnt lgkmcnt(0)')
    k('s_barrier')
    k('v_and_b32 v58, 15, v1')
    k('v_lshlrev_b32 v59, 6, v58')
    k('v_lshl_add_u32 v59, v61, 4, v59')
    k(f'v_add_u32 v59, {RED}, v59')
    k(f'ds_read_b128 v[32:35], v59 offset:{HB - RED}')
    k('v_bfe_u32 v60, v1, 2, 2')
    k('v_lshl_add_u32 v36, v61, 3, v60')
    k('v_lshlrev_b32 v36, 10, v36')
    k('v_and_b32 v37, 3, v1')
    k('v_lshl_add_u32 v36, v37, 3, v36')
    k(f'v_add_u32 v36, {DOFF}, v36')
    k('v_and_b32 v37, 1, v61')
    k('v_lshl_or_b32 v60, v37, 2, v60')
    k('s_lshl_b32 s40, s68, 8')
    k('v_add_u32 v36, s40, v36')
    for j in range(8):
        k(f'v_xor_b32 v37, {j}, v60')
        k(f'v_lshl_add_u32 v{40+j}, v37, 5, v36')
    for j in range(7):
        k(f'ds_read_b64_tr_b16 v[{64+4*j}:{65+4*j}], v{40+j}')
        k(f'ds_read_b64_tr_b16 v[{66+4*j}:{67+4*j}], v{40+j} offset:4096')
    k('s_waitcnt lgkmcnt(8)')
    k('ds_read_b64_tr_b16 v[92:93], v47')
    k('ds_read_b64_tr_b16 v[94:95], v47 offset:4096')
    srd(k, 36, 4, 5, 56 * 16384, PART_OFF)
    k('v_lshlrev_b32 v38, 11, v58')
    k('v_lshl_add_u32 v38, v61, 4, v38')
    k('s_lshl_b32 s40, s69, 14')
    k('s_lshl_b32 s41, s68, 9')
    k('s_add_u32 s40, s40, s41')
    k('v_add_u32 v38, s40, v38')
    k('s_waitcnt lgkmcnt(0)')
    for j in range(8):
        k(f'v_mfma_f32_16x16x32_bf16 v[{96+4*j}:{99+4*j}], v[{64+4*j}:{67+4*j}], v[32:35], 0')
    k('v_cmp_gt_u32 vcc, 8, v58')
    k('s_and_saveexec_b64 s[48:49], vcc')
    for j in range(8):
        k(f'buffer_store_dwordx4 v[{96+4*j}:{99+4*j}], v38, s[36:39], 0 offen offset:{j*64}')
    k('s_mov_b64 exec, s[48:49]')
    st()
    k('s_waitcnt vmcnt(0)' if DIAG else '')
    st()
    st.flush(4, 5, 4 + layer - 1, 6, 7, 60)
    k(f's_branch L_k4l{layer}_done')
    k.label(f'L_k4l{layer}_ln')
    if layer == 1:
        srd(k, 36, 4, 5, XBYTES, X2_OFF)
    else:
        srd(k, 36, 70, 71, XBYTES)
    k(f's_sub_u32 s40, s2, {NFFN}')
    k('s_lshl_b32 s40, s40, 4')
    k('v_lshrrev_b32 v2, 4, v0')
    k('v_add_u32 v2, s40, v2')
    k('v_lshlrev_b32 v3, 4, v2')
    k('buffer_load_dwordx2 v[14:15], v3, s[24:27], 0 offen')
    k('v_and_b32 v4, 15, v0')
    k('v_lshlrev_b32 v3, 10, v2')
    k('v_lshl_add_u32 v3, v4, 4, v3')
    for s in range(4):
        k(f'buffer_load_dwordx4 v[{32+4*s}:{35+4*s}], v3, s[12:15], 0 offen offset:{s*256}')
    k('s_waitcnt vmcnt(4)')
    ln_scalars(k, 14, 15, 10, 11, 12, 13, 72, 73, 74)
    for s in range(4):
        k(f's_waitcnt vmcnt({3 - s + s})' if s == 99 else f's_waitcnt vmcnt({3})' if s == 0 else f's_waitcnt vmcnt({3})')
        for d in range(4):
            x = 32 + 4 * s + d
            normalize_dword(k, x, 10, 11, 12, 13, 72, 16)
            add_dwords(k, x, 16, 12, 13, 17, 18, 72, 48 + 4 * s + d)
        k(f'buffer_store_dwordx4 v[{48+4*s}:{51+4*s}], v3, s[36:39], 0 offen offset:{s*256}')
    k.label(f'L_k4l{layer}_done')
    k('s_endpgm')
    return k, HB + 1024


def k5(layer):
    k = Kern(f'k5l{layer}_kernel', nvgpr=64, accum_offset=64, nsgpr=100)
    st = Stamps(k, base=80)
    k('s_cmp_ge_u32 s2, 32')
    k(f's_cbranch_scc1 L_k5l{layer}_done')
    st()
    k('s_load_dwordx2 s[4:5], s[0:1], 80')
    k('s_load_dwordx2 s[70:71], s[0:1], 64')
    k('s_mov_b32 s72, 0xffff0000')
    k('s_mov_b32 s73, 0x3b000000')
    k('s_mov_b32 s74, 0x3727c5ac')
    k('s_lshr_b32 s68, s2, 2')
    k('s_and_b32 s69, s2, 3')
    k('v_and_b32 v1, 31, v0')
    k('v_lshrrev_b32 v2, 5, v0')
    k('v_mul_u32_u24 v3, 114688, v2')
    k('v_lshl_add_u32 v3, v1, 4, v3')
    k('s_lshl_b32 s40, s68, 11')
    k('s_lshl_b32 s41, s69, 9')
    k('s_add_u32 s40, s40, s41')
    k('v_add_u32 v3, s40, v3')
    k('s_waitcnt lgkmcnt(0)')
    srd(k, 36, 4, 5, 56 * 16384, PART_OFF)
    srd(k, 32, 4, 5, SM_SIZE, SM_OFF)
    k('s_lshl_b32 s41, s68, 2')
    k(f's_add_u32 s41, s41, {SEL_REL}')
    k('v_mov_b32 v4, 0')
    k('buffer_load_dword v26, v4, s[32:35], s41 offen')
    for i in range(7):
        k(f's_mov_b32 s40, {i * 16384}')
        k(f'buffer_load_dwordx4 v[{32+4*i}:{35+4*i}], v3, s[36:39], s40 offen')
    srd(k, 12, 4, 5, XBYTES, X1_OFF if layer == 1 else X3_OFF)
    srd(k, 24, 4, 5, 32768, ST_OFF + (layer - 1) * 32768)
    if layer == 1:
        srd(k, 44, 4, 5, XBYTES, X2_OFF)
    else:
        srd(k, 44, 70, 71, XBYTES)
    k('s_waitcnt vmcnt(7)')
    k('v_and_b32 v28, 0x7ff, v26')
    k('v_sub_u32 v28, 2047, v28')
    k('v_lshlrev_b32 v30, 4, v28')
    k('buffer_load_dwordx2 v[14:15], v30, s[24:27], 0 offen')
    k('v_lshlrev_b32 v31, 10, v28')
    k('v_lshl_add_u32 v31, v1, 3, v31')
    k('s_lshl_b32 s41, s69, 8')
    k('v_add_u32 v31, s41, v31')
    k('buffer_load_dwordx2 v[16:17], v31, s[12:15], 0 offen')
    k('s_waitcnt vmcnt(2)')
    for i in range(1, 7):
        for e in range(4):
            k(f'v_add_f32 v{32+e}, v{32+e}, v{32+4*i+e}')
    k('v_lshlrev_b32 v5, 4, v0')
    k('ds_write_b128 v5, v[32:35]')
    k('s_waitcnt lgkmcnt(0)')
    k('s_barrier')
    k('v_cmp_gt_u32 vcc, 32, v0')
    k('s_and_saveexec_b64 s[48:49], vcc')
    k(f's_cbranch_execz L_k5l{layer}_done')
    for g in range(8):
        k(f'ds_read_b128 v[{32+4*g}:{35+4*g}], v5 offset:{g*512}')
    k('s_waitcnt lgkmcnt(0)')
    for g in range(1, 8):
        for e in range(4):
            k(f'v_add_f32 v{32+e}, v{32+e}, v{32+4*g+e}')
    for e in range(0, 4, 2):
        k(f'v_cvt_pk_bf16_f32 v40, v{32+e}, v{33+e}')
        k(f'v_lshlrev_b32 v{32+e}, 16, v40')
        k(f'v_and_b32 v{33+e}, s72, v40')
    k('v_and_b32 v20, s72, v26')
    k('v_ashrrev_i32 v21, 31, v20')
    k('v_not_b32 v21, v21')
    k('v_or_b32 v21, 0x80000000, v21')
    k('v_xor_b32 v20, v20, v21')
    k('v_and_b32 v20, s72, v20')
    k('s_mov_b32 s40, 0xbfb8aa3b')
    k('v_mul_f32 v20, s40, v20')
    k('v_exp_f32 v20, v20')
    k('v_add_f32 v20, 1.0, v20')
    k('v_rcp_f32 v20, v20')
    k('v_cvt_pk_bf16_f32 v20, v20, v20')
    k('v_lshlrev_b32 v20, 16, v20')
    for e in range(4):
        k(f'v_mul_f32 v{32+e}, v{32+e}, v20')
    k('v_cvt_pk_bf16_f32 v44, v32, v33')
    k('v_cvt_pk_bf16_f32 v45, v34, v35')
    k('s_waitcnt vmcnt(0)')
    ln_scalars(k, 14, 15, 10, 11, 12, 13, 72, 73, 74)
    for d in range(2):
        normalize_dword(k, 16 + d, 10, 11, 12, 13, 72, 18)
        add_dwords(k, 18, 44 + d, 12, 13, 19, 22, 72, 18)
        add_dwords(k, 16 + d, 18, 12, 13, 19, 22, 72, 46 + d)
    k('buffer_store_dwordx2 v[46:47], v31, s[44:47], 0 offen')
    k.label(f'L_k5l{layer}_done')
    k('s_endpgm')
    return k, 4096


def build(path, extra_launch=0):
    hdr = open('interleave_layers__sliding_local_dilated__moe_arch_mod__prompt.s.ref').read().split('; Override')[0]
    ks = []
    launches = []
    for layer in (1, 2):
        for fn, grid, blk in ((k1, 256, 256), (k2, 256, 256), (k4, NFFN + NLN, 256), (k5, 32, 256)):
            kk, lds = fn(layer)
            ks.append(kk)
            launches.append(f'; @launch kernel={kk.name} grid=({grid},1,1) block=({blk},1,1) lds={lds}')
    if extra_launch:
        e = Kern('nop_kernel', nvgpr=8, accum_offset=8, nsgpr=16)
        e('s_endpgm')
        ks.append(e)
        for i in range(extra_launch):
            launches.append('; @launch kernel=nop_kernel grid=(256,1,1) block=(256,1,1) lds=0')
    out = hdr + '\n'.join(launches) + '\n.amdgcn_target "amdgcn-amd-amdhsa--gfx950"\n.text\n'
    for kk in ks:
        out += kk.text()
    out += '.section .rodata,"a"\n'
    for kk in ks:
        out += kk.desc()
    open(path, 'w').write(out)


if __name__ == '__main__':
    path = sys.argv[1] if len(sys.argv) > 1 else 'interleave_layers__sliding_local_dilated__moe_arch_mod__prompt.s'
    if len(sys.argv) > 3:
        DIAG = True
    build(path, int(sys.argv[2]) if len(sys.argv) > 2 else 0)
```

```python
import sys
sys.path.insert(0, 'gen')
from asmlib import Kern

MB = 1 << 20
O_OFF = 0
X1_OFF = 2 * MB
X2_OFF = 4 * MB
X3_OFF = 6 * MB
ST_OFF = 8 * MB
SM_OFF = 8 * MB + 65536
H_REL = 0
SEL_REL = 32768
SM_SIZE = 65536

XBYTES = 2048 * 512 * 2


def srd(k, d, lo, hi, size, add=0):
    if add:
        k(f's_add_u32 s{d}, s{lo}, {add}')
        k(f's_addc_u32 s{d+1}, s{hi}, 0')
        k(f's_and_b32 s{d+1}, s{d+1}, 0xffff')
    else:
        k(f's_mov_b32 s{d}, s{lo}')
        k(f's_and_b32 s{d+1}, s{hi}, 0xffff')
    k(f's_mov_b32 s{d+2}, {size}')
    k(f's_mov_b32 s{d+3}, 0x00020000')


DIAG = False
DBG_OFF = 16 * MB


class Stamps:
    def __init__(self, k, base=64):
        self.k = k
        self.n = 0
        self.base = base

    def __call__(self):
        if DIAG:
            b = self.base + 2 * self.n
            self.k(f's_memtime s[{b}:{b+1}]')
            self.n += 1

    def flush(self, ws_lo, ws_hi, slot, vt0, vt1, sd):
        if not DIAG:
            return
        k = self.k
        k('s_waitcnt lgkmcnt(0)')
        srd(k, sd, ws_lo, ws_hi, 1 << 20, DBG_OFF + slot * (1 << 18))
        k(f'v_mov_b32 v{vt0}, 0')
        for i in range(self.n):
            k(f'v_writelane_b32 v{vt0}, s{self.base + 2*i}, {i}')
        k(f'v_lshrrev_b32 v{vt1}, 6, v0')
        k(f's_lshl_b32 s{self.base}, s2, 3')
        k(f'v_add_u32 v{vt1}, s{self.base}, v{vt1}')
        k(f'v_lshlrev_b32 v{vt1}, 6, v{vt1}')
        k(f'v_and_b32 v{vt0+1 if False else vt1+1}, 63, v0')
        k(f'v_lshl_add_u32 v{vt1}, v{vt1+1}, 2, v{vt1}')
        k(f'v_cmp_gt_u32 vcc, 16, v{vt1+1}')
        k('s_and_b64 exec, exec, vcc')
        k(f'buffer_store_dword v{vt0}, v{vt1}, s[{sd}:{sd+3}], 0 offen')


def xrow_reduce(k, v, tmp):
    k(f'v_mov_b32 v{tmp}, v{v}')
    k(f'v_permlane16_swap_b32 v{v}, v{tmp}')
    k(f'v_add_f32 v{v}, v{v}, v{tmp}')
    k(f'v_mov_b32 v{tmp}, v{v}')
    k(f'v_permlane32_swap_b32 v{v}, v{tmp}')
    k(f'v_add_f32 v{v}, v{v}, v{tmp}')


def ln_scalars(k, s1, s2, m, rinv, t1, t2, s_mask, s_inv512, s_eps):
    k(f'v_mul_f32 v{t1}, s{s_inv512}, v{s1}')
    k(f'v_mul_f32 v{t2}, s{s_inv512}, v{s2}')
    k(f'v_fma_f32 v{t2}, -v{t1}, v{t1}, v{t2}')
    k(f'v_max_f32 v{t2}, 0, v{t2}')
    k(f'v_cvt_pk_bf16_f32 v{t1}, v{t1}, v{t2}')
    k(f'v_lshlrev_b32 v{m}, 16, v{t1}')
    k(f'v_and_b32 v{t2}, s{s_mask}, v{t1}')
    k(f'v_add_f32 v{t2}, s{s_eps}, v{t2}')
    k(f'v_cvt_pk_bf16_f32 v{t2}, v{t2}, v{t2}')
    k(f'v_lshlrev_b32 v{t2}, 16, v{t2}')
    k(f'v_sqrt_f32 v{t2}, v{t2}')
    k(f'v_cvt_pk_bf16_f32 v{t2}, v{t2}, v{t2}')
    k(f'v_lshlrev_b32 v{t2}, 16, v{t2}')
    k(f'v_rcp_f32 v{rinv}, v{t2}')


def k1(layer):
    k = Kern(f'k1l{layer}_kernel', nvgpr=200, accum_offset=200, nsgpr=100)
    st = Stamps(k)
    SLOT = 34816
    WOFF = 10240
    STAT = 0
    QKVA = 512
    ROWB = 112
    ACC = lambda sg, t: 16 + (sg * 5 + t) * 4
    CS = lambda sg: 76 + 4 * sg
    XFB = lambda b, t: 88 + b * 24 + t * 4
    WFB = lambda b, sg: 136 + b * 12 + sg * 4
    ONES = 160
    k('s_cmp_ge_u32 s2, 256')
    k(f's_cbranch_scc1 L_k1l{layer}_done')
    st()
    k(f's_load_dwordx2 s[4:5], s[0:1], {0 if layer == 1 else 80}')
    k('s_load_dwordx2 s[6:7], s[0:1], 8')
    k('s_load_dwordx2 s[8:9], s[0:1], 80')
    k('s_and_b32 s28, s2, 7')
    k('s_lshr_b32 s29, s2, 3')
    k('s_lshr_b32 s30, s28, 1')
    k('s_lshl_b32 s30, s30, 3')
    k('s_lshr_b32 s31, s29, 2')
    k('s_add_u32 s30, s30, s31')
    k('s_and_b32 s28, s28, 1')
    k('s_lshl_b32 s28, s28, 2')
    k('s_and_b32 s29, s29, 3')
    k('s_add_u32 s29, s28, s29')
    k('s_lshl_b32 s31, s30, 6')
    k('v_and_b32 v1, 63, v0')
    k('v_lshrrev_b32 v2, 6, v0')
    k('v_readfirstlane_b32 s30, v2')
    k('v_lshrrev_b32 v10, 3, v1')
    k('v_and_b32 v11, 7, v1')
    k('v_lshrrev_b32 v12, 4, v1')
    k('s_cmp_lt_u32 s30, 4')
    k(f's_cbranch_scc1 L_k1l{layer}_comp')
    k('s_sub_u32 s30, s30, 4')
    k('s_lshl_b32 s34, s30, 4')
    k('s_add_u32 s34, s34, s31')
    k('v_add_u32 v13, s34, v10')
    k('v_lshlrev_b32 v13, 10, v13')
    k('v_xor_b32 v14, v11, v12')
    k('v_lshl_add_u32 v2, v14, 4, v13')
    k('v_xor_b32 v14, 4, v14')
    k('v_lshl_add_u32 v3, v14, 4, v13')
    k('v_add_u32 v3, 8192, v3')
    k('s_lshl_b32 s34, s30, 2')
    k('s_add_u32 s34, s34, s31')
    k('s_sub_u32 s34, s34, 16')
    k('v_add_u32 v13, s34, v10')
    k('v_lshlrev_b32 v13, 10, v13')
    k('s_lshl_b32 s34, s30, 1')
    k('v_add_u32 v14, s34, v12')
    k('v_and_b32 v14, 7, v14')
    k('v_xor_b32 v14, v11, v14')
    k('v_lshl_add_u32 v4, v14, 4, v13')
    k('v_bfe_u32 v13, v10, 1, 1')
    k('s_and_b32 s34, s30, 1')
    k('s_lshl_b32 s34, s34, 1')
    k('v_or_b32 v13, s34, v13')
    k('v_lshrrev_b32 v14, 1, v11')
    k('v_xor_b32 v13, v13, v14')
    k('v_mul_u32_u24 v5, 3072, v10')
    k('v_lshl_add_u32 v5, v13, 5, v5')
    k('v_and_b32 v14, 1, v11')
    k('v_lshl_add_u32 v5, v14, 4, v5')
    k('s_lshl_b32 s34, s29, 7')
    k('v_add_u32 v5, s34, v5')
    k('s_mul_i32 s32, s30, 24576')
    k('s_lshl_b32 s33, s30, 10')
    k('s_lshl_b32 s35, s30, 11')
    k('s_add_u32 s35, s35, 2048')
    k('s_lshl_b32 s36, s30, 9')
    k('s_waitcnt lgkmcnt(0)')
    srd(k, 12, 4, 5, XBYTES, 0 if layer == 1 else X2_OFF)
    srd(k, 16, 6, 7, 512 * 1536 * 2)
    k('s_mov_b64 s[56:57], 0xffffffff')

    def issue_chunk(c):
        sb = (c % 4) * SLOT
        k(f's_mov_b32 s37, {c * 128}')
        k(f's_add_u32 m0, s35, {sb}')
        k('buffer_load_dwordx4 v2, s[12:15], s37 offen lds')
        k(f's_add_u32 m0, s35, {sb + 1024}')
        k('buffer_load_dwordx4 v3, s[12:15], s37 offen lds')
        k(f's_add_u32 m0, s36, {sb}')
        k('s_mov_b64 exec, s[56:57]')
        k('buffer_load_dwordx4 v4, s[12:15], s37 offen lds')
        k('s_mov_b64 exec, -1')
        for sg in range(3):
            for i in range(2):
                k(f's_add_u32 s34, s32, {(c * 64 + 32 * i) * 3072 + sg * 1024}')
                k(f's_add_u32 m0, s33, {sb + WOFF + sg * 8192 + i * 4096}')
                k('buffer_load_dwordx4 v5, s[16:19], s34 offen lds')

    issue_chunk(0)
    issue_chunk(1)
    if layer == 1:
        srd(k, 24, 8, 9, 65536, ST_OFF)
    for c in range(8):
        k(f's_waitcnt vmcnt({9 if c < 7 else 0})')
        k('s_barrier')
        if c + 2 <= 7:
            issue_chunk(c + 2)
    if layer == 1:
        k('s_load_dwordx2 s[60:61], s[0:1], 16')
        k('s_load_dwordx4 s[64:67], s[0:1], 40')
        k('s_load_dwordx2 s[62:63], s[0:1], 56')
        k('s_and_b32 s28, s2, 7')
        k('s_lshr_b32 s29, s2, 3')
        k('s_waitcnt lgkmcnt(0)')
        srd(k, 68, 64, 65, 512 * 1792 * 2)
        srd(k, 72, 66, 67, 512 * 1792 * 2)
        srd(k, 76, 62, 63, 1792 * 512 * 2)
        srd(k, 80, 60, 61, 512 * 512 * 2)
        k('v_lshrrev_b32 v20, 5, v1')
        k('v_mul_u32_u24 v20, 3584, v20')
        k('v_and_b32 v21, 31, v1')
        k('v_lshl_add_u32 v20, v21, 4, v20')
        k('s_mul_i32 s34, s28, 448')
        k('s_lshl_b32 s37, s29, 4')
        k('s_lshl_b32 s38, s30, 2')
        k('s_add_u32 s37, s37, s38')
        k('s_mul_i32 s37, s37, 3584')
        k('s_add_u32 s34, s34, s37')
        for i in range(2):
            k(f's_add_u32 s37, s34, {2 * i * 3584}')
            k(f'buffer_load_dwordx4 v[{24+8*i}:{27+8*i}], v20, s[68:71], s37 offen')
            k(f'buffer_load_dwordx4 v[{28+8*i}:{31+8*i}], v20, s[72:75], s37 offen')
        k('v_lshlrev_b32 v21, 4, v1')
        k('s_mul_i32 s34, s28, 224')
        k('s_mul_i32 s37, s29, 7')
        k('s_add_u32 s34, s34, s37')
        k('s_add_u32 s34, s34, s30')
        k('s_lshl_b32 s34, s34, 10')
        k('buffer_load_dwordx4 v[40:43], v21, s[76:79], s34 offen')
        k('s_add_u32 s34, s34, 4096')
        k('buffer_load_dwordx4 v[44:47], v21, s[76:79], s34 offen')
        k('s_lshl_b32 s34, s29, 4')
        k('s_add_u32 s34, s34, s38')
        k('s_lshl_b32 s34, s34, 10')
        for i in range(4):
            k(f'buffer_load_dwordx4 v[{48+4*i}:{51+4*i}], v21, s[80:83], s34 offen offset:{i*1024}')
        k('s_barrier')
        k('s_cmp_lg_u32 s30, 0')
        k(f's_cbranch_scc1 L_k1l{layer}_done')
        k('v_mov_b32 v100, 0')
        k('v_mov_b32 v101, 0')
        k('v_mov_b32 v102, 0')
        k('v_mov_b32 v103, 0')
        k('s_lshl_b32 s34, s2, 8')
        k('v_lshlrev_b32 v104, 4, v1')
        k('v_add_u32 v104, s34, v104')
        k('v_cmp_gt_u32 vcc, 16, v1')
        k('s_and_saveexec_b64 s[58:59], vcc')
        k('buffer_store_dwordx4 v[100:103], v104, s[24:27], 0 offen')
    k('s_endpgm')
    k.label(f'L_k1l{layer}_comp')
    k('s_lshl_b32 s35, s30, 11')
    k('s_add_u32 s35, s35, 2048')
    k('s_waitcnt lgkmcnt(0)')
    srd(k, 20, 8, 9, XBYTES, O_OFF)
    st()
    k('v_and_b32 v10, 15, v1')
    k('v_lshrrev_b32 v13, 1, v10')
    k('v_xor_b32 v13, v13, v12')
    k('v_lshlrev_b32 v6, 7, v10')
    k('v_lshl_add_u32 v6, v13, 4, v6')
    k('v_xor_b32 v7, 64, v6')
    k('v_add_u32 v8, s35, v6')
    k('v_add_u32 v9, s35, v7')
    k('v_bfe_u32 v13, v1, 2, 2')
    k('v_lshl_add_u32 v14, v12, 3, v13')
    k('v_lshlrev_b32 v164, 7, v14')
    k('v_lshrrev_b32 v13, 1, v13')
    k('v_and_b32 v14, 1, v12')
    k('v_lshl_or_b32 v13, v14, 1, v13')
    k('v_xor_b32 v13, s30, v13')
    k('v_lshl_add_u32 v164, v13, 5, v164')
    k('v_and_b32 v14, 3, v1')
    k('v_lshl_add_u32 v164, v14, 3, v164')
    k(f'v_add_u32 v164, {WOFF}, v164')
    for (d, sreg) in ((165, 6), (166, 7), (167, 8), (168, 9), (169, 164)):
        k(f'v_add_u32 v{d}, {2 * SLOT}, v{sreg}')
    for v in range(16, 88):
        k(f'v_mov_b32 v{v}, 0')
    for v in range(ONES, ONES + 4):
        k(f'v_mov_b32 v{v}, 0x3f803f80')
    for v in range(170, 174):
        k(f'v_mov_b32 v{v}, 0')

    def fread(s):
        c, q, b = s // 2, s & 1, s & 1
        slot = c % 4
        hi = slot >= 2
        so = (slot & 1) * SLOT
        xb = (166 if q else 165) if hi else (7 if q else 6)
        sbase = (168 if q else 167) if hi else (9 if q else 8)
        wb = 169 if hi else 164
        for sg in range(3):
            o = so + sg * 8192 + q * 4096
            k(f'ds_read_b64_tr_b16 v[{WFB(b,sg)}:{WFB(b,sg)+1}], v{wb} offset:{o}')
            k(f'ds_read_b64_tr_b16 v[{WFB(b,sg)+2}:{WFB(b,sg)+3}], v{wb} offset:{o+512}')
        for t in range(4):
            k(f'ds_read_b128 v[{XFB(b,t)}:{XFB(b,t)+3}], v{xb} offset:{so + 2048 + t * 2048}')
        k(f'ds_read_b128 v[{XFB(b,4)}:{XFB(b,4)+3}], v{xb} offset:{so}')
        k(f'ds_read_b128 v[{XFB(b,5)}:{XFB(b,5)+3}], v{sbase} offset:{so}')

    k('s_barrier')
    st()
    fread(0)
    for s in range(16):
        c, q, b = s // 2, s & 1, s & 1
        if q == 1 and c < 7:
            if c in (1, 3, 5): st()
            k('s_barrier')
            if c in (1, 3, 5): st()
        k('s_waitcnt lgkmcnt(0)')
        if s < 15:
            fread(s + 1)
        n = 0
        dots = []
        for d in range(4):
            dots.append(f'v_dot2c_f32_bf16 v170, v{XFB(b,5)+d}, v{ONES}')
            dots.append(f'v_dot2c_f32_bf16 v171, v{XFB(b,5)+d}, v{XFB(b,5)+d}')
            dots.append(f'v_dot2c_f32_bf16 v172, v{XFB(b,4)+d}, v{ONES}')
            dots.append(f'v_dot2c_f32_bf16 v173, v{XFB(b,4)+d}, v{XFB(b,4)+d}')
        for sg in range(3):
            w = WFB(b, sg)
            for t in range(5):
                if sg == 0 and t == 4:
                    continue
                a = ACC(sg, t)
                k(f'v_mfma_f32_16x16x32_bf16 v[{a}:{a+3}], v[{w}:{w+3}], v[{XFB(b,t)}:{XFB(b,t)+3}], v[{a}:{a+3}]')
            a = CS(sg)
            k(f'v_mfma_f32_16x16x32_bf16 v[{a}:{a+3}], v[{w}:{w+3}], v[{ONES}:{ONES+3}], v[{a}:{a+3}]')
        while dots:
            k(dots.pop(0))
    st()
    k('s_mov_b32 s52, 0xffff0000')
    k('s_mov_b32 s53, 0x3b000000')
    k('s_mov_b32 s54, 0x3727c5ac')
    for v in range(170, 174):
        xrow_reduce(k, v, 174 + (v - 170))
    ln_scalars(k, 170, 171, 88, 89, 178, 179, 52, 53, 54)
    ln_scalars(k, 172, 173, 98, 99, 180, 181, 52, 53, 54)
    k('s_lshl_b32 s34, s30, 7')
    k('v_lshlrev_b32 v13, 3, v10')
    k('v_add_u32 v14, s34, v13')
    k(f'ds_write_b64 v14, v[88:89] offset:{STAT}')
    k('s_waitcnt lgkmcnt(0)')
    k('s_barrier')
    for t in range(4):
        k(f'ds_read_b64 v[{90+2*t}:{91+2*t}], v13 offset:{STAT + t * 128}')
    k(f'v_mul_u32_u24 v14, {ROWB}, v10')
    k('v_lshl_add_u32 v14, v12, 3, v14')
    k('s_mul_i32 s34, s30, 8960')
    k('v_add_u32 v14, s34, v14')
    k('s_waitcnt lgkmcnt(0)')
    for sg in range(3):
        for t in range(5):
            if sg == 0 and t == 4:
                continue
            a = ACC(sg, t)
            m, ri = (90 + 2 * t, 91 + 2 * t)
            for r in range(4):
                k(f'v_fma_f32 v{a+r}, -v{m}, v{CS(sg)+r}, v{a+r}')
            for r in range(4):
                k(f'v_mul_f32 v{a+r}, v{a+r}, v{ri}')
            k(f'v_cvt_pk_bf16_f32 v{a}, v{a}, v{a+1}')
            k(f'v_cvt_pk_bf16_f32 v{a+1}, v{a+2}, v{a+3}')
            rowoff = 0 if t == 4 else (16 + 16 * t) * ROWB
            k(f'ds_write_b64 v14, v[{a}:{a+1}] offset:{QKVA + rowoff + sg * 32}')
    st()
    k('v_add_u32 v3, s31, v1')
    k('v_add_u32 v4, 2, v1')
    k(f'v_mul_u32_u24 v4, {ROWB}, v4')
    k('v_add_u32 v4, s34, v4')
    Q = 16
    KK = lambda w: 24 + 8 * w
    VV = lambda w: 88 + 8 * w
    k('s_waitcnt lgkmcnt(0)')
    k(f'ds_read_b128 v[{Q}:{Q+3}], v4 offset:{QKVA + 14*ROWB}')
    k(f'ds_read_b128 v[{Q+4}:{Q+7}], v4 offset:{QKVA + 14*ROWB + 16}')
    for w in range(8):
        o = QKVA + (14 - 2 * w) * ROWB + 32
        if w == 6:
            k('s_waitcnt lgkmcnt(8)')
        k(f'ds_read_b128 v[{KK(w)}:{KK(w)+3}], v4 offset:{o}')
        k(f'ds_read_b128 v[{KK(w)+4}:{KK(w)+7}], v4 offset:{o+16}')
    k('s_waitcnt lgkmcnt(0)')
    for w in range(7):
        o = QKVA + (14 - 2 * w) * ROWB + 64
        k(f'ds_read_b128 v[{VV(w)}:{VV(w)+3}], v4 offset:{o}')
        k(f'ds_read_b128 v[{VV(w)+4}:{VV(w)+7}], v4 offset:{o+16}')
    L = 152
    for j in range(8):
        for w in range(8):
            src2 = '0' if j == 0 else f'v{L+w}'
            k(f'v_dot2_f32_bf16 v{L+w}, v{Q+j}, v{KK(w)+j}, {src2}')
    k('s_waitcnt lgkmcnt(8)')
    o = QKVA + 64
    k(f'ds_read_b128 v[{VV(7)}:{VV(7)+3}], v4 offset:{o}')
    k(f'ds_read_b128 v[{VV(7)+4}:{VV(7)+7}], v4 offset:{o+16}')
    P = 160
    for w in range(0, 8, 2):
        k(f'v_cvt_pk_bf16_f32 v{P+w//2}, v{L+w}, v{L+w+1}')
    for w in range(0, 8, 2):
        k(f'v_lshlrev_b32 v{L+w}, 16, v{P+w//2}')
        k(f'v_and_b32 v{L+w+1}, s52, v{P+w//2}')
    k('v_mov_b32 v164, 0xcf6e6b28')
    for w in range(1, 8):
        k(f'v_cmp_le_u32 vcc, {2*w}, v3')
        k(f'v_cndmask_b32 v{L+w}, v164, v{L+w}, vcc')
    k(f'v_max3_f32 v165, v{L}, v{L+1}, v{L+2}')
    k(f'v_max3_f32 v166, v{L+3}, v{L+4}, v{L+5}')
    k(f'v_max3_f32 v165, v165, v{L+6}, v{L+7}')
    k('v_max_f32 v165, v165, v166')
    k('s_mov_b32 s34, 0x3eb8aa3b')
    for w in range(8):
        k(f'v_sub_f32 v{L+w}, v{L+w}, v165')
    for w in range(8):
        k(f'v_mul_f32 v{L+w}, s34, v{L+w}')
    for w in range(8):
        k(f'v_exp_f32 v{L+w}, v{L+w}')
    k(f'v_add_f32 v165, v{L}, v{L+1}')
    k(f'v_add_f32 v166, v{L+2}, v{L+3}')
    k(f'v_add_f32 v167, v{L+4}, v{L+5}')
    k(f'v_add_f32 v168, v{L+6}, v{L+7}')
    k('v_add_f32 v165, v165, v166')
    k('v_add_f32 v167, v167, v168')
    k('v_add_f32 v165, v165, v167')
    k('v_rcp_f32 v165, v165')
    for w in range(8):
        k(f'v_mul_f32 v{L+w}, v{L+w}, v165')
    for w in range(0, 8, 2):
        k(f'v_cvt_pk_bf16_f32 v{P+w//2}, v{L+w}, v{L+w+1}')
    k('s_mov_b32 s36, 0x05040100')
    k('s_mov_b32 s37, 0x07060302')
    k('s_waitcnt lgkmcnt(0)')
    OO = 24
    for wp in range(4):
        a, b = 2 * wp, 2 * wp + 1
        for j in range(8):
            k(f'v_perm_b32 v{40+2*j}, v{VV(b)+j}, v{VV(a)+j}, s36')
            k(f'v_perm_b32 v{41+2*j}, v{VV(b)+j}, v{VV(a)+j}, s37')
        for j in range(16):
            src2 = '0' if wp == 0 else f'v{OO+j}'
            k(f'v_dot2_f32_bf16 v{OO+j}, v{40+j}, v{P+wp}, {src2}')
    for j in range(8):
        k(f'v_cvt_pk_bf16_f32 v{56+j}, v{OO+2*j}, v{OO+2*j+1}')
    k('v_lshlrev_b32 v5, 10, v3')
    k('s_lshl_b32 s34, s29, 7')
    k('s_lshl_b32 s36, s30, 5')
    k('s_add_u32 s34, s34, s36')
    k('v_add_u32 v5, s34, v5')
    k('buffer_store_dwordx4 v[56:59], v5, s[20:23], 0 offen')
    k('buffer_store_dwordx4 v[60:63], v5, s[20:23], 0 offen offset:16')
    st()
    k('s_waitcnt vmcnt(0)' if DIAG else '')
    st()
    st.flush(8, 9, layer - 1, 6, 7, 60)
    k.label(f'L_k1l{layer}_done')
    k('s_endpgm')
    return k, 4 * SLOT


def k2(layer):
    k = Kern(f'k2l{layer}_kernel', nvgpr=128, accum_offset=128, nsgpr=100)
    st = Stamps(k)
    CH = 16384
    ACC = lambda j: 12 + 4 * j
    RES = lambda j: 44 + 2 * j
    WR = lambda j: 52 + 2 * j
    WF = lambda b, j: 64 + b * 20 + 4 * j
    OF = lambda b: 64 + b * 20 + 16
    k('s_cmp_ge_u32 s2, 256')
    k(f's_cbranch_scc1 L_k2l{layer}_done')
    st()
    k(f's_load_dwordx2 s[4:5], s[0:1], {0 if layer == 1 else 80}')
    k('s_load_dwordx2 s[6:7], s[0:1], 16')
    k('s_load_dwordx2 s[8:9], s[0:1], 80')
    k('s_load_dwordx2 s[10:11], s[0:1], 32')
    k('s_and_b32 s36, s2, 7')
    k('s_lshr_b32 s37, s2, 3')
    k('s_lshl_b32 s36, s36, 2')
    k('s_lshr_b32 s38, s37, 3')
    k('s_add_u32 s36, s36, s38')
    k('s_and_b32 s37, s37, 7')
    k('s_lshl_b32 s36, s36, 6')
    k('s_lshl_b32 s41, s37, 7')
    k('v_and_b32 v1, 63, v0')
    k('v_lshrrev_b32 v2, 6, v0')
    k('v_readfirstlane_b32 s39, v2')
    k('v_lshrrev_b32 v10, 3, v1')
    k('v_and_b32 v11, 7, v1')
    k('v_lshrrev_b32 v61, 4, v1')
    k('s_lshl_b32 s40, s39, 4')
    k('s_add_u32 s40, s40, s36')
    k('s_cmp_lt_u32 s39, 4')
    k(f's_cbranch_scc1 L_k2l{layer}_comp')
    k('s_sub_u32 s39, s39, 4')
    k('s_sub_u32 s40, s40, 64')
    k('v_add_u32 v4, s40, v10')
    k('v_lshlrev_b32 v4, 10, v4')
    k('v_xor_b32 v5, v11, v61')
    k('v_lshl_add_u32 v2, v5, 4, v4')
    k('v_xor_b32 v5, 4, v5')
    k('v_lshl_add_u32 v3, v5, 4, v4')
    k('v_add_u32 v3, 8192, v3')
    k('v_bfe_u32 v4, v10, 1, 1')
    k('s_and_b32 s42, s39, 1')
    k('s_lshl_b32 s42, s42, 1')
    k('v_or_b32 v4, s42, v4')
    k('v_lshrrev_b32 v5, 1, v11')
    k('v_xor_b32 v4, v4, v5')
    k('v_lshlrev_b32 v6, 10, v10')
    k('v_lshl_add_u32 v6, v4, 5, v6')
    k('v_and_b32 v5, 1, v11')
    k('v_lshl_add_u32 v6, v5, 4, v6')
    k('v_add_u32 v6, s41, v6')
    k('s_lshl_b32 s43, s39, 13')
    k('s_lshl_b32 s44, s39, 10')
    k('s_lshl_b32 s45, s39, 11')
    k('s_waitcnt lgkmcnt(0)')
    srd(k, 12, 8, 9, XBYTES, O_OFF)
    srd(k, 16, 6, 7, 512 * 512 * 2)

    def issue2(c):
        k(f's_mov_b32 s46, {c * 128}')
        k(f's_add_u32 m0, s45, {c * CH}')
        k('buffer_load_dwordx4 v2, s[12:15], s46 offen lds')
        k(f's_add_u32 m0, s45, {c * CH + 1024}')
        k('buffer_load_dwordx4 v3, s[12:15], s46 offen lds')
        for i in range(2):
            k(f's_add_u32 s47, s43, {(c * 64 + 32 * i) * 1024}')
            k(f's_add_u32 m0, s44, {c * CH + 8192 + i * 4096}')
            k('buffer_load_dwordx4 v6, s[16:19], s47 offen lds')
    LA = 3
    for c in range(LA):
        issue2(c)
    issued = LA
    for c in range(8):
        k(f's_waitcnt vmcnt({(issued - (c + 1)) * 4})')
        k('s_barrier')
        if issued < 8:
            issue2(issued)
            issued += 1
    k('s_endpgm')
    k.label(f'L_k2l{layer}_comp')
    k('s_lshl_b32 s45, s39, 11')
    k('s_waitcnt lgkmcnt(0)')
    st()
    srd(k, 20, 4, 5, XBYTES, 0 if layer == 1 else X2_OFF)
    srd(k, 24, 8, 9, XBYTES, X1_OFF if layer == 1 else X3_OFF)
    srd(k, 28, 8, 9, 32768, ST_OFF + (layer - 1) * 32768)
    srd(k, 32, 10, 11, 1024)
    k('v_and_b32 v60, 15, v1')
    k('v_add_u32 v62, s40, v60')
    k('v_lshlrev_b32 v9, 10, v62')
    k('v_lshl_add_u32 v9, v61, 3, v9')
    k('v_add_u32 v9, s41, v9')
    k('v_lshlrev_b32 v10, 3, v61')
    k('v_add_u32 v10, s41, v10')
    for j in range(4):
        k(f'buffer_load_dwordx2 v[{RES(j)}:{RES(j)+1}], v9, s[20:23], 0 offen offset:{j*32}')
    for j in range(4):
        k(f'buffer_load_dwordx2 v[{WR(j)}:{WR(j)+1}], v10, s[32:35], 0 offen offset:{j*32}')
    k('v_lshrrev_b32 v4, 1, v60')
    k('v_xor_b32 v4, v4, v61')
    k('v_lshlrev_b32 v2, 7, v60')
    k('v_lshl_add_u32 v2, v4, 4, v2')
    k('v_add_u32 v2, s45, v2')
    k('v_xor_b32 v3, 64, v2')
    k('v_bfe_u32 v8, v1, 2, 2')
    k('v_lshl_add_u32 v11, v61, 3, v8')
    k('v_lshlrev_b32 v11, 7, v11')
    k('v_and_b32 v5, 3, v1')
    k('v_lshl_add_u32 v11, v5, 3, v11')
    k('v_add_u32 v11, 8192, v11')
    k('v_lshrrev_b32 v8, 1, v8')
    k('v_and_b32 v5, 1, v61')
    k('v_lshl_or_b32 v8, v5, 1, v8')
    for j in range(4):
        k(f'v_xor_b32 v{4+j}, {j}, v8')
        k(f'v_lshl_add_u32 v{4+j}, v{4+j}, 5, v11')
    for i in range(6):
        k(f'v_add_u32 v{28+i}, 65536, v{2+i}')
    for v in range(12, 28):
        k(f'v_mov_b32 v{v}, 0')

    def fread(s):
        c, q, b = s // 2, s & 1, s & 1
        hi = c >= 4
        co = (c & 3) * CH
        base = 28 if hi else 2
        for j in range(4):
            k(f'ds_read_b64_tr_b16 v[{WF(b,j)}:{WF(b,j)+1}], v{base+2+j} offset:{co + q*4096}')
            k(f'ds_read_b64_tr_b16 v[{WF(b,j)+2}:{WF(b,j)+3}], v{base+2+j} offset:{co + q*4096 + 512}')
        k(f'ds_read_b128 v[{OF(b)}:{OF(b)+3}], v{base+q} offset:{co}')

    k('s_barrier')
    st()
    fread(0)
    for s in range(16):
        c, q, b = s // 2, s & 1, s & 1
        if q == 1 and c < 7:
            k('s_barrier')
        k('s_waitcnt lgkmcnt(0)')
        if s < 15:
            fread(s + 1)
        for j in range(4):
            k(f'v_mfma_f32_16x16x32_bf16 v[{ACC(j)}:{ACC(j)+3}], v[{WF(b,j)}:{WF(b,j)+3}], v[{OF(b)}:{OF(b)+3}], v[{ACC(j)}:{ACC(j)+3}]')
    st()
    k('s_mov_b32 s46, 0xffff0000')
    k('v_mov_b32 v63, 0x3f803f80')
    k('v_mov_b32 v108, 0')
    k('v_mov_b32 v109, 0')
    k('v_mov_b32 v110, 0')
    k('s_waitcnt vmcnt(0)')
    for j in range(4):
        for h in range(2):
            a = ACC(j) + 2 * h
            o = 112 + 2 * j + h
            k(f'v_cvt_pk_bf16_f32 v120, v{a}, v{a+1}')
            k('v_lshlrev_b32 v121, 16, v120')
            k('v_and_b32 v122, s46, v120')
            k(f'v_lshlrev_b32 v123, 16, v{RES(j)+h}')
            k(f'v_and_b32 v124, s46, v{RES(j)+h}')
            k('v_add_f32 v121, v121, v123')
            k('v_add_f32 v122, v122, v124')
            k(f'v_cvt_pk_bf16_f32 v{o}, v121, v122')
            k(f'v_dot2c_f32_bf16 v108, v{o}, v63')
            k(f'v_dot2c_f32_bf16 v109, v{o}, v{o}')
            k(f'v_dot2c_f32_bf16 v110, v{o}, v{WR(j)+h}')
        k(f'buffer_store_dwordx2 v[{112+2*j}:{113+2*j}], v9, s[24:27], 0 offen offset:{j*32}')
    for v in range(108, 111):
        xrow_reduce(k, v, 125 + v - 108)
    k('v_mov_b32 v111, 0')
    k('v_cmp_eq_u32 vcc, 1, v61')
    k('v_cndmask_b32 v108, v108, v109, vcc')
    k('v_cmp_eq_u32 vcc, 2, v61')
    k('v_cndmask_b32 v108, v108, v110, vcc')
    k('v_cmp_eq_u32 vcc, 3, v61')
    k('v_cndmask_b32 v108, v108, v111, vcc')
    k('v_lshlrev_b32 v120, 4, v62')
    k('v_lshl_add_u32 v120, v61, 2, v120')
    k('buffer_atomic_add_f32 v108, v120, s[28:31], 0 offen')
    st()
    k('s_waitcnt vmcnt(0)' if DIAG else '')
    st()
    st.flush(8, 9, 2 + layer - 1, 6, 7, 60)
    k.label(f'L_k2l{layer}_done')
    k('s_endpgm')
    return k, 131072


def normalize_dword(k, x, m, rinv, t0, t1, s_mask, out):
    k(f'v_lshlrev_b32 v{t0}, 16, v{x}')
    k(f'v_and_b32 v{t1}, s{s_mask}, v{x}')
    k(f'v_sub_f32 v{t0}, v{t0}, v{m}')
    k(f'v_sub_f32 v{t1}, v{t1}, v{m}')
    k(f'v_cvt_pk_bf16_f32 v{t0}, v{t0}, v{t1}')
    k(f'v_and_b32 v{t1}, s{s_mask}, v{t0}')
    k(f'v_lshlrev_b32 v{t0}, 16, v{t0}')
    k(f'v_mul_f32 v{t0}, v{t0}, v{rinv}')
    k(f'v_mul_f32 v{t1}, v{t1}, v{rinv}')
    k(f'v_cvt_pk_bf16_f32 v{out}, v{t0}, v{t1}')


def add_dwords(k, a, b, t0, t1, t2, t3, s_mask, out):
    k(f'v_lshlrev_b32 v{t0}, 16, v{a}')
    k(f'v_and_b32 v{t1}, s{s_mask}, v{a}')
    k(f'v_lshlrev_b32 v{t2}, 16, v{b}')
    k(f'v_and_b32 v{t3}, s{s_mask}, v{b}')
    k(f'v_add_f32 v{t0}, v{t0}, v{t2}')
    k(f'v_add_f32 v{t1}, v{t1}, v{t3}')
    k(f'v_cvt_pk_bf16_f32 v{out}, v{t0}, v{t1}')


def dpp_max_reduce(k, src, t):
    k(f'v_max_u32_dpp v{t}, v{src}, v{src} quad_perm:[1,0,3,2] row_mask:0xf bank_mask:0xf')
    k(f'v_max_u32_dpp v{t}, v{t}, v{t} quad_perm:[2,3,0,1] row_mask:0xf bank_mask:0xf')
    k(f'v_max_u32_dpp v{t}, v{t}, v{t} row_half_mirror row_mask:0xf bank_mask:0xf')
    k(f'v_max_u32_dpp v{t}, v{t}, v{t} row_mirror row_mask:0xf bank_mask:0xf')
    k(f'v_max_u32_dpp v{t}, v{t}, v{t} row_bcast:15 row_mask:0xa bank_mask:0xf')
    k(f'v_max_u32_dpp v{t}, v{t}, v{t} row_bcast:31 row_mask:0xc bank_mask:0xf')


NFFN = 56
NLN = 128
PART_OFF = 9 * MB


def k4(layer):
    k = Kern(f'k4l{layer}_kernel', nvgpr=128, accum_offset=128, nsgpr=100)
    st = Stamps(k, base=80)
    GOFF, UOFF, DOFF, RED = 0, 32768, 65536, 98304
    CAND = RED + 16384
    HB = CAND + 128
    CNT = HB + 1024
    k(f's_cmp_ge_u32 s2, {NFFN + NLN}')
    k(f's_cbranch_scc1 L_k4l{layer}_done')
    st()
    k('s_load_dwordx2 s[4:5], s[0:1], 80')
    k('s_load_dwordx2 s[6:7], s[0:1], 40')
    k('s_load_dwordx2 s[8:9], s[0:1], 48')
    k('s_load_dwordx2 s[10:11], s[0:1], 32')
    k('s_load_dwordx2 s[70:71], s[0:1], 64')
    k('s_load_dwordx2 s[66:67], s[0:1], 56')
    k('v_and_b32 v1, 63, v0')
    k('v_lshrrev_b32 v2, 6, v0')
    k('v_readfirstlane_b32 s68, v2')
    k('s_mov_b32 s72, 0xffff0000')
    k('s_mov_b32 s73, 0x3b000000')
    k('s_mov_b32 s74, 0x3727c5ac')
    k('v_lshlrev_b32 v3, 4, v0')
    k('s_waitcnt lgkmcnt(0)')
    srd(k, 12, 4, 5, XBYTES, X1_OFF if layer == 1 else X3_OFF)
    srd(k, 24, 4, 5, 32768, ST_OFF + (layer - 1) * 32768)
    k(f's_cmp_ge_u32 s2, {NFFN}')
    k(f's_cbranch_scc1 L_k4l{layer}_ln')
    k('s_and_b32 s69, s2, 7')
    k('s_mul_i32 s69, s69, 7')
    k('s_lshr_b32 s75, s2, 3')
    k('s_add_u32 s69, s69, s75')
    k('s_cmp_lt_u32 s68, 4')
    k(f's_cbranch_scc1 L_k4l{layer}_comp')
    k('s_sub_u32 s68, s68, 4')
    srd(k, 16, 6, 7, 512 * 1792 * 2)
    srd(k, 20, 8, 9, 512 * 1792 * 2)
    srd(k, 44, 66, 67, 1792 * 512 * 2)
    k('s_barrier')
    k('v_lshrrev_b32 v5, 2, v1')
    k('v_mul_u32_u24 v6, 3584, v5')
    k('v_lshrrev_b32 v7, 5, v1')
    k('v_lshlrev_b32 v7, 1, v7')
    k('v_and_b32 v8, 3, v1')
    k('v_xor_b32 v7, v7, v8')
    k('v_lshl_add_u32 v6, v7, 4, v6')
    k('s_lshl_b32 s75, s69, 6')
    k('v_add_u32 v6, s75, v6')
    k('s_mul_i32 s76, s68, 458752')
    k('s_lshl_b32 s77, s68, 13')
    for mat in range(2):
        for i in range(8):
            k(f's_add_u32 s40, s76, {16 * i * 3584}')
            k(f's_add_u32 m0, s77, {mat * 32768 + i * 1024}')
            k(f'buffer_load_dwordx4 v6, s[{16+4*mat}:{19+4*mat}], s40 offen lds')
    k('v_lshrrev_b32 v7, 1, v1')
    k('v_and_b32 v8, 1, v1')
    k('s_lshl_b32 s78, s69, 15')
    k('s_lshl_b32 s79, s68, 13')
    k('s_add_u32 s78, s78, s79')
    for i in range(8):
        k('s_and_b32 s40, s68, 1')
        k('s_lshl_b32 s40, s40, 2')
        k(f's_or_b32 s40, s40, {i & 3}')
        k('v_xor_b32 v9, s40, v7')
        k('v_lshlrev_b32 v9, 5, v9')
        k('v_lshl_add_u32 v9, v8, 4, v9')
        k(f's_add_u32 s41, s78, {i * 1024}')
        k(f's_add_u32 m0, s79, {DOFF + i * 1024}')
        k('buffer_load_dwordx4 v9, s[44:47], s41 offen lds')
    k('s_waitcnt vmcnt(0)')
    k('s_barrier')
    k('s_endpgm')
    k.label(f'L_k4l{layer}_comp')
    for i in range(8):
        k(f's_mov_b32 s40, {4096 * i}')
        k(f'buffer_load_dwordx4 v[{32+4*i}:{35+4*i}], v3, s[24:27], s40 offen')
    srd(k, 28, 10, 11, 1024)
    k('v_lshlrev_b32 v4, 4, v1')
    k('buffer_load_dwordx4 v[64:67], v4, s[28:31], 0 offen')
    srd(k, 32, 4, 5, SM_SIZE, SM_OFF)
    k('s_lshl_b32 s77, s68, 13')
    k(f'v_mov_b32 v5, {CNT}')
    k('v_mov_b32 v6, 0')
    k('ds_write_b32 v5, v6')
    k('s_waitcnt lgkmcnt(0)')
    k('s_barrier')
    st()
    k('v_mov_b32 v8, 0x3f803f80')
    k('v_mov_b32 v9, 0')
    k('s_waitcnt vmcnt(0)')
    st()
    for d in range(4):
        k(f'v_dot2c_f32_bf16 v9, v{64+d}, v8')
    k('v_add_f32_dpp v9, v9, v9 quad_perm:[1,0,3,2] row_mask:0xf bank_mask:0xf')
    k('v_add_f32_dpp v9, v9, v9 quad_perm:[2,3,0,1] row_mask:0xf bank_mask:0xf')
    k('v_add_f32_dpp v9, v9, v9 row_half_mirror row_mask:0xf bank_mask:0xf')
    k('v_add_f32_dpp v9, v9, v9 row_mirror row_mask:0xf bank_mask:0xf')
    xrow_reduce(k, 9, 10)
    for i in range(8):
        b = 32 + 4 * i
        ln_scalars(k, b, b + 1, 10, 11, 12, 13, 72, 73, 74)
        k(f'v_fma_f32 v12, -v10, v9, v{b+2}')
        k('v_mul_f32 v12, v12, v11')
        k('v_cvt_pk_bf16_f32 v12, v12, v12')
        k('v_lshlrev_b32 v12, 16, v12')
        k('v_ashrrev_i32 v13, 31, v12')
        k('v_or_b32 v13, 0x80000000, v13')
        k('v_xor_b32 v12, v12, v13')
        k(f'v_sub_u32 v13, {2047 - 256 * i}, v0')
        k(f'v_and_or_b32 v{16+i}, v12, s72, v13')
    regs = list(range(16, 24))
    spare = 24
    net = [(0, 1), (2, 3), (4, 5), (6, 7), (0, 2), (1, 3), (4, 6), (5, 7), (1, 2), (5, 6), (0, 4), (3, 7),
           (1, 5), (2, 6), (1, 4), (3, 6), (2, 4), (3, 5), (3, 4)]
    for (a, b) in net:
        k(f'v_max_u32 v{spare}, v{regs[a]}, v{regs[b]}')
        k(f'v_min_u32 v{regs[b]}, v{regs[a]}, v{regs[b]}')
        regs[a], spare = spare, regs[a]
    k('v_mov_b32 v26, 0')
    st()
    for n in range(8):
        dpp_max_reduce(k, regs[0], 25)
        k(f'v_readlane_b32 s{50+n}, v25, 63')
        k(f'v_writelane_b32 v26, s{50+n}, {n}')
        if n < 7:
            k(f'v_cmp_eq_u32 vcc, s{50+n}, v{regs[0]}')
            for i in range(7 - n):
                k(f'v_cndmask_b32 v{regs[i]}, v{regs[i]}, v{regs[i+1]}, vcc')
    k('s_lshl_b32 s40, s68, 5')
    k('v_lshlrev_b32 v27, 2, v1')
    k('v_add_u32 v27, s40, v27')
    k(f'v_add_u32 v27, {RED}, v27')
    k('v_cmp_gt_u32 vcc, 8, v1')
    k('s_and_saveexec_b64 s[48:49], vcc')
    k(f'ds_write_b32 v27, v26 offset:{CAND - RED}')
    k('s_mov_b64 exec, 1')
    k('v_mov_b32 v6, 1')
    k('ds_add_u32 v5, v6')
    k('s_mov_b64 exec, s[48:49]')
    k.label(f'L_k4l{layer}_poll')
    k('ds_read_b32 v6, v5')
    k('s_waitcnt lgkmcnt(0)')
    k('v_readfirstlane_b32 s40, v6')
    k('s_cmp_lt_u32 s40, 4')
    k(f's_cbranch_scc1 L_k4l{layer}_poll')
    k('v_and_b32 v27, 31, v1')
    k('v_lshlrev_b32 v27, 2, v27')
    k(f'v_add_u32 v27, {RED}, v27')
    k(f'ds_read_b32 v28, v27 offset:{CAND - RED}')
    k('v_mov_b32 v26, 0')
    k('s_waitcnt lgkmcnt(0)')
    st()
    for n in range(8):
        dpp_max_reduce(k, 28, 25)
        k(f'v_readlane_b32 s{58+n}, v25, 63')
        k(f'v_writelane_b32 v26, s{58+n}, {n}')
        if n < 7:
            k(f'v_cmp_eq_u32 vcc, s{58+n}, v28')
            k('v_cndmask_b32 v28, v28, 0, vcc')
    st()
    k('v_and_b32 v27, 7, v1')
    k('v_lshlrev_b32 v27, 2, v27')
    k('ds_bpermute_b32 v28, v27, v26')
    k('v_lshrrev_b32 v61, 4, v1')
    k('s_or_b32 s40, s2, s68')
    k('s_cmp_lg_u32 s40, 0')
    k(f's_cbranch_scc1 L_k4l{layer}_nokeys')
    k('v_lshlrev_b32 v27, 2, v1')
    k('v_cmp_gt_u32 vcc, 8, v1')
    k('s_and_saveexec_b64 s[48:49], vcc')
    k(f's_mov_b32 s40, {SEL_REL}')
    k('buffer_store_dword v26, v27, s[32:35], s40 offen')
    k('s_mov_b64 exec, s[48:49]')
    k.label(f'L_k4l{layer}_nokeys')
    k('s_waitcnt lgkmcnt(0)')
    k('v_and_b32 v28, 0x7ff, v28')
    k('v_sub_u32 v28, 2047, v28')
    k('v_lshlrev_b32 v29, 10, v28')
    k('v_lshl_add_u32 v29, v61, 4, v29')
    k('s_lshl_b32 s40, s68, 8')
    k('v_lshlrev_b32 v30, 4, v28')
    k('buffer_load_dwordx2 v[14:15], v30, s[24:27], 0 offen')
    for s in range(4):
        k(f'buffer_load_dwordx4 v[{32+4*s}:{35+4*s}], v29, s[12:15], s40 offen offset:{s*64}')
    k('v_bfe_u32 v62, v1, 2, 2')
    k('v_lshl_add_u32 v62, v61, 3, v62')
    k('v_lshlrev_b32 v62, 6, v62')
    k('v_and_b32 v63, 1, v61')
    k('v_lshl_add_u32 v62, v63, 5, v62')
    k('v_and_b32 v63, 3, v1')
    k('v_lshl_add_u32 v62, v63, 3, v62')
    k('v_add_u32 v62, s77, v62')
    k('v_xor_b32 v63, 32, v62')
    k('s_barrier')
    st()
    FR = lambda mat, tl, s: 64 + ((mat * 2 + tl) * 4 + s) * 4
    cnt = 0
    for s in range(4):
        for mat in range(2):
            for tl in range(2):
                b = FR(mat, tl, s)
                if cnt >= 12:
                    k('s_waitcnt lgkmcnt(10)')
                k(f'ds_read_b64_tr_b16 v[{b}:{b+1}], v{62+tl} offset:{mat*32768 + s*2048}')
                k(f'ds_read_b64_tr_b16 v[{b+2}:{b+3}], v{62+tl} offset:{mat*32768 + s*2048 + 256}')
                cnt += 2
    k('s_waitcnt vmcnt(4)')
    ln_scalars(k, 14, 15, 10, 11, 12, 13, 72, 73, 74)
    k('s_waitcnt vmcnt(0)')
    for d in range(16):
        normalize_dword(k, 32 + d, 10, 11, 12, 13, 72, 32 + d)
    for v in range(48, 64):
        if v not in (61,):
            pass
    AC = lambda mat, tl: 16 + (mat * 2 + tl) * 4
    for v in range(16, 32):
        k(f'v_mov_b32 v{v}, 0')
    k('s_waitcnt lgkmcnt(0)')
    for s in range(4):
        for mat in range(2):
            for tl in range(2):
                b = FR(mat, tl, s)
                a = AC(mat, tl)
                k(f'v_mfma_f32_16x16x32_bf16 v[{a}:{a+3}], v[{b}:{b+3}], v[{32+4*s}:{35+4*s}], v[{a}:{a+3}]')
    st()
    k('s_lshl_b32 s40, s68, 12')
    k('v_lshlrev_b32 v56, 4, v1')
    k(f'v_add_u32 v56, {RED}, v56')
    k('v_add_u32 v57, s40, v56')
    for q in range(4):
        k(f'ds_write_b128 v57, v[{16+4*q}:{19+4*q}] offset:{q*1024}')
    k('s_waitcnt lgkmcnt(0)')
    k('s_barrier')
    k('s_cmp_ge_u32 s68, 2')
    k(f's_cbranch_scc1 L_k4l{layer}_skiph')
    k('s_lshl_b32 s40, s68, 10')
    k('v_add_u32 v57, s40, v56')
    for w in range(4):
        k(f'ds_read_b128 v[{64+8*w}:{67+8*w}], v57 offset:{w*4096}')
        k(f'ds_read_b128 v[{68+8*w}:{71+8*w}], v57 offset:{w*4096 + 2048}')
    k('s_waitcnt lgkmcnt(0)')
    for e in range(8):
        k(f'v_add_f32 v{64+e}, v{64+e}, v{72+e}')
        k(f'v_add_f32 v{80+e}, v{80+e}, v{88+e}')
    for e in range(8):
        k(f'v_add_f32 v{64+e}, v{64+e}, v{80+e}')
    for e in range(0, 8, 2):
        k(f'v_cvt_pk_bf16_f32 v72, v{64+e}, v{65+e}')
        k(f'v_lshlrev_b32 v{64+e}, 16, v72')
        k(f'v_and_b32 v{65+e}, s72, v72')
    k('s_mov_b32 s40, 0xbfb8aa3b')
    for e in range(4):
        k(f'v_mul_f32 v{72+e}, s40, v{64+e}')
    for e in range(4):
        k(f'v_exp_f32 v{72+e}, v{72+e}')
    for e in range(4):
        k(f'v_add_f32 v{72+e}, 1.0, v{72+e}')
    for e in range(4):
        k(f'v_rcp_f32 v{72+e}, v{72+e}')
    for e in range(4):
        k(f'v_mul_f32 v{64+e}, v{64+e}, v{72+e}')
    for e in range(0, 4, 2):
        k(f'v_cvt_pk_bf16_f32 v72, v{64+e}, v{65+e}')
        k(f'v_lshlrev_b32 v{64+e}, 16, v72')
        k(f'v_and_b32 v{65+e}, s72, v72')
    for e in range(4):
        k(f'v_mul_f32 v{64+e}, v{64+e}, v{68+e}')
    k('v_cvt_pk_bf16_f32 v76, v64, v65')
    k('v_cvt_pk_bf16_f32 v77, v66, v67')
    k('v_and_b32 v58, 15, v1')
    k('v_lshlrev_b32 v58, 6, v58')
    k('v_lshl_add_u32 v58, v61, 3, v58')
    k('s_lshl_b32 s40, s68, 5')
    k('v_add_u32 v58, s40, v58')
    k(f'v_add_u32 v58, {RED}, v58')
    k(f'ds_write_b64 v58, v[76:77] offset:{HB - RED}')
    k.label(f'L_k4l{layer}_skiph')
    k('s_waitcnt lgkmcnt(0)')
    k('s_barrier')
    k('v_and_b32 v58, 15, v1')
    k('v_lshlrev_b32 v59, 6, v58')
    k('v_lshl_add_u32 v59, v61, 4, v59')
    k(f'v_add_u32 v59, {RED}, v59')
    k(f'ds_read_b128 v[32:35], v59 offset:{HB - RED}')
    k('v_bfe_u32 v60, v1, 2, 2')
    k('v_lshl_add_u32 v36, v61, 3, v60')
    k('v_lshlrev_b32 v36, 10, v36')
    k('v_and_b32 v37, 3, v1')
    k('v_lshl_add_u32 v36, v37, 3, v36')
    k(f'v_add_u32 v36, {DOFF}, v36')
    k('v_and_b32 v37, 1, v61')
    k('v_lshl_or_b32 v60, v37, 2, v60')
    k('s_lshl_b32 s40, s68, 8')
    k('v_add_u32 v36, s40, v36')
    for j in range(8):
        k(f'v_xor_b32 v37, {j}, v60')
        k(f'v_lshl_add_u32 v{40+j}, v37, 5, v36')
    for j in range(7):
        k(f'ds_read_b64_tr_b16 v[{64+4*j}:{65+4*j}], v{40+j}')
        k(f'ds_read_b64_tr_b16 v[{66+4*j}:{67+4*j}], v{40+j} offset:4096')
    k('s_waitcnt lgkmcnt(8)')
    k('ds_read_b64_tr_b16 v[92:93], v47')
    k('ds_read_b64_tr_b16 v[94:95], v47 offset:4096')
    srd(k, 36, 4, 5, 56 * 16384, PART_OFF)
    k('v_lshlrev_b32 v38, 11, v58')
    k('v_lshl_add_u32 v38, v61, 4, v38')
    k('s_lshl_b32 s40, s69, 14')
    k('s_lshl_b32 s41, s68, 9')
    k('s_add_u32 s40, s40, s41')
    k('v_add_u32 v38, s40, v38')
    k('s_waitcnt lgkmcnt(0)')
    for j in range(8):
        k(f'v_mfma_f32_16x16x32_bf16 v[{96+4*j}:{99+4*j}], v[{64+4*j}:{67+4*j}], v[32:35], 0')
    k('v_cmp_gt_u32 vcc, 8, v58')
    k('s_and_saveexec_b64 s[48:49], vcc')
    for j in range(8):
        k(f'buffer_store_dwordx4 v[{96+4*j}:{99+4*j}], v38, s[36:39], 0 offen offset:{j*64}')
    k('s_mov_b64 exec, s[48:49]')
    st()
    k('s_waitcnt vmcnt(0)' if DIAG else '')
    st()
    st.flush(4, 5, 4 + layer - 1, 6, 7, 60)
    k(f's_branch L_k4l{layer}_done')
    k.label(f'L_k4l{layer}_ln')
    if layer == 1:
        srd(k, 36, 4, 5, XBYTES, X2_OFF)
    else:
        srd(k, 36, 70, 71, XBYTES)
    k(f's_sub_u32 s40, s2, {NFFN}')
    k('s_lshl_b32 s40, s40, 4')
    k('v_lshrrev_b32 v2, 5, v0')
    k('v_add_u32 v2, s40, v2')
    k('v_lshlrev_b32 v3, 4, v2')
    k('buffer_load_dwordx2 v[14:15], v3, s[24:27], 0 offen')
    k('v_and_b32 v4, 31, v0')
    k('v_lshlrev_b32 v3, 10, v2')
    k('v_lshl_add_u32 v3, v4, 4, v3')
    for s in range(2):
        k(f'buffer_load_dwordx4 v[{32+4*s}:{35+4*s}], v3, s[12:15], 0 offen offset:{s*512}')
    k('s_waitcnt vmcnt(2)')
    ln_scalars(k, 14, 15, 10, 11, 12, 13, 72, 73, 74)
    for s in range(2):
        k('s_waitcnt vmcnt(1)')
        for d in range(4):
            x = 32 + 4 * s + d
            normalize_dword(k, x, 10, 11, 12, 13, 72, 16)
            add_dwords(k, x, 16, 12, 13, 17, 18, 72, 48 + 4 * s + d)
        k(f'buffer_store_dwordx4 v[{48+4*s}:{51+4*s}], v3, s[36:39], 0 offen offset:{s*512}')
    k.label(f'L_k4l{layer}_done')
    k('s_endpgm')
    return k, HB + 1024 + 64


def k5(layer):
    k = Kern(f'k5l{layer}_kernel', nvgpr=64, accum_offset=64, nsgpr=100)
    st = Stamps(k, base=80)
    k('s_cmp_ge_u32 s2, 32')
    k(f's_cbranch_scc1 L_k5l{layer}_done')
    st()
    k('s_load_dwordx2 s[4:5], s[0:1], 80')
    k('s_load_dwordx2 s[70:71], s[0:1], 64')
    k('s_mov_b32 s72, 0xffff0000')
    k('s_mov_b32 s73, 0x3b000000')
    k('s_mov_b32 s74, 0x3727c5ac')
    k('s_lshr_b32 s68, s2, 2')
    k('s_and_b32 s69, s2, 3')
    k('v_and_b32 v1, 31, v0')
    k('v_lshrrev_b32 v2, 5, v0')
    k('v_mul_u32_u24 v3, 114688, v2')
    k('v_lshl_add_u32 v3, v1, 4, v3')
    k('s_lshl_b32 s40, s68, 11')
    k('s_lshl_b32 s41, s69, 9')
    k('s_add_u32 s40, s40, s41')
    k('v_add_u32 v3, s40, v3')
    k('s_waitcnt lgkmcnt(0)')
    srd(k, 36, 4, 5, 56 * 16384, PART_OFF)
    srd(k, 32, 4, 5, SM_SIZE, SM_OFF)
    k('s_lshl_b32 s41, s68, 2')
    k(f's_add_u32 s41, s41, {SEL_REL}')
    k('v_mov_b32 v4, 0')
    k('buffer_load_dword v26, v4, s[32:35], s41 offen')
    for i in range(7):
        k(f's_mov_b32 s40, {i * 16384}')
        k(f'buffer_load_dwordx4 v[{32+4*i}:{35+4*i}], v3, s[36:39], s40 offen')
    srd(k, 12, 4, 5, XBYTES, X1_OFF if layer == 1 else X3_OFF)
    srd(k, 24, 4, 5, 32768, ST_OFF + (layer - 1) * 32768)
    if layer == 1:
        srd(k, 44, 4, 5, XBYTES, X2_OFF)
    else:
        srd(k, 44, 70, 71, XBYTES)
    k('s_waitcnt vmcnt(7)')
    k('v_and_b32 v28, 0x7ff, v26')
    k('v_sub_u32 v28, 2047, v28')
    k('v_lshlrev_b32 v30, 4, v28')
    k('buffer_load_dwordx2 v[14:15], v30, s[24:27], 0 offen')
    k('v_lshlrev_b32 v31, 10, v28')
    k('v_lshl_add_u32 v31, v1, 3, v31')
    k('s_lshl_b32 s41, s69, 8')
    k('v_add_u32 v31, s41, v31')
    k('buffer_load_dwordx2 v[16:17], v31, s[12:15], 0 offen')
    k('s_waitcnt vmcnt(2)')
    for i in range(1, 7):
        for e in range(4):
            k(f'v_add_f32 v{32+e}, v{32+e}, v{32+4*i+e}')
    k('v_lshlrev_b32 v5, 4, v0')
    k('ds_write_b128 v5, v[32:35]')
    k('s_waitcnt lgkmcnt(0)')
    k('s_barrier')
    k('v_cmp_gt_u32 vcc, 32, v0')
    k('s_and_saveexec_b64 s[48:49], vcc')
    k(f's_cbranch_execz L_k5l{layer}_done')
    for g in range(8):
        k(f'ds_read_b128 v[{32+4*g}:{35+4*g}], v5 offset:{g*512}')
    k('s_waitcnt lgkmcnt(0)')
    for g in range(1, 8):
        for e in range(4):
            k(f'v_add_f32 v{32+e}, v{32+e}, v{32+4*g+e}')
    for e in range(0, 4, 2):
        k(f'v_cvt_pk_bf16_f32 v40, v{32+e}, v{33+e}')
        k(f'v_lshlrev_b32 v{32+e}, 16, v40')
        k(f'v_and_b32 v{33+e}, s72, v40')
    k('v_and_b32 v20, s72, v26')
    k('v_ashrrev_i32 v21, 31, v20')
    k('v_not_b32 v21, v21')
    k('v_or_b32 v21, 0x80000000, v21')
    k('v_xor_b32 v20, v20, v21')
    k('v_and_b32 v20, s72, v20')
    k('s_mov_b32 s40, 0xbfb8aa3b')
    k('v_mul_f32 v20, s40, v20')
    k('v_exp_f32 v20, v20')
    k('v_add_f32 v20, 1.0, v20')
    k('v_rcp_f32 v20, v20')
    k('v_cvt_pk_bf16_f32 v20, v20, v20')
    k('v_lshlrev_b32 v20, 16, v20')
    for e in range(4):
        k(f'v_mul_f32 v{32+e}, v{32+e}, v20')
    k('v_cvt_pk_bf16_f32 v44, v32, v33')
    k('v_cvt_pk_bf16_f32 v45, v34, v35')
    k('s_waitcnt vmcnt(0)')
    ln_scalars(k, 14, 15, 10, 11, 12, 13, 72, 73, 74)
    for d in range(2):
        normalize_dword(k, 16 + d, 10, 11, 12, 13, 72, 18)
        add_dwords(k, 18, 44 + d, 12, 13, 19, 22, 72, 18)
        add_dwords(k, 16 + d, 18, 12, 13, 19, 22, 72, 46 + d)
    k('buffer_store_dwordx2 v[46:47], v31, s[44:47], 0 offen')
    k.label(f'L_k5l{layer}_done')
    k('s_endpgm')
    return k, 4096


def build(path, extra_launch=0):
    hdr = open('interleave_layers__sliding_local_dilated__moe_arch_mod__prompt.s.ref').read().split('; Override')[0]
    ks = []
    launches = []
    for layer in (1, 2):
        for fn, grid, blk in ((k1, 256, 512), (k2, 256, 512), (k4, NFFN + NLN, 512), (k5, 32, 256)):
            kk, lds = fn(layer)
            ks.append(kk)
            launches.append(f'; @launch kernel={kk.name} grid=({grid},1,1) block=({blk},1,1) lds={lds}')
    if extra_launch:
        e = Kern('nop_kernel', nvgpr=8, accum_offset=8, nsgpr=16)
        e('s_endpgm')
        ks.append(e)
        for i in range(extra_launch):
            launches.append('; @launch kernel=nop_kernel grid=(256,1,1) block=(256,1,1) lds=0')
    out = hdr + '\n'.join(launches) + '\n.amdgcn_target "amdgcn-amd-amdhsa--gfx950"\n.text\n'
    for kk in ks:
        out += kk.text()
    out += '.section .rodata,"a"\n'
    for kk in ks:
        out += kk.desc()
    open(path, 'w').write(out)


if __name__ == '__main__':
    path = sys.argv[1] if len(sys.argv) > 1 else 'interleave_layers__sliding_local_dilated__moe_arch_mod__prompt.s'
    if len(sys.argv) > 3:
        DIAG = True
    build(path, int(sys.argv[2]) if len(sys.argv) > 2 else 0)
```

```python
import sys
sys.path.insert(0, 'gen')
from asmlib import Kern

MB = 1 << 20
O_OFF = 0
X1_OFF = 2 * MB
X2_OFF = 4 * MB
X3_OFF = 6 * MB
ST_OFF = 8 * MB
SM_OFF = 8 * MB + 65536
H_REL = 0
SEL_REL = 32768
SM_SIZE = 65536

XBYTES = 2048 * 512 * 2


def srd(k, d, lo, hi, size, add=0):
    if add:
        k(f's_add_u32 s{d}, s{lo}, {add}')
        k(f's_addc_u32 s{d+1}, s{hi}, 0')
        k(f's_and_b32 s{d+1}, s{d+1}, 0xffff')
    else:
        k(f's_mov_b32 s{d}, s{lo}')
        k(f's_and_b32 s{d+1}, s{hi}, 0xffff')
    k(f's_mov_b32 s{d+2}, {size}')
    k(f's_mov_b32 s{d+3}, 0x00020000')


DIAG = False
DBG_OFF = 16 * MB


class Stamps:
    def __init__(self, k, base=64):
        self.k = k
        self.n = 0
        self.base = base

    def __call__(self):
        if DIAG:
            b = self.base + 2 * self.n
            self.k(f's_memtime s[{b}:{b+1}]')
            self.n += 1

    def flush(self, ws_lo, ws_hi, slot, vt0, vt1, sd):
        if not DIAG:
            return
        k = self.k
        k('s_waitcnt lgkmcnt(0)')
        srd(k, sd, ws_lo, ws_hi, 1 << 20, DBG_OFF + slot * (1 << 18))
        k(f'v_mov_b32 v{vt0}, 0')
        for i in range(self.n):
            k(f'v_writelane_b32 v{vt0}, s{self.base + 2*i}, {i}')
        k(f'v_lshrrev_b32 v{vt1}, 6, v0')
        k(f's_lshl_b32 s{self.base}, s2, 3')
        k(f'v_add_u32 v{vt1}, s{self.base}, v{vt1}')
        k(f'v_lshlrev_b32 v{vt1}, 6, v{vt1}')
        k(f'v_and_b32 v{vt0+1 if False else vt1+1}, 63, v0')
        k(f'v_lshl_add_u32 v{vt1}, v{vt1+1}, 2, v{vt1}')
        k(f'v_cmp_gt_u32 vcc, 16, v{vt1+1}')
        k('s_and_b64 exec, exec, vcc')
        k(f'buffer_store_dword v{vt0}, v{vt1}, s[{sd}:{sd+3}], 0 offen')


def xrow_reduce(k, v, tmp):
    k(f'v_mov_b32 v{tmp}, v{v}')
    k(f'v_permlane16_swap_b32 v{v}, v{tmp}')
    k(f'v_add_f32 v{v}, v{v}, v{tmp}')
    k(f'v_mov_b32 v{tmp}, v{v}')
    k(f'v_permlane32_swap_b32 v{v}, v{tmp}')
    k(f'v_add_f32 v{v}, v{v}, v{tmp}')


def ln_scalars(k, s1, s2, m, rinv, t1, t2, s_mask, s_inv512, s_eps):
    k(f'v_mul_f32 v{t1}, s{s_inv512}, v{s1}')
    k(f'v_mul_f32 v{t2}, s{s_inv512}, v{s2}')
    k(f'v_fma_f32 v{t2}, -v{t1}, v{t1}, v{t2}')
    k(f'v_max_f32 v{t2}, 0, v{t2}')
    k(f'v_cvt_pk_bf16_f32 v{t1}, v{t1}, v{t2}')
    k(f'v_lshlrev_b32 v{m}, 16, v{t1}')
    k(f'v_and_b32 v{t2}, s{s_mask}, v{t1}')
    k(f'v_add_f32 v{t2}, s{s_eps}, v{t2}')
    k(f'v_cvt_pk_bf16_f32 v{t2}, v{t2}, v{t2}')
    k(f'v_lshlrev_b32 v{t2}, 16, v{t2}')
    k(f'v_sqrt_f32 v{t2}, v{t2}')
    k(f'v_cvt_pk_bf16_f32 v{t2}, v{t2}, v{t2}')
    k(f'v_lshlrev_b32 v{t2}, 16, v{t2}')
    k(f'v_rcp_f32 v{rinv}, v{t2}')


def k1(layer):
    k = Kern(f'k1l{layer}_kernel', nvgpr=200, accum_offset=200, nsgpr=100)
    st = Stamps(k)
    SLOT = 34816
    WOFF = 10240
    STAT = 0
    QKVA = 1024
    ROWB = 112
    ACC = lambda sg, t: 16 + (sg * 5 + t) * 4
    CS = lambda sg: 76 + 4 * sg
    XFB = lambda b, t: 88 + b * 24 + t * 4
    WFB = lambda b, sg: 136 + b * 12 + sg * 4
    ONES = 160
    k('s_cmp_ge_u32 s2, 256')
    k(f's_cbranch_scc1 L_k1l{layer}_done')
    st()
    k(f's_load_dwordx2 s[4:5], s[0:1], {0 if layer == 1 else 80}')
    k('s_load_dwordx2 s[6:7], s[0:1], 8')
    k('s_load_dwordx2 s[8:9], s[0:1], 80')
    k('s_and_b32 s28, s2, 7')
    k('s_lshr_b32 s29, s2, 3')
    k('s_lshr_b32 s30, s28, 1')
    k('s_lshl_b32 s30, s30, 3')
    k('s_lshr_b32 s31, s29, 2')
    k('s_add_u32 s30, s30, s31')
    k('s_and_b32 s28, s28, 1')
    k('s_lshl_b32 s28, s28, 2')
    k('s_and_b32 s29, s29, 3')
    k('s_add_u32 s29, s28, s29')
    k('s_lshl_b32 s31, s30, 6')
    k('v_and_b32 v1, 63, v0')
    k('v_lshrrev_b32 v2, 6, v0')
    k('v_readfirstlane_b32 s30, v2')
    k('v_lshrrev_b32 v10, 3, v1')
    k('v_and_b32 v11, 7, v1')
    k('v_lshrrev_b32 v12, 4, v1')
    k('s_cmp_lt_u32 s30, 4')
    k(f's_cbranch_scc1 L_k1l{layer}_comp')
    k('s_sub_u32 s30, s30, 4')
    k('s_lshl_b32 s34, s30, 4')
    k('s_add_u32 s34, s34, s31')
    k('v_add_u32 v13, s34, v10')
    k('v_lshlrev_b32 v13, 10, v13')
    k('v_xor_b32 v14, v11, v12')
    k('v_lshl_add_u32 v2, v14, 4, v13')
    k('v_xor_b32 v14, 4, v14')
    k('v_lshl_add_u32 v3, v14, 4, v13')
    k('v_add_u32 v3, 8192, v3')
    k('s_lshl_b32 s34, s30, 2')
    k('s_add_u32 s34, s34, s31')
    k('s_sub_u32 s34, s34, 16')
    k('v_add_u32 v13, s34, v10')
    k('v_lshlrev_b32 v13, 10, v13')
    k('s_lshl_b32 s34, s30, 1')
    k('v_add_u32 v14, s34, v12')
    k('v_and_b32 v14, 7, v14')
    k('v_xor_b32 v14, v11, v14')
    k('v_lshl_add_u32 v4, v14, 4, v13')
    k('v_bfe_u32 v13, v10, 1, 1')
    k('s_and_b32 s34, s30, 1')
    k('s_lshl_b32 s34, s34, 1')
    k('v_or_b32 v13, s34, v13')
    k('v_lshrrev_b32 v14, 1, v11')
    k('v_xor_b32 v13, v13, v14')
    k('v_mul_u32_u24 v5, 3072, v10')
    k('v_lshl_add_u32 v5, v13, 5, v5')
    k('v_and_b32 v14, 1, v11')
    k('v_lshl_add_u32 v5, v14, 4, v5')
    k('s_lshl_b32 s34, s29, 7')
    k('v_add_u32 v5, s34, v5')
    k('s_mul_i32 s32, s30, 24576')
    k('s_lshl_b32 s33, s30, 10')
    k('s_lshl_b32 s35, s30, 11')
    k('s_add_u32 s35, s35, 2048')
    k('s_lshl_b32 s36, s30, 9')
    k('s_waitcnt lgkmcnt(0)')
    srd(k, 12, 4, 5, XBYTES, 0 if layer == 1 else X2_OFF)
    srd(k, 16, 6, 7, 512 * 1536 * 2)
    k('s_mov_b64 s[56:57], 0xffffffff')

    def issue_chunk(c):
        sb = (c % 4) * SLOT
        k(f's_mov_b32 s37, {c * 128}')
        k(f's_add_u32 m0, s35, {sb}')
        k('buffer_load_dwordx4 v2, s[12:15], s37 offen lds')
        k(f's_add_u32 m0, s35, {sb + 1024}')
        k('buffer_load_dwordx4 v3, s[12:15], s37 offen lds')
        k(f's_add_u32 m0, s36, {sb}')
        k('s_mov_b64 exec, s[56:57]')
        k('buffer_load_dwordx4 v4, s[12:15], s37 offen lds')
        k('s_mov_b64 exec, -1')
        for sg in range(3):
            for i in range(2):
                k(f's_add_u32 s34, s32, {(c * 64 + 32 * i) * 3072 + sg * 1024}')
                k(f's_add_u32 m0, s33, {sb + WOFF + sg * 8192 + i * 4096}')
                k('buffer_load_dwordx4 v5, s[16:19], s34 offen lds')

    issue_chunk(0)
    issue_chunk(1)
    if layer == 1:
        srd(k, 24, 8, 9, 65536, ST_OFF)
    k('v_lshlrev_b32 v6, 5, v1')
    k('v_add_u32 v6, s35, v6')
    k('v_and_b32 v7, 31, v1')
    k('v_lshlrev_b32 v7, 4, v7')
    k('v_add_u32 v7, s36, v7')
    for v in range(120, 128):
        k(f'v_mov_b32 v{v}, 0')
    k('s_mov_b32 s52, 0xffff0000')
    k('s_mov_b32 s53, 0x3b000000')
    k('s_mov_b32 s54, 0x3727c5ac')
    for c in range(8):
        k(f's_waitcnt vmcnt({9 if c < 7 else 0})')
        k('s_barrier')
        sl = c % 4
        if sl == 2:
            k(f'v_add_u32 v6, {2 * SLOT}, v6')
            k(f'v_add_u32 v7, {2 * SLOT}, v7')
        if sl == 0 and c > 0:
            k(f'v_subrev_u32 v6, {2 * SLOT}, v6')
            k(f'v_subrev_u32 v7, {2 * SLOT}, v7')
        so = (sl & 1) * SLOT
        k(f'ds_read_b128 v[100:103], v6 offset:{so}')
        k(f'ds_read_b128 v[104:107], v6 offset:{so + 16}')
        k(f'ds_read_b128 v[108:111], v7 offset:{so}')
        if c + 2 <= 7:
            issue_chunk(c + 2)
        k('s_waitcnt lgkmcnt(0)')
        for d in range(12):
            acc = 120 if d < 8 else 124
            k(f'v_lshlrev_b32 v112, 16, v{100+d}')
            k(f'v_and_b32 v113, s52, v{100+d}')
            k(f'v_add_f32 v{acc}, v{acc}, v112')
            k(f'v_add_f32 v{acc+1}, v{acc+1}, v113')
            k(f'v_fma_f32 v{acc+2}, v112, v112, v{acc+2}')
            k(f'v_fma_f32 v{acc+3}, v113, v113, v{acc+3}')
    k('v_add_f32 v120, v120, v121')
    k('v_add_f32 v121, v122, v123')
    k('v_add_f32 v122, v124, v125')
    k('v_add_f32 v123, v126, v127')
    for v in range(120, 124):
        k(f'v_add_f32_dpp v{v}, v{v}, v{v} quad_perm:[1,0,3,2] row_mask:0xf bank_mask:0xf')
    for v in range(120, 124):
        k(f'v_add_f32_dpp v{v}, v{v}, v{v} quad_perm:[2,3,0,1] row_mask:0xf bank_mask:0xf')
    for v in range(122, 124):
        k(f'v_add_f32_dpp v{v}, v{v}, v{v} row_half_mirror row_mask:0xf bank_mask:0xf')
    ln_scalars(k, 120, 121, 124, 125, 112, 113, 52, 53, 54)
    ln_scalars(k, 122, 123, 126, 127, 114, 115, 52, 53, 54)
    k('v_lshrrev_b32 v112, 2, v1')
    k('v_lshlrev_b32 v112, 3, v112')
    k('s_lshl_b32 s34, s30, 7')
    k('v_add_u32 v112, s34, v112')
    k(f'ds_write_b64 v112, v[124:125] offset:{STAT}')
    k('v_bfe_u32 v112, v1, 3, 2')
    k('v_lshlrev_b32 v112, 3, v112')
    k('s_lshl_b32 s34, s30, 5')
    k('v_add_u32 v112, s34, v112')
    k(f'ds_write_b64 v112, v[126:127] offset:{STAT + 512}')
    if layer == 1:
        k('s_load_dwordx2 s[60:61], s[0:1], 16')
        k('s_load_dwordx4 s[64:67], s[0:1], 40')
        k('s_load_dwordx2 s[62:63], s[0:1], 56')
        k('s_and_b32 s84, s2, 7')
        k('s_lshr_b32 s85, s2, 3')
        k('s_waitcnt lgkmcnt(0)')
        srd(k, 68, 64, 65, 512 * 1792 * 2)
        srd(k, 72, 66, 67, 512 * 1792 * 2)
        srd(k, 76, 62, 63, 1792 * 512 * 2)
        srd(k, 80, 60, 61, 512 * 512 * 2)
        k('v_lshrrev_b32 v20, 5, v1')
        k('v_mul_u32_u24 v20, 3584, v20')
        k('v_and_b32 v21, 31, v1')
        k('v_lshl_add_u32 v20, v21, 4, v20')
        k('s_mul_i32 s34, s84, 448')
        k('s_lshl_b32 s37, s85, 4')
        k('s_lshl_b32 s38, s30, 2')
        k('s_add_u32 s37, s37, s38')
        k('s_mul_i32 s37, s37, 3584')
        k('s_add_u32 s34, s34, s37')
        for i in range(2):
            k(f's_add_u32 s37, s34, {2 * i * 3584}')
            k(f'buffer_load_dwordx4 v[{130+8*i}:{133+8*i}], v20, s[68:71], s37 offen')
            k(f'buffer_load_dwordx4 v[{134+8*i}:{137+8*i}], v20, s[72:75], s37 offen')
        k('v_lshlrev_b32 v21, 4, v1')
        k('s_mul_i32 s34, s84, 224')
        k('s_mul_i32 s37, s85, 7')
        k('s_add_u32 s34, s34, s37')
        k('s_add_u32 s34, s34, s30')
        k('s_lshl_b32 s34, s34, 10')
        k('buffer_load_dwordx4 v[146:149], v21, s[76:79], s34 offen')
        k('s_add_u32 s34, s34, 4096')
        k('buffer_load_dwordx4 v[150:153], v21, s[76:79], s34 offen')
        k('s_lshl_b32 s34, s85, 4')
        k('s_add_u32 s34, s34, s38')
        k('s_lshl_b32 s34, s34, 10')
        for i in range(4):
            k(f'buffer_load_dwordx4 v[{154+4*i}:{157+4*i}], v21, s[80:83], s34 offen offset:{i*1024}')
        k('s_cmp_lg_u32 s30, 0')
        k(f's_cbranch_scc1 L_k1l{layer}_nz')
        k('v_mov_b32 v100, 0')
        k('v_mov_b32 v101, 0')
        k('v_mov_b32 v102, 0')
        k('v_mov_b32 v103, 0')
        k('s_lshl_b32 s34, s2, 8')
        k('v_lshlrev_b32 v104, 4, v1')
        k('v_add_u32 v104, s34, v104')
        k('v_cmp_gt_u32 vcc, 16, v1')
        k('s_and_saveexec_b64 s[58:59], vcc')
        k('buffer_store_dwordx4 v[100:103], v104, s[24:27], 0 offen')
        k('s_mov_b64 exec, s[58:59]')
        k.label(f'L_k1l{layer}_nz')
    srd(k, 20, 8, 9, XBYTES, O_OFF)
    k('s_waitcnt lgkmcnt(0)')
    k('s_barrier')
    k('s_add_u32 s30, s30, 4')
    k(f's_branch L_k1l{layer}_attn')
    k.label(f'L_k1l{layer}_comp')
    k('s_lshl_b32 s35, s30, 11')
    k('s_add_u32 s35, s35, 2048')
    k('s_waitcnt lgkmcnt(0)')
    srd(k, 20, 8, 9, XBYTES, O_OFF)
    st()
    k('v_and_b32 v10, 15, v1')
    k('v_lshrrev_b32 v13, 1, v10')
    k('v_xor_b32 v13, v13, v12')
    k('v_lshlrev_b32 v6, 7, v10')
    k('v_lshl_add_u32 v6, v13, 4, v6')
    k('v_xor_b32 v7, 64, v6')
    k('v_add_u32 v8, s35, v6')
    k('v_add_u32 v9, s35, v7')
    k('v_bfe_u32 v13, v1, 2, 2')
    k('v_lshl_add_u32 v14, v12, 3, v13')
    k('v_lshlrev_b32 v164, 7, v14')
    k('v_lshrrev_b32 v13, 1, v13')
    k('v_and_b32 v14, 1, v12')
    k('v_lshl_or_b32 v13, v14, 1, v13')
    k('v_xor_b32 v13, s30, v13')
    k('v_lshl_add_u32 v164, v13, 5, v164')
    k('v_and_b32 v14, 3, v1')
    k('v_lshl_add_u32 v164, v14, 3, v164')
    k(f'v_add_u32 v164, {WOFF}, v164')
    for (d, sreg) in ((165, 6), (166, 7), (167, 8), (168, 9), (169, 164)):
        k(f'v_add_u32 v{d}, {2 * SLOT}, v{sreg}')
    for v in range(16, 88):
        k(f'v_mov_b32 v{v}, 0')
    for v in range(ONES, ONES + 4):
        k(f'v_mov_b32 v{v}, 0x3f803f80')
    for v in range(170, 174):
        k(f'v_mov_b32 v{v}, 0')

    def fread(s):
        c, q, b = s // 2, s & 1, s & 1
        slot = c % 4
        hi = slot >= 2
        so = (slot & 1) * SLOT
        xb = (166 if q else 165) if hi else (7 if q else 6)
        sbase = (168 if q else 167) if hi else (9 if q else 8)
        wb = 169 if hi else 164
        for sg in range(3):
            o = so + sg * 8192 + q * 4096
            k(f'ds_read_b64_tr_b16 v[{WFB(b,sg)}:{WFB(b,sg)+1}], v{wb} offset:{o}')
            k(f'ds_read_b64_tr_b16 v[{WFB(b,sg)+2}:{WFB(b,sg)+3}], v{wb} offset:{o+512}')
        for t in range(4):
            k(f'ds_read_b128 v[{XFB(b,t)}:{XFB(b,t)+3}], v{xb} offset:{so + 2048 + t * 2048}')
        k(f'ds_read_b128 v[{XFB(b,4)}:{XFB(b,4)+3}], v{xb} offset:{so}')

    k('s_barrier')
    st()
    fread(0)
    for s in range(16):
        c, q, b = s // 2, s & 1, s & 1
        k('s_waitcnt lgkmcnt(0)')
        if q == 1 and c < 7:
            if c in (1, 3, 5): st()
            k('s_barrier')
            if c in (1, 3, 5): st()
        if s < 15:
            fread(s + 1)
        for sg in range(3):
            w = WFB(b, sg)
            for t in range(5):
                if sg == 0 and t == 4:
                    continue
                a = ACC(sg, t)
                k(f'v_mfma_f32_16x16x32_bf16 v[{a}:{a+3}], v[{w}:{w+3}], v[{XFB(b,t)}:{XFB(b,t)+3}], v[{a}:{a+3}]')
            a = CS(sg)
            k(f'v_mfma_f32_16x16x32_bf16 v[{a}:{a+3}], v[{w}:{w+3}], v[{ONES}:{ONES+3}], v[{a}:{a+3}]')
    st()
    k('s_mov_b32 s52, 0xffff0000')
    k('s_mov_b32 s53, 0x3b000000')
    k('s_mov_b32 s54, 0x3727c5ac')
    k('v_lshlrev_b32 v13, 3, v10')
    k('s_barrier')
    for t in range(5):
        k(f'ds_read_b64 v[{90+2*t}:{91+2*t}], v13 offset:{STAT + t * 128}')
    k(f'v_mul_u32_u24 v14, {ROWB}, v10')
    k('v_lshl_add_u32 v14, v12, 3, v14')
    k('s_mul_i32 s34, s30, 8960')
    k('v_add_u32 v14, s34, v14')
    k('s_waitcnt lgkmcnt(0)')
    for sg in range(3):
        for t in range(5):
            if sg == 0 and t == 4:
                continue
            a = ACC(sg, t)
            m, ri = (90 + 2 * t, 91 + 2 * t)
            for r in range(4):
                k(f'v_fma_f32 v{a+r}, -v{m}, v{CS(sg)+r}, v{a+r}')
            for r in range(4):
                k(f'v_mul_f32 v{a+r}, v{a+r}, v{ri}')
            k(f'v_cvt_pk_bf16_f32 v{a}, v{a}, v{a+1}')
            k(f'v_cvt_pk_bf16_f32 v{a+1}, v{a+2}, v{a+3}')
            rowoff = 0 if t == 4 else (16 + 16 * t) * ROWB
            k(f'ds_write_b64 v14, v[{a}:{a+1}] offset:{QKVA + rowoff + sg * 32}')
    st()
    k.label(f'L_k1l{layer}_attn')
    k('s_waitcnt lgkmcnt(0)')
    k('s_barrier')
    k('s_lshr_b32 s34, s30, 2')
    k('s_lshl_b32 s34, s34, 5')
    k('v_and_b32 v2, 31, v1')
    k('v_add_u32 v2, s34, v2')
    k('v_lshrrev_b32 v8, 5, v1')
    k('v_add_u32 v3, s31, v2')
    k('v_lshlrev_b32 v9, 3, v8')
    k('v_sub_u32 v7, v3, v9')
    k('v_sub_u32 v4, v2, v9')
    k('v_add_u32 v4, 10, v4')
    k(f'v_mul_u32_u24 v4, {ROWB}, v4')
    k('s_and_b32 s36, s30, 3')
    k('s_mul_i32 s34, s36, 8960')
    k('v_add_u32 v4, s34, v4')
    k('v_add_u32 v6, 16, v2')
    k(f'v_mul_u32_u24 v6, {ROWB}, v6')
    k('v_add_u32 v6, s34, v6')
    Q = 16
    KK = lambda i: 24 + 8 * i
    VV = lambda i: 56 + 8 * i
    k(f'ds_read_b128 v[{Q}:{Q+3}], v6 offset:{QKVA}')
    k(f'ds_read_b128 v[{Q+4}:{Q+7}], v6 offset:{QKVA + 16}')
    for i in range(4):
        o = QKVA + (6 - 2 * i) * ROWB + 32
        k(f'ds_read_b128 v[{KK(i)}:{KK(i)+3}], v4 offset:{o}')
        k(f'ds_read_b128 v[{KK(i)+4}:{KK(i)+7}], v4 offset:{o+16}')
    for i in range(2):
        o = QKVA + (6 - 2 * i) * ROWB + 64
        k(f'ds_read_b128 v[{VV(i)}:{VV(i)+3}], v4 offset:{o}')
        k(f'ds_read_b128 v[{VV(i)+4}:{VV(i)+7}], v4 offset:{o+16}')
    k('s_waitcnt lgkmcnt(4)')
    for i in range(2, 4):
        o = QKVA + (6 - 2 * i) * ROWB + 64
        k(f'ds_read_b128 v[{VV(i)}:{VV(i)+3}], v4 offset:{o}')
        k(f'ds_read_b128 v[{VV(i)+4}:{VV(i)+7}], v4 offset:{o+16}')
    L = 88
    P = 92
    for j in range(8):
        for i in range(4):
            src2 = '0' if j == 0 else f'v{L+i}'
            k(f'v_dot2_f32_bf16 v{L+i}, v{Q+j}, v{KK(i)+j}, {src2}')
    for i in range(0, 4, 2):
        k(f'v_cvt_pk_bf16_f32 v{P+i//2}, v{L+i}, v{L+i+1}')
    for i in range(0, 4, 2):
        k(f'v_lshlrev_b32 v{L+i}, 16, v{P+i//2}')
        k(f'v_and_b32 v{L+i+1}, s52, v{P+i//2}')
    k('v_mov_b32 v94, 0xcf6e6b28')
    for i in range(4):
        k(f'v_cmp_le_i32 vcc, {2*i}, v7')
        k(f'v_cndmask_b32 v{L+i}, v94, v{L+i}, vcc')
    k(f'v_max3_f32 v95, v{L}, v{L+1}, v{L+2}')
    k(f'v_max_f32 v95, v95, v{L+3}')
    k('v_mov_b32 v96, v95')
    k('v_permlane32_swap_b32 v95, v96')
    k('v_max_f32 v95, v95, v96')
    k('s_mov_b32 s34, 0x3eb8aa3b')
    for i in range(4):
        k(f'v_sub_f32 v{L+i}, v{L+i}, v95')
    for i in range(4):
        k(f'v_mul_f32 v{L+i}, s34, v{L+i}')
    for i in range(4):
        k(f'v_exp_f32 v{L+i}, v{L+i}')
    k(f'v_add_f32 v95, v{L}, v{L+1}')
    k(f'v_add_f32 v96, v{L+2}, v{L+3}')
    k('v_add_f32 v95, v95, v96')
    k('v_mov_b32 v96, v95')
    k('v_permlane32_swap_b32 v95, v96')
    k('v_add_f32 v95, v95, v96')
    k('v_rcp_f32 v95, v95')
    for i in range(4):
        k(f'v_mul_f32 v{L+i}, v{L+i}, v95')
    for i in range(0, 4, 2):
        k(f'v_cvt_pk_bf16_f32 v{P+i//2}, v{L+i}, v{L+i+1}')
    k('s_mov_b32 s38, 0x05040100')
    k('s_mov_b32 s37, 0x07060302')
    k('s_waitcnt lgkmcnt(0)')
    OO = 24
    for wp in range(2):
        a_, b_ = 2 * wp, 2 * wp + 1
        for j in range(8):
            k(f'v_perm_b32 v{40+2*j}, v{VV(b_)+j}, v{VV(a_)+j}, s38')
            k(f'v_perm_b32 v{41+2*j}, v{VV(b_)+j}, v{VV(a_)+j}, s37')
        for j in range(16):
            src2 = '0' if wp == 0 else f'v{OO+j}'
            k(f'v_dot2_f32_bf16 v{OO+j}, v{40+j}, v{P+wp}, {src2}')
    for d in range(8):
        k(f'v_permlane32_swap_b32 v{OO+d}, v{OO+8+d}')
    for d in range(8):
        k(f'v_add_f32 v{OO+d}, v{OO+d}, v{OO+8+d}')
    for j in range(4):
        k(f'v_cvt_pk_bf16_f32 v{56+j}, v{OO+2*j}, v{OO+2*j+1}')
    k('v_lshlrev_b32 v5, 10, v3')
    k('v_lshl_add_u32 v5, v8, 4, v5')
    k('s_lshl_b32 s34, s29, 7')
    k('s_lshl_b32 s36, s36, 5')
    k('s_add_u32 s34, s34, s36')
    k('v_add_u32 v5, s34, v5')
    k('buffer_store_dwordx4 v[56:59], v5, s[20:23], 0 offen')
    st()
    k('s_waitcnt vmcnt(0)' if DIAG else '')
    st()
    st.flush(8, 9, layer - 1, 6, 7, 60)
    k.label(f'L_k1l{layer}_done')
    k('s_endpgm')
    return k, 4 * SLOT


def k2(layer):
    k = Kern(f'k2l{layer}_kernel', nvgpr=128, accum_offset=128, nsgpr=100)
    st = Stamps(k)
    CH = 16384
    ACC = lambda j: 12 + 4 * j
    RES = lambda j: 44 + 2 * j
    WR = lambda j: 52 + 2 * j
    WF = lambda b, j: 64 + b * 20 + 4 * j
    OF = lambda b: 64 + b * 20 + 16
    k('s_cmp_ge_u32 s2, 256')
    k(f's_cbranch_scc1 L_k2l{layer}_done')
    st()
    k(f's_load_dwordx2 s[4:5], s[0:1], {0 if layer == 1 else 80}')
    k('s_load_dwordx2 s[6:7], s[0:1], 16')
    k('s_load_dwordx2 s[8:9], s[0:1], 80')
    k('s_load_dwordx2 s[10:11], s[0:1], 32')
    k('s_and_b32 s36, s2, 7')
    k('s_lshr_b32 s37, s2, 3')
    k('s_lshl_b32 s36, s36, 2')
    k('s_lshr_b32 s38, s37, 3')
    k('s_add_u32 s36, s36, s38')
    k('s_and_b32 s37, s37, 7')
    k('s_lshl_b32 s36, s36, 6')
    k('s_lshl_b32 s41, s37, 7')
    k('v_and_b32 v1, 63, v0')
    k('v_lshrrev_b32 v2, 6, v0')
    k('v_readfirstlane_b32 s39, v2')
    k('v_lshrrev_b32 v10, 3, v1')
    k('v_and_b32 v11, 7, v1')
    k('v_lshrrev_b32 v61, 4, v1')
    k('s_lshl_b32 s40, s39, 4')
    k('s_add_u32 s40, s40, s36')
    k('s_cmp_lt_u32 s39, 4')
    k(f's_cbranch_scc1 L_k2l{layer}_comp')
    k('s_sub_u32 s39, s39, 4')
    k('s_sub_u32 s40, s40, 64')
    k('v_add_u32 v4, s40, v10')
    k('v_lshlrev_b32 v4, 10, v4')
    k('v_xor_b32 v5, v11, v61')
    k('v_lshl_add_u32 v2, v5, 4, v4')
    k('v_xor_b32 v5, 4, v5')
    k('v_lshl_add_u32 v3, v5, 4, v4')
    k('v_add_u32 v3, 8192, v3')
    k('v_bfe_u32 v4, v10, 1, 1')
    k('s_and_b32 s42, s39, 1')
    k('s_lshl_b32 s42, s42, 1')
    k('v_or_b32 v4, s42, v4')
    k('v_lshrrev_b32 v5, 1, v11')
    k('v_xor_b32 v4, v4, v5')
    k('v_lshlrev_b32 v6, 10, v10')
    k('v_lshl_add_u32 v6, v4, 5, v6')
    k('v_and_b32 v5, 1, v11')
    k('v_lshl_add_u32 v6, v5, 4, v6')
    k('v_add_u32 v6, s41, v6')
    k('s_lshl_b32 s43, s39, 13')
    k('s_lshl_b32 s44, s39, 10')
    k('s_lshl_b32 s45, s39, 11')
    k('s_waitcnt lgkmcnt(0)')
    srd(k, 12, 8, 9, XBYTES, O_OFF)
    srd(k, 16, 6, 7, 512 * 512 * 2)

    def issue2(c):
        k(f's_mov_b32 s46, {c * 128}')
        k(f's_add_u32 m0, s45, {c * CH}')
        k('buffer_load_dwordx4 v2, s[12:15], s46 offen lds')
        k(f's_add_u32 m0, s45, {c * CH + 1024}')
        k('buffer_load_dwordx4 v3, s[12:15], s46 offen lds')
        for i in range(2):
            k(f's_add_u32 s47, s43, {(c * 64 + 32 * i) * 1024}')
            k(f's_add_u32 m0, s44, {c * CH + 8192 + i * 4096}')
            k('buffer_load_dwordx4 v6, s[16:19], s47 offen lds')
    LA = 3
    for c in range(LA):
        issue2(c)
    issued = LA
    for c in range(8):
        k(f's_waitcnt vmcnt({(issued - (c + 1)) * 4})')
        k('s_barrier')
        if issued < 8:
            issue2(issued)
            issued += 1
    k('s_endpgm')
    k.label(f'L_k2l{layer}_comp')
    k('s_lshl_b32 s45, s39, 11')
    k('s_waitcnt lgkmcnt(0)')
    st()
    srd(k, 20, 4, 5, XBYTES, 0 if layer == 1 else X2_OFF)
    srd(k, 24, 8, 9, XBYTES, X1_OFF if layer == 1 else X3_OFF)
    srd(k, 28, 8, 9, 32768, ST_OFF + (layer - 1) * 32768)
    srd(k, 32, 10, 11, 1024)
    k('v_and_b32 v60, 15, v1')
    k('v_add_u32 v62, s40, v60')
    k('v_lshlrev_b32 v9, 10, v62')
    k('v_lshl_add_u32 v9, v61, 3, v9')
    k('v_add_u32 v9, s41, v9')
    k('v_lshlrev_b32 v10, 3, v61')
    k('v_add_u32 v10, s41, v10')
    for j in range(4):
        k(f'buffer_load_dwordx2 v[{RES(j)}:{RES(j)+1}], v9, s[20:23], 0 offen offset:{j*32}')
    for j in range(4):
        k(f'buffer_load_dwordx2 v[{WR(j)}:{WR(j)+1}], v10, s[32:35], 0 offen offset:{j*32}')
    k('v_lshrrev_b32 v4, 1, v60')
    k('v_xor_b32 v4, v4, v61')
    k('v_lshlrev_b32 v2, 7, v60')
    k('v_lshl_add_u32 v2, v4, 4, v2')
    k('v_add_u32 v2, s45, v2')
    k('v_xor_b32 v3, 64, v2')
    k('v_bfe_u32 v8, v1, 2, 2')
    k('v_lshl_add_u32 v11, v61, 3, v8')
    k('v_lshlrev_b32 v11, 7, v11')
    k('v_and_b32 v5, 3, v1')
    k('v_lshl_add_u32 v11, v5, 3, v11')
    k('v_add_u32 v11, 8192, v11')
    k('v_lshrrev_b32 v8, 1, v8')
    k('v_and_b32 v5, 1, v61')
    k('v_lshl_or_b32 v8, v5, 1, v8')
    for j in range(4):
        k(f'v_xor_b32 v{4+j}, {j}, v8')
        k(f'v_lshl_add_u32 v{4+j}, v{4+j}, 5, v11')
    for i in range(6):
        k(f'v_add_u32 v{28+i}, 65536, v{2+i}')
    for v in range(12, 28):
        k(f'v_mov_b32 v{v}, 0')

    def fread(s):
        c, q, b = s // 2, s & 1, s & 1
        hi = c >= 4
        co = (c & 3) * CH
        base = 28 if hi else 2
        for j in range(4):
            k(f'ds_read_b64_tr_b16 v[{WF(b,j)}:{WF(b,j)+1}], v{base+2+j} offset:{co + q*4096}')
            k(f'ds_read_b64_tr_b16 v[{WF(b,j)+2}:{WF(b,j)+3}], v{base+2+j} offset:{co + q*4096 + 512}')
        k(f'ds_read_b128 v[{OF(b)}:{OF(b)+3}], v{base+q} offset:{co}')

    k('s_barrier')
    st()
    fread(0)
    for s in range(16):
        c, q, b = s // 2, s & 1, s & 1
        if q == 1 and c < 7:
            k('s_barrier')
        k('s_waitcnt lgkmcnt(0)')
        if s < 15:
            fread(s + 1)
        for j in range(4):
            k(f'v_mfma_f32_16x16x32_bf16 v[{ACC(j)}:{ACC(j)+3}], v[{WF(b,j)}:{WF(b,j)+3}], v[{OF(b)}:{OF(b)+3}], v[{ACC(j)}:{ACC(j)+3}]')
    st()
    k('s_mov_b32 s46, 0xffff0000')
    k('v_mov_b32 v63, 0x3f803f80')
    k('v_mov_b32 v108, 0')
    k('v_mov_b32 v109, 0')
    k('v_mov_b32 v110, 0')
    k('s_waitcnt vmcnt(0)')
    for j in range(4):
        for h in range(2):
            a = ACC(j) + 2 * h
            o = 112 + 2 * j + h
            k(f'v_cvt_pk_bf16_f32 v120, v{a}, v{a+1}')
            k('v_lshlrev_b32 v121, 16, v120')
            k('v_and_b32 v122, s46, v120')
            k(f'v_lshlrev_b32 v123, 16, v{RES(j)+h}')
            k(f'v_and_b32 v124, s46, v{RES(j)+h}')
            k('v_add_f32 v121, v121, v123')
            k('v_add_f32 v122, v122, v124')
            k(f'v_cvt_pk_bf16_f32 v{o}, v121, v122')
            k(f'v_dot2c_f32_bf16 v108, v{o}, v63')
            k(f'v_dot2c_f32_bf16 v109, v{o}, v{o}')
            k(f'v_dot2c_f32_bf16 v110, v{o}, v{WR(j)+h}')
        k(f'buffer_store_dwordx2 v[{112+2*j}:{113+2*j}], v9, s[24:27], 0 offen offset:{j*32}')
    for v in range(108, 111):
        xrow_reduce(k, v, 125 + v - 108)
    k('v_mov_b32 v111, 0')
    k('v_cmp_eq_u32 vcc, 1, v61')
    k('v_cndmask_b32 v108, v108, v109, vcc')
    k('v_cmp_eq_u32 vcc, 2, v61')
    k('v_cndmask_b32 v108, v108, v110, vcc')
    k('v_cmp_eq_u32 vcc, 3, v61')
    k('v_cndmask_b32 v108, v108, v111, vcc')
    k('v_lshlrev_b32 v120, 4, v62')
    k('v_lshl_add_u32 v120, v61, 2, v120')
    k('buffer_atomic_add_f32 v108, v120, s[28:31], 0 offen')
    st()
    k('s_waitcnt vmcnt(0)' if DIAG else '')
    st()
    st.flush(8, 9, 2 + layer - 1, 6, 7, 60)
    k.label(f'L_k2l{layer}_done')
    k('s_endpgm')
    return k, 131072


def normalize_dword(k, x, m, rinv, t0, t1, s_mask, out):
    k(f'v_lshlrev_b32 v{t0}, 16, v{x}')
    k(f'v_and_b32 v{t1}, s{s_mask}, v{x}')
    k(f'v_sub_f32 v{t0}, v{t0}, v{m}')
    k(f'v_sub_f32 v{t1}, v{t1}, v{m}')
    k(f'v_cvt_pk_bf16_f32 v{t0}, v{t0}, v{t1}')
    k(f'v_and_b32 v{t1}, s{s_mask}, v{t0}')
    k(f'v_lshlrev_b32 v{t0}, 16, v{t0}')
    k(f'v_mul_f32 v{t0}, v{t0}, v{rinv}')
    k(f'v_mul_f32 v{t1}, v{t1}, v{rinv}')
    k(f'v_cvt_pk_bf16_f32 v{out}, v{t0}, v{t1}')


def add_dwords(k, a, b, t0, t1, t2, t3, s_mask, out):
    k(f'v_lshlrev_b32 v{t0}, 16, v{a}')
    k(f'v_and_b32 v{t1}, s{s_mask}, v{a}')
    k(f'v_lshlrev_b32 v{t2}, 16, v{b}')
    k(f'v_and_b32 v{t3}, s{s_mask}, v{b}')
    k(f'v_add_f32 v{t0}, v{t0}, v{t2}')
    k(f'v_add_f32 v{t1}, v{t1}, v{t3}')
    k(f'v_cvt_pk_bf16_f32 v{out}, v{t0}, v{t1}')


def dpp_max_reduce(k, src, t):
    k(f'v_max_u32_dpp v{t}, v{src}, v{src} quad_perm:[1,0,3,2] row_mask:0xf bank_mask:0xf')
    k(f'v_max_u32_dpp v{t}, v{t}, v{t} quad_perm:[2,3,0,1] row_mask:0xf bank_mask:0xf')
    k(f'v_max_u32_dpp v{t}, v{t}, v{t} row_half_mirror row_mask:0xf bank_mask:0xf')
    k(f'v_max_u32_dpp v{t}, v{t}, v{t} row_mirror row_mask:0xf bank_mask:0xf')
    k(f'v_max_u32_dpp v{t}, v{t}, v{t} row_bcast:15 row_mask:0xa bank_mask:0xf')
    k(f'v_max_u32_dpp v{t}, v{t}, v{t} row_bcast:31 row_mask:0xc bank_mask:0xf')


NFFN = 56
NLN = 128
PART_OFF = 9 * MB


def k4(layer):
    k = Kern(f'k4l{layer}_kernel', nvgpr=128, accum_offset=128, nsgpr=100)
    st = Stamps(k, base=80)
    GOFF, UOFF, DOFF, RED = 0, 32768, 65536, 98304
    CAND = RED + 16384
    HB = CAND + 128
    CNT = HB + 1024
    k(f's_cmp_ge_u32 s2, {NFFN + NLN}')
    k(f's_cbranch_scc1 L_k4l{layer}_done')
    st()
    k('s_load_dwordx2 s[4:5], s[0:1], 80')
    k('s_load_dwordx2 s[6:7], s[0:1], 40')
    k('s_load_dwordx2 s[8:9], s[0:1], 48')
    k('s_load_dwordx2 s[10:11], s[0:1], 32')
    k('s_load_dwordx2 s[70:71], s[0:1], 64')
    k('s_load_dwordx2 s[66:67], s[0:1], 56')
    k('v_and_b32 v1, 63, v0')
    k('v_lshrrev_b32 v2, 6, v0')
    k('v_readfirstlane_b32 s68, v2')
    k('s_mov_b32 s72, 0xffff0000')
    k('s_mov_b32 s73, 0x3b000000')
    k('s_mov_b32 s74, 0x3727c5ac')
    k('v_lshlrev_b32 v3, 4, v0')
    k('s_waitcnt lgkmcnt(0)')
    srd(k, 12, 4, 5, XBYTES, X1_OFF if layer == 1 else X3_OFF)
    srd(k, 24, 4, 5, 32768, ST_OFF + (layer - 1) * 32768)
    k(f's_cmp_ge_u32 s2, {NFFN}')
    k(f's_cbranch_scc1 L_k4l{layer}_ln')
    k('s_and_b32 s69, s2, 7')
    k('s_mul_i32 s69, s69, 7')
    k('s_lshr_b32 s75, s2, 3')
    k('s_add_u32 s69, s69, s75')
    k('s_cmp_lt_u32 s68, 4')
    k(f's_cbranch_scc1 L_k4l{layer}_comp')
    k('s_sub_u32 s68, s68, 4')
    srd(k, 16, 6, 7, 512 * 1792 * 2)
    srd(k, 20, 8, 9, 512 * 1792 * 2)
    srd(k, 44, 66, 67, 1792 * 512 * 2)
    k('s_barrier')
    k('v_lshrrev_b32 v5, 2, v1')
    k('v_mul_u32_u24 v6, 3584, v5')
    k('v_lshrrev_b32 v7, 5, v1')
    k('v_lshlrev_b32 v7, 1, v7')
    k('v_and_b32 v8, 3, v1')
    k('v_xor_b32 v7, v7, v8')
    k('v_lshl_add_u32 v6, v7, 4, v6')
    k('s_lshl_b32 s75, s69, 6')
    k('v_add_u32 v6, s75, v6')
    k('s_mul_i32 s76, s68, 458752')
    k('s_lshl_b32 s77, s68, 13')
    for mat in range(2):
        for i in range(8):
            k(f's_add_u32 s40, s76, {16 * i * 3584}')
            k(f's_add_u32 m0, s77, {mat * 32768 + i * 1024}')
            k(f'buffer_load_dwordx4 v6, s[{16+4*mat}:{19+4*mat}], s40 offen lds')
    k('v_lshrrev_b32 v7, 1, v1')
    k('v_and_b32 v8, 1, v1')
    k('s_lshl_b32 s78, s69, 15')
    k('s_lshl_b32 s79, s68, 13')
    k('s_add_u32 s78, s78, s79')
    for i in range(8):
        k('s_and_b32 s40, s68, 1')
        k('s_lshl_b32 s40, s40, 2')
        k(f's_or_b32 s40, s40, {i & 3}')
        k('v_xor_b32 v9, s40, v7')
        k('v_lshlrev_b32 v9, 5, v9')
        k('v_lshl_add_u32 v9, v8, 4, v9')
        k(f's_add_u32 s41, s78, {i * 1024}')
        k(f's_add_u32 m0, s79, {DOFF + i * 1024}')
        k('buffer_load_dwordx4 v9, s[44:47], s41 offen lds')
    k('s_waitcnt vmcnt(0)')
    k('s_barrier')
    k('s_endpgm')
    k.label(f'L_k4l{layer}_comp')
    for i in range(8):
        k(f's_mov_b32 s40, {4096 * i}')
        k(f'buffer_load_dwordx4 v[{32+4*i}:{35+4*i}], v3, s[24:27], s40 offen')
    srd(k, 28, 10, 11, 1024)
    k('v_lshlrev_b32 v4, 4, v1')
    k('buffer_load_dwordx4 v[64:67], v4, s[28:31], 0 offen')
    srd(k, 32, 4, 5, SM_SIZE, SM_OFF)
    k('s_lshl_b32 s77, s68, 13')
    k(f'v_mov_b32 v5, {CNT}')
    k('v_mov_b32 v6, 0')
    k('ds_write_b32 v5, v6')
    k('s_waitcnt lgkmcnt(0)')
    k('s_barrier')
    st()
    k('v_mov_b32 v8, 0x3f803f80')
    k('v_mov_b32 v9, 0')
    k('s_waitcnt vmcnt(0)')
    st()
    for d in range(4):
        k(f'v_dot2c_f32_bf16 v9, v{64+d}, v8')
    k('v_add_f32_dpp v9, v9, v9 quad_perm:[1,0,3,2] row_mask:0xf bank_mask:0xf')
    k('v_add_f32_dpp v9, v9, v9 quad_perm:[2,3,0,1] row_mask:0xf bank_mask:0xf')
    k('v_add_f32_dpp v9, v9, v9 row_half_mirror row_mask:0xf bank_mask:0xf')
    k('v_add_f32_dpp v9, v9, v9 row_mirror row_mask:0xf bank_mask:0xf')
    xrow_reduce(k, 9, 10)
    for i in range(8):
        b = 32 + 4 * i
        ln_scalars(k, b, b + 1, 10, 11, 12, 13, 72, 73, 74)
        k(f'v_fma_f32 v12, -v10, v9, v{b+2}')
        k('v_mul_f32 v12, v12, v11')
        k('v_cvt_pk_bf16_f32 v12, v12, v12')
        k('v_lshlrev_b32 v12, 16, v12')
        k('v_ashrrev_i32 v13, 31, v12')
        k('v_or_b32 v13, 0x80000000, v13')
        k('v_xor_b32 v12, v12, v13')
        k(f'v_sub_u32 v13, {2047 - 256 * i}, v0')
        k(f'v_and_or_b32 v{16+i}, v12, s72, v13')
    regs = list(range(16, 24))
    spare = 24
    net = [(0, 1), (2, 3), (4, 5), (6, 7), (0, 2), (1, 3), (4, 6), (5, 7), (1, 2), (5, 6), (0, 4), (3, 7),
           (1, 5), (2, 6), (1, 4), (3, 6), (2, 4), (3, 5), (3, 4)]
    for (a, b) in net:
        k(f'v_max_u32 v{spare}, v{regs[a]}, v{regs[b]}')
        k(f'v_min_u32 v{regs[b]}, v{regs[a]}, v{regs[b]}')
        regs[a], spare = spare, regs[a]
    k('v_mov_b32 v26, 0')
    st()
    for n in range(8):
        dpp_max_reduce(k, regs[0], 25)
        k(f'v_readlane_b32 s{50+n}, v25, 63')
        k(f'v_writelane_b32 v26, s{50+n}, {n}')
        if n < 7:
            k(f'v_cmp_eq_u32 vcc, s{50+n}, v{regs[0]}')
            for i in range(7 - n):
                k(f'v_cndmask_b32 v{regs[i]}, v{regs[i]}, v{regs[i+1]}, vcc')
    k('s_lshl_b32 s40, s68, 5')
    k('v_lshlrev_b32 v27, 2, v1')
    k('v_add_u32 v27, s40, v27')
    k(f'v_add_u32 v27, {RED}, v27')
    k('v_cmp_gt_u32 vcc, 8, v1')
    k('s_and_saveexec_b64 s[48:49], vcc')
    k(f'ds_write_b32 v27, v26 offset:{CAND - RED}')
    k('s_mov_b64 exec, 1')
    k('v_mov_b32 v6, 1')
    k('ds_add_u32 v5, v6')
    k('s_mov_b64 exec, s[48:49]')
    k.label(f'L_k4l{layer}_poll')
    k('ds_read_b32 v6, v5')
    k('s_waitcnt lgkmcnt(0)')
    k('v_readfirstlane_b32 s40, v6')
    k('s_cmp_lt_u32 s40, 4')
    k(f's_cbranch_scc1 L_k4l{layer}_poll')
    k('v_and_b32 v27, 31, v1')
    k('v_lshlrev_b32 v27, 2, v27')
    k(f'v_add_u32 v27, {RED}, v27')
    k(f'ds_read_b32 v28, v27 offset:{CAND - RED}')
    k('v_mov_b32 v26, 0')
    k('s_waitcnt lgkmcnt(0)')
    st()
    for n in range(8):
        dpp_max_reduce(k, 28, 25)
        k(f'v_readlane_b32 s{58+n}, v25, 63')
        k(f'v_writelane_b32 v26, s{58+n}, {n}')
        if n < 7:
            k(f'v_cmp_eq_u32 vcc, s{58+n}, v28')
            k('v_cndmask_b32 v28, v28, 0, vcc')
    st()
    k('v_and_b32 v27, 7, v1')
    k('v_lshlrev_b32 v27, 2, v27')
    k('ds_bpermute_b32 v28, v27, v26')
    k('v_lshrrev_b32 v61, 4, v1')
    k('s_or_b32 s40, s2, s68')
    k('s_cmp_lg_u32 s40, 0')
    k(f's_cbranch_scc1 L_k4l{layer}_nokeys')
    k('v_lshlrev_b32 v27, 2, v1')
    k('v_cmp_gt_u32 vcc, 8, v1')
    k('s_and_saveexec_b64 s[48:49], vcc')
    k(f's_mov_b32 s40, {SEL_REL}')
    k('buffer_store_dword v26, v27, s[32:35], s40 offen')
    k('s_mov_b64 exec, s[48:49]')
    k.label(f'L_k4l{layer}_nokeys')
    k('s_waitcnt lgkmcnt(0)')
    k('v_and_b32 v28, 0x7ff, v28')
    k('v_sub_u32 v28, 2047, v28')
    k('v_lshlrev_b32 v29, 10, v28')
    k('v_lshl_add_u32 v29, v61, 4, v29')
    k('s_lshl_b32 s40, s68, 8')
    k('v_lshlrev_b32 v30, 4, v28')
    k('buffer_load_dwordx2 v[14:15], v30, s[24:27], 0 offen')
    for s in range(4):
        k(f'buffer_load_dwordx4 v[{32+4*s}:{35+4*s}], v29, s[12:15], s40 offen offset:{s*64}')
    k('v_bfe_u32 v62, v1, 2, 2')
    k('v_lshl_add_u32 v62, v61, 3, v62')
    k('v_lshlrev_b32 v62, 6, v62')
    k('v_and_b32 v63, 1, v61')
    k('v_lshl_add_u32 v62, v63, 5, v62')
    k('v_and_b32 v63, 3, v1')
    k('v_lshl_add_u32 v62, v63, 3, v62')
    k('v_add_u32 v62, s77, v62')
    k('v_xor_b32 v63, 32, v62')
    k('s_barrier')
    st()
    FR = lambda mat, tl, s: 64 + ((mat * 2 + tl) * 4 + s) * 4
    cnt = 0
    for s in range(4):
        for mat in range(2):
            for tl in range(2):
                b = FR(mat, tl, s)
                if cnt >= 12:
                    k('s_waitcnt lgkmcnt(10)')
                k(f'ds_read_b64_tr_b16 v[{b}:{b+1}], v{62+tl} offset:{mat*32768 + s*2048}')
                k(f'ds_read_b64_tr_b16 v[{b+2}:{b+3}], v{62+tl} offset:{mat*32768 + s*2048 + 256}')
                cnt += 2
    k('s_waitcnt vmcnt(4)')
    ln_scalars(k, 14, 15, 10, 11, 12, 13, 72, 73, 74)
    k('s_waitcnt vmcnt(0)')
    for d in range(16):
        normalize_dword(k, 32 + d, 10, 11, 12, 13, 72, 32 + d)
    for v in range(48, 64):
        if v not in (61,):
            pass
    AC = lambda mat, tl: 16 + (mat * 2 + tl) * 4
    for v in range(16, 32):
        k(f'v_mov_b32 v{v}, 0')
    k('s_waitcnt lgkmcnt(0)')
    for s in range(4):
        for mat in range(2):
            for tl in range(2):
                b = FR(mat, tl, s)
                a = AC(mat, tl)
                k(f'v_mfma_f32_16x16x32_bf16 v[{a}:{a+3}], v[{b}:{b+3}], v[{32+4*s}:{35+4*s}], v[{a}:{a+3}]')
    st()
    k('s_lshl_b32 s40, s68, 12')
    k('v_lshlrev_b32 v56, 4, v1')
    k(f'v_add_u32 v56, {RED}, v56')
    k('v_add_u32 v57, s40, v56')
    for q in range(4):
        k(f'ds_write_b128 v57, v[{16+4*q}:{19+4*q}] offset:{q*1024}')
    k('s_waitcnt lgkmcnt(0)')
    k('s_barrier')
    k('s_cmp_ge_u32 s68, 2')
    k(f's_cbranch_scc1 L_k4l{layer}_skiph')
    k('s_lshl_b32 s40, s68, 10')
    k('v_add_u32 v57, s40, v56')
    for w in range(4):
        k(f'ds_read_b128 v[{64+8*w}:{67+8*w}], v57 offset:{w*4096}')
        k(f'ds_read_b128 v[{68+8*w}:{71+8*w}], v57 offset:{w*4096 + 2048}')
    k('s_waitcnt lgkmcnt(0)')
    for e in range(8):
        k(f'v_add_f32 v{64+e}, v{64+e}, v{72+e}')
        k(f'v_add_f32 v{80+e}, v{80+e}, v{88+e}')
    for e in range(8):
        k(f'v_add_f32 v{64+e}, v{64+e}, v{80+e}')
    for e in range(0, 8, 2):
        k(f'v_cvt_pk_bf16_f32 v72, v{64+e}, v{65+e}')
        k(f'v_lshlrev_b32 v{64+e}, 16, v72')
        k(f'v_and_b32 v{65+e}, s72, v72')
    k('s_mov_b32 s40, 0xbfb8aa3b')
    for e in range(4):
        k(f'v_mul_f32 v{72+e}, s40, v{64+e}')
    for e in range(4):
        k(f'v_exp_f32 v{72+e}, v{72+e}')
    for e in range(4):
        k(f'v_add_f32 v{72+e}, 1.0, v{72+e}')
    for e in range(4):
        k(f'v_rcp_f32 v{72+e}, v{72+e}')
    for e in range(4):
        k(f'v_mul_f32 v{64+e}, v{64+e}, v{72+e}')
    for e in range(0, 4, 2):
        k(f'v_cvt_pk_bf16_f32 v72, v{64+e}, v{65+e}')
        k(f'v_lshlrev_b32 v{64+e}, 16, v72')
        k(f'v_and_b32 v{65+e}, s72, v72')
    for e in range(4):
        k(f'v_mul_f32 v{64+e}, v{64+e}, v{68+e}')
    k('v_cvt_pk_bf16_f32 v76, v64, v65')
    k('v_cvt_pk_bf16_f32 v77, v66, v67')
    k('v_and_b32 v58, 15, v1')
    k('v_lshlrev_b32 v58, 6, v58')
    k('v_lshl_add_u32 v58, v61, 3, v58')
    k('s_lshl_b32 s40, s68, 5')
    k('v_add_u32 v58, s40, v58')
    k(f'v_add_u32 v58, {RED}, v58')
    k(f'ds_write_b64 v58, v[76:77] offset:{HB - RED}')
    k.label(f'L_k4l{layer}_skiph')
    k('s_waitcnt lgkmcnt(0)')
    k('s_barrier')
    k('v_and_b32 v58, 15, v1')
    k('v_lshlrev_b32 v59, 6, v58')
    k('v_lshl_add_u32 v59, v61, 4, v59')
    k(f'v_add_u32 v59, {RED}, v59')
    k(f'ds_read_b128 v[32:35], v59 offset:{HB - RED}')
    k('v_bfe_u32 v60, v1, 2, 2')
    k('v_lshl_add_u32 v36, v61, 3, v60')
    k('v_lshlrev_b32 v36, 10, v36')
    k('v_and_b32 v37, 3, v1')
    k('v_lshl_add_u32 v36, v37, 3, v36')
    k(f'v_add_u32 v36, {DOFF}, v36')
    k('v_and_b32 v37, 1, v61')
    k('v_lshl_or_b32 v60, v37, 2, v60')
    k('s_lshl_b32 s40, s68, 8')
    k('v_add_u32 v36, s40, v36')
    for j in range(8):
        k(f'v_xor_b32 v37, {j}, v60')
        k(f'v_lshl_add_u32 v{40+j}, v37, 5, v36')
    for j in range(7):
        k(f'ds_read_b64_tr_b16 v[{64+4*j}:{65+4*j}], v{40+j}')
        k(f'ds_read_b64_tr_b16 v[{66+4*j}:{67+4*j}], v{40+j} offset:4096')
    k('s_waitcnt lgkmcnt(8)')
    k('ds_read_b64_tr_b16 v[92:93], v47')
    k('ds_read_b64_tr_b16 v[94:95], v47 offset:4096')
    srd(k, 36, 4, 5, 56 * 16384, PART_OFF)
    k('v_lshlrev_b32 v38, 11, v58')
    k('v_lshl_add_u32 v38, v61, 4, v38')
    k('s_lshl_b32 s40, s69, 14')
    k('s_lshl_b32 s41, s68, 9')
    k('s_add_u32 s40, s40, s41')
    k('v_add_u32 v38, s40, v38')
    k('s_waitcnt lgkmcnt(0)')
    for j in range(8):
        k(f'v_mfma_f32_16x16x32_bf16 v[{96+4*j}:{99+4*j}], v[{64+4*j}:{67+4*j}], v[32:35], 0')
    k('v_cmp_gt_u32 vcc, 8, v58')
    k('s_and_saveexec_b64 s[48:49], vcc')
    for j in range(8):
        k(f'buffer_store_dwordx4 v[{96+4*j}:{99+4*j}], v38, s[36:39], 0 offen offset:{j*64}')
    k('s_mov_b64 exec, s[48:49]')
    st()
    k('s_waitcnt vmcnt(0)' if DIAG else '')
    st()
    st.flush(4, 5, 4 + layer - 1, 6, 7, 60)
    k(f's_branch L_k4l{layer}_done')
    k.label(f'L_k4l{layer}_ln')
    if layer == 1:
        srd(k, 36, 4, 5, XBYTES, X2_OFF)
    else:
        srd(k, 36, 70, 71, XBYTES)
    k(f's_sub_u32 s40, s2, {NFFN}')
    k('s_lshl_b32 s40, s40, 4')
    k('v_lshrrev_b32 v2, 5, v0')
    k('v_add_u32 v2, s40, v2')
    k('v_lshlrev_b32 v3, 4, v2')
    k('buffer_load_dwordx2 v[14:15], v3, s[24:27], 0 offen')
    k('v_and_b32 v4, 31, v0')
    k('v_lshlrev_b32 v3, 10, v2')
    k('v_lshl_add_u32 v3, v4, 4, v3')
    for s in range(2):
        k(f'buffer_load_dwordx4 v[{32+4*s}:{35+4*s}], v3, s[12:15], 0 offen offset:{s*512}')
    k('s_waitcnt vmcnt(2)')
    ln_scalars(k, 14, 15, 10, 11, 12, 13, 72, 73, 74)
    for s in range(2):
        k('s_waitcnt vmcnt(1)')
        for d in range(4):
            x = 32 + 4 * s + d
            normalize_dword(k, x, 10, 11, 12, 13, 72, 16)
            add_dwords(k, x, 16, 12, 13, 17, 18, 72, 48 + 4 * s + d)
        k(f'buffer_store_dwordx4 v[{48+4*s}:{51+4*s}], v3, s[36:39], 0 offen offset:{s*512}')
    k.label(f'L_k4l{layer}_done')
    k('s_endpgm')
    return k, HB + 1024 + 64


def k5(layer):
    k = Kern(f'k5l{layer}_kernel', nvgpr=64, accum_offset=64, nsgpr=100)
    st = Stamps(k, base=80)
    k('s_cmp_ge_u32 s2, 32')
    k(f's_cbranch_scc1 L_k5l{layer}_done')
    st()
    k('s_load_dwordx2 s[4:5], s[0:1], 80')
    k('s_load_dwordx2 s[70:71], s[0:1], 64')
    k('s_mov_b32 s72, 0xffff0000')
    k('s_mov_b32 s73, 0x3b000000')
    k('s_mov_b32 s74, 0x3727c5ac')
    k('s_lshr_b32 s68, s2, 2')
    k('s_and_b32 s69, s2, 3')
    k('v_and_b32 v1, 31, v0')
    k('v_lshrrev_b32 v2, 5, v0')
    k('v_mul_u32_u24 v3, 114688, v2')
    k('v_lshl_add_u32 v3, v1, 4, v3')
    k('s_lshl_b32 s40, s68, 11')
    k('s_lshl_b32 s41, s69, 9')
    k('s_add_u32 s40, s40, s41')
    k('v_add_u32 v3, s40, v3')
    k('s_waitcnt lgkmcnt(0)')
    srd(k, 36, 4, 5, 56 * 16384, PART_OFF)
    srd(k, 32, 4, 5, SM_SIZE, SM_OFF)
    k('s_lshl_b32 s41, s68, 2')
    k(f's_add_u32 s41, s41, {SEL_REL}')
    k('v_mov_b32 v4, 0')
    k('buffer_load_dword v26, v4, s[32:35], s41 offen')
    for i in range(7):
        k(f's_mov_b32 s40, {i * 16384}')
        k(f'buffer_load_dwordx4 v[{32+4*i}:{35+4*i}], v3, s[36:39], s40 offen')
    srd(k, 12, 4, 5, XBYTES, X1_OFF if layer == 1 else X3_OFF)
    srd(k, 24, 4, 5, 32768, ST_OFF + (layer - 1) * 32768)
    if layer == 1:
        srd(k, 44, 4, 5, XBYTES, X2_OFF)
    else:
        srd(k, 44, 70, 71, XBYTES)
    k('s_waitcnt vmcnt(7)')
    k('v_and_b32 v28, 0x7ff, v26')
    k('v_sub_u32 v28, 2047, v28')
    k('v_lshlrev_b32 v30, 4, v28')
    k('buffer_load_dwordx2 v[14:15], v30, s[24:27], 0 offen')
    k('v_lshlrev_b32 v31, 10, v28')
    k('v_lshl_add_u32 v31, v1, 3, v31')
    k('s_lshl_b32 s41, s69, 8')
    k('v_add_u32 v31, s41, v31')
    k('buffer_load_dwordx2 v[16:17], v31, s[12:15], 0 offen')
    k('s_waitcnt vmcnt(2)')
    for i in range(1, 7):
        for e in range(4):
            k(f'v_add_f32 v{32+e}, v{32+e}, v{32+4*i+e}')
    k('v_lshlrev_b32 v5, 4, v0')
    k('ds_write_b128 v5, v[32:35]')
    k('s_waitcnt lgkmcnt(0)')
    k('s_barrier')
    k('v_cmp_gt_u32 vcc, 32, v0')
    k('s_and_saveexec_b64 s[48:49], vcc')
    k(f's_cbranch_execz L_k5l{layer}_done')
    for g in range(8):
        k(f'ds_read_b128 v[{32+4*g}:{35+4*g}], v5 offset:{g*512}')
    k('s_waitcnt lgkmcnt(0)')
    for g in range(1, 8):
        for e in range(4):
            k(f'v_add_f32 v{32+e}, v{32+e}, v{32+4*g+e}')
    for e in range(0, 4, 2):
        k(f'v_cvt_pk_bf16_f32 v40, v{32+e}, v{33+e}')
        k(f'v_lshlrev_b32 v{32+e}, 16, v40')
        k(f'v_and_b32 v{33+e}, s72, v40')
    k('v_and_b32 v20, s72, v26')
    k('v_ashrrev_i32 v21, 31, v20')
    k('v_not_b32 v21, v21')
    k('v_or_b32 v21, 0x80000000, v21')
    k('v_xor_b32 v20, v20, v21')
    k('v_and_b32 v20, s72, v20')
    k('s_mov_b32 s40, 0xbfb8aa3b')
    k('v_mul_f32 v20, s40, v20')
    k('v_exp_f32 v20, v20')
    k('v_add_f32 v20, 1.0, v20')
    k('v_rcp_f32 v20, v20')
    k('v_cvt_pk_bf16_f32 v20, v20, v20')
    k('v_lshlrev_b32 v20, 16, v20')
    for e in range(4):
        k(f'v_mul_f32 v{32+e}, v{32+e}, v20')
    k('v_cvt_pk_bf16_f32 v44, v32, v33')
    k('v_cvt_pk_bf16_f32 v45, v34, v35')
    k('s_waitcnt vmcnt(0)')
    ln_scalars(k, 14, 15, 10, 11, 12, 13, 72, 73, 74)
    for d in range(2):
        normalize_dword(k, 16 + d, 10, 11, 12, 13, 72, 18)
        add_dwords(k, 18, 44 + d, 12, 13, 19, 22, 72, 18)
        add_dwords(k, 16 + d, 18, 12, 13, 19, 22, 72, 46 + d)
    k('buffer_store_dwordx2 v[46:47], v31, s[44:47], 0 offen')
    k.label(f'L_k5l{layer}_done')
    k('s_endpgm')
    return k, 4096


def build(path, extra_launch=0):
    hdr = open('interleave_layers__sliding_local_dilated__moe_arch_mod__prompt.s.ref').read().split('; Override')[0]
    ks = []
    launches = []
    for layer in (1, 2):
        for fn, grid, blk in ((k1, 256, 512), (k2, 256, 512), (k4, NFFN + NLN, 512), (k5, 32, 256)):
            kk, lds = fn(layer)
            ks.append(kk)
            launches.append(f'; @launch kernel={kk.name} grid=({grid},1,1) block=({blk},1,1) lds={lds}')
    if extra_launch:
        e = Kern('nop_kernel', nvgpr=8, accum_offset=8, nsgpr=16)
        e('s_endpgm')
        ks.append(e)
        for i in range(extra_launch):
            launches.append('; @launch kernel=nop_kernel grid=(256,1,1) block=(256,1,1) lds=0')
    out = hdr + '\n'.join(launches) + '\n.amdgcn_target "amdgcn-amd-amdhsa--gfx950"\n.text\n'
    for kk in ks:
        out += kk.text()
    out += '.section .rodata,"a"\n'
    for kk in ks:
        out += kk.desc()
    open(path, 'w').write(out)


if __name__ == '__main__':
    path = sys.argv[1] if len(sys.argv) > 1 else 'interleave_layers__sliding_local_dilated__moe_arch_mod__prompt.s'
    if len(sys.argv) > 3:
        DIAG = True
    build(path, int(sys.argv[2]) if len(sys.argv) > 2 else 0)
```

```python
import sys
sys.path.insert(0, 'gen')
from asmlib import Kern

MB = 1 << 20
O_OFF = 0
X1_OFF = 2 * MB
X2_OFF = 4 * MB
X3_OFF = 6 * MB
ST_OFF = 8 * MB
SM_OFF = 8 * MB + 65536
H_REL = 0
SEL_REL = 32768
SM_SIZE = 65536

XBYTES = 2048 * 512 * 2
NPF = 64


def srd(k, d, lo, hi, size, add=0):
    if add:
        k(f's_add_u32 s{d}, s{lo}, {add}')
        k(f's_addc_u32 s{d+1}, s{hi}, 0')
        k(f's_and_b32 s{d+1}, s{d+1}, 0xffff')
    else:
        k(f's_mov_b32 s{d}, s{lo}')
        k(f's_and_b32 s{d+1}, s{hi}, 0xffff')
    k(f's_mov_b32 s{d+2}, {size}')
    k(f's_mov_b32 s{d+3}, 0x00020000')


DIAG = False
DBG_OFF = 16 * MB


class Stamps:
    def __init__(self, k, base=64):
        self.k = k
        self.n = 0
        self.base = base

    def __call__(self):
        if DIAG == 2:
            if self.n == 0:
                self.rt()
            return
        if DIAG:
            b = self.base + 2 * self.n
            self.k(f's_memtime s[{b}:{b+1}]')
            self.n += 1

    def rt(self):
        if DIAG:
            b = self.base + 2 * self.n
            self.k(f's_memrealtime s[{b}:{b+1}]')
            self.n += 1

    def flush(self, ws_lo, ws_hi, slot, vt0, vt1, sd):
        if not DIAG:
            return
        k = self.k
        n_save = self.n
        if DIAG == 2:
            k('s_waitcnt vmcnt(0)')
            self.rt()
        k('s_waitcnt lgkmcnt(0)')
        srd(k, sd, ws_lo, ws_hi, 1 << 20, DBG_OFF + slot * (1 << 18))
        k(f'v_mov_b32 v{vt0}, 0')
        for i in range(self.n):
            k(f'v_writelane_b32 v{vt0}, s{self.base + 2*i}, {i}')
        k(f'v_lshrrev_b32 v{vt1}, 6, v0')
        k(f's_lshl_b32 s{self.base}, s2, 3')
        k(f'v_add_u32 v{vt1}, s{self.base}, v{vt1}')
        k(f'v_lshlrev_b32 v{vt1}, 6, v{vt1}')
        k(f'v_and_b32 v{vt0+1 if False else vt1+1}, 63, v0')
        k(f'v_lshl_add_u32 v{vt1}, v{vt1+1}, 2, v{vt1}')
        k(f'v_cmp_gt_u32 vcc, 16, v{vt1+1}')
        k('s_and_b64 exec, exec, vcc')
        k(f'buffer_store_dword v{vt0}, v{vt1}, s[{sd}:{sd+3}], 0 offen')
        self.n = n_save


def xrow_reduce(k, v, tmp):
    k(f'v_mov_b32 v{tmp}, v{v}')
    k(f'v_permlane16_swap_b32 v{v}, v{tmp}')
    k(f'v_add_f32 v{v}, v{v}, v{tmp}')
    k(f'v_mov_b32 v{tmp}, v{v}')
    k(f'v_permlane32_swap_b32 v{v}, v{tmp}')
    k(f'v_add_f32 v{v}, v{v}, v{tmp}')


def ln_scalars(k, s1, s2, m, rinv, t1, t2, s_mask, s_inv512, s_eps):
    k(f'v_mul_f32 v{t1}, s{s_inv512}, v{s1}')
    k(f'v_mul_f32 v{t2}, s{s_inv512}, v{s2}')
    k(f'v_fma_f32 v{t2}, -v{t1}, v{t1}, v{t2}')
    k(f'v_max_f32 v{t2}, 0, v{t2}')
    k(f'v_cvt_pk_bf16_f32 v{t1}, v{t1}, v{t2}')
    k(f'v_lshlrev_b32 v{m}, 16, v{t1}')
    k(f'v_and_b32 v{t2}, s{s_mask}, v{t1}')
    k(f'v_add_f32 v{t2}, s{s_eps}, v{t2}')
    k(f'v_cvt_pk_bf16_f32 v{t2}, v{t2}, v{t2}')
    k(f'v_lshlrev_b32 v{t2}, 16, v{t2}')
    k(f'v_sqrt_f32 v{t2}, v{t2}')
    k(f'v_cvt_pk_bf16_f32 v{t2}, v{t2}, v{t2}')
    k(f'v_lshlrev_b32 v{t2}, 16, v{t2}')
    k(f'v_rcp_f32 v{rinv}, v{t2}')


def k1(layer):
    k = Kern(f'k1l{layer}_kernel', nvgpr=200, accum_offset=200, nsgpr=100)
    st = Stamps(k)
    SLOT = 34816
    WOFF = 10240
    STAT = 0
    QKVA = 1024
    ROWB = 112
    ACC = lambda sg, t: 16 + (sg * 5 + t) * 4
    CS = lambda sg: 76 + 4 * sg
    XFB = lambda b, t: 88 + b * 24 + t * 4
    WFB = lambda b, sg: 136 + b * 12 + sg * 4
    ONES = 160
    k('s_cmp_ge_u32 s2, 256')
    k(f's_cbranch_scc1 L_k1l{layer}_done')
    st()
    k(f's_load_dwordx2 s[4:5], s[0:1], {0 if layer == 1 else 80}')
    k('s_load_dwordx2 s[6:7], s[0:1], 8')
    k('s_load_dwordx2 s[8:9], s[0:1], 80')
    k('s_and_b32 s28, s2, 7')
    k('s_lshr_b32 s29, s2, 3')
    k('s_lshr_b32 s30, s28, 1')
    k('s_lshl_b32 s30, s30, 3')
    k('s_lshr_b32 s31, s29, 2')
    k('s_add_u32 s30, s30, s31')
    k('s_and_b32 s28, s28, 1')
    k('s_lshl_b32 s28, s28, 2')
    k('s_and_b32 s29, s29, 3')
    k('s_add_u32 s29, s28, s29')
    k('s_lshl_b32 s31, s30, 6')
    k('v_and_b32 v1, 63, v0')
    k('v_lshrrev_b32 v2, 6, v0')
    k('v_readfirstlane_b32 s30, v2')
    k('v_lshrrev_b32 v10, 3, v1')
    k('v_and_b32 v11, 7, v1')
    k('v_lshrrev_b32 v12, 4, v1')
    k('s_cmp_lt_u32 s30, 4')
    k(f's_cbranch_scc1 L_k1l{layer}_comp')
    k('s_sub_u32 s30, s30, 4')
    k('s_lshl_b32 s34, s30, 4')
    k('s_add_u32 s34, s34, s31')
    k('v_add_u32 v13, s34, v10')
    k('v_lshlrev_b32 v13, 10, v13')
    k('v_xor_b32 v14, v11, v12')
    k('v_lshl_add_u32 v2, v14, 4, v13')
    k('v_xor_b32 v14, 4, v14')
    k('v_lshl_add_u32 v3, v14, 4, v13')
    k('v_add_u32 v3, 8192, v3')
    k('s_lshl_b32 s34, s30, 2')
    k('s_add_u32 s34, s34, s31')
    k('s_sub_u32 s34, s34, 16')
    k('v_add_u32 v13, s34, v10')
    k('v_lshlrev_b32 v13, 10, v13')
    k('s_lshl_b32 s34, s30, 1')
    k('v_add_u32 v14, s34, v12')
    k('v_and_b32 v14, 7, v14')
    k('v_xor_b32 v14, v11, v14')
    k('v_lshl_add_u32 v4, v14, 4, v13')
    k('v_bfe_u32 v13, v10, 1, 1')
    k('s_and_b32 s34, s30, 1')
    k('s_lshl_b32 s34, s34, 1')
    k('v_or_b32 v13, s34, v13')
    k('v_lshrrev_b32 v14, 1, v11')
    k('v_xor_b32 v13, v13, v14')
    k('v_mul_u32_u24 v5, 3072, v10')
    k('v_lshl_add_u32 v5, v13, 5, v5')
    k('v_and_b32 v14, 1, v11')
    k('v_lshl_add_u32 v5, v14, 4, v5')
    k('s_lshl_b32 s34, s29, 7')
    k('v_add_u32 v5, s34, v5')
    k('s_mul_i32 s32, s30, 24576')
    k('s_lshl_b32 s33, s30, 10')
    k('s_lshl_b32 s35, s30, 11')
    k('s_add_u32 s35, s35, 2048')
    k('s_lshl_b32 s36, s30, 9')
    k('s_waitcnt lgkmcnt(0)')
    srd(k, 12, 4, 5, XBYTES, 0 if layer == 1 else X2_OFF)
    srd(k, 16, 6, 7, 512 * 1536 * 2)
    k('s_mov_b64 s[56:57], 0xffffffff')

    def issue_chunk(c):
        sb = (c % 4) * SLOT
        k(f's_mov_b32 s37, {c * 128}')
        k(f's_add_u32 m0, s35, {sb}')
        k('buffer_load_dwordx4 v2, s[12:15], s37 offen lds')
        k(f's_add_u32 m0, s35, {sb + 1024}')
        k('buffer_load_dwordx4 v3, s[12:15], s37 offen lds')
        k(f's_add_u32 m0, s36, {sb}')
        k('s_mov_b64 exec, s[56:57]')
        k('buffer_load_dwordx4 v4, s[12:15], s37 offen lds')
        k('s_mov_b64 exec, -1')
        for sg in range(3):
            for i in range(2):
                k(f's_add_u32 s34, s32, {(c * 64 + 32 * i) * 3072 + sg * 1024}')
                k(f's_add_u32 m0, s33, {sb + WOFF + sg * 8192 + i * 4096}')
                k('buffer_load_dwordx4 v5, s[16:19], s34 offen lds')

    issue_chunk(0)
    issue_chunk(1)
    if layer == 1:
        srd(k, 24, 8, 9, 65536, ST_OFF)
    k('v_lshlrev_b32 v6, 5, v1')
    k('v_add_u32 v6, s35, v6')
    k('v_and_b32 v7, 31, v1')
    k('v_lshlrev_b32 v7, 4, v7')
    k('v_add_u32 v7, s36, v7')
    for v in range(120, 128):
        k(f'v_mov_b32 v{v}, 0')
    k('s_mov_b32 s52, 0xffff0000')
    k('s_mov_b32 s53, 0x3b000000')
    k('s_mov_b32 s54, 0x3727c5ac')
    for c in range(8):
        k(f's_waitcnt vmcnt({9 if c < 7 else 0})')
        k('s_barrier')
        sl = c % 4
        if sl == 2:
            k(f'v_add_u32 v6, {2 * SLOT}, v6')
            k(f'v_add_u32 v7, {2 * SLOT}, v7')
        if sl == 0 and c > 0:
            k(f'v_subrev_u32 v6, {2 * SLOT}, v6')
            k(f'v_subrev_u32 v7, {2 * SLOT}, v7')
        so = (sl & 1) * SLOT
        k(f'ds_read_b128 v[100:103], v6 offset:{so}')
        k(f'ds_read_b128 v[104:107], v6 offset:{so + 16}')
        k(f'ds_read_b128 v[108:111], v7 offset:{so}')
        if c + 2 <= 7:
            issue_chunk(c + 2)
        k('s_waitcnt lgkmcnt(0)')
        for d in range(12):
            acc = 120 if d < 8 else 124
            k(f'v_lshlrev_b32 v112, 16, v{100+d}')
            k(f'v_and_b32 v113, s52, v{100+d}')
            k(f'v_add_f32 v{acc}, v{acc}, v112')
            k(f'v_add_f32 v{acc+1}, v{acc+1}, v113')
            k(f'v_fma_f32 v{acc+2}, v112, v112, v{acc+2}')
            k(f'v_fma_f32 v{acc+3}, v113, v113, v{acc+3}')
    k('v_add_f32 v120, v120, v121')
    k('v_add_f32 v121, v122, v123')
    k('v_add_f32 v122, v124, v125')
    k('v_add_f32 v123, v126, v127')
    for v in range(120, 124):
        k(f'v_add_f32_dpp v{v}, v{v}, v{v} quad_perm:[1,0,3,2] row_mask:0xf bank_mask:0xf')
    for v in range(120, 124):
        k(f'v_add_f32_dpp v{v}, v{v}, v{v} quad_perm:[2,3,0,1] row_mask:0xf bank_mask:0xf')
    for v in range(122, 124):
        k(f'v_add_f32_dpp v{v}, v{v}, v{v} row_half_mirror row_mask:0xf bank_mask:0xf')
    ln_scalars(k, 120, 121, 124, 125, 112, 113, 52, 53, 54)
    ln_scalars(k, 122, 123, 126, 127, 114, 115, 52, 53, 54)
    k('v_lshrrev_b32 v112, 2, v1')
    k('v_lshlrev_b32 v112, 3, v112')
    k('s_lshl_b32 s34, s30, 7')
    k('v_add_u32 v112, s34, v112')
    k(f'ds_write_b64 v112, v[124:125] offset:{STAT}')
    k('v_bfe_u32 v112, v1, 3, 2')
    k('v_lshlrev_b32 v112, 3, v112')
    k('s_lshl_b32 s34, s30, 5')
    k('v_add_u32 v112, s34, v112')
    k(f'ds_write_b64 v112, v[126:127] offset:{STAT + 512}')
    if layer == 1:
        k('s_cmp_lg_u32 s30, 0')
        k(f's_cbranch_scc1 L_k1l{layer}_nz')
        k('v_mov_b32 v100, 0')
        k('v_mov_b32 v101, 0')
        k('v_mov_b32 v102, 0')
        k('v_mov_b32 v103, 0')
        k('s_lshl_b32 s34, s2, 8')
        k('v_lshlrev_b32 v104, 4, v1')
        k('v_add_u32 v104, s34, v104')
        k('v_cmp_gt_u32 vcc, 16, v1')
        k('s_and_saveexec_b64 s[58:59], vcc')
        k('buffer_store_dwordx4 v[100:103], v104, s[24:27], 0 offen')
        k('s_mov_b64 exec, s[58:59]')
        k.label(f'L_k1l{layer}_nz')
    srd(k, 20, 8, 9, XBYTES, O_OFF)
    k('s_waitcnt lgkmcnt(0)')
    k('s_barrier')
    if layer == 1:
        k('s_load_dwordx2 s[60:61], s[0:1], 16')
        k('s_load_dwordx4 s[64:67], s[0:1], 40')
        k('s_load_dwordx2 s[62:63], s[0:1], 56')
        k('s_and_b32 s84, s2, 7')
        k('s_lshr_b32 s85, s2, 3')
        k('v_lshrrev_b32 v20, 5, v1')
        k('v_mul_u32_u24 v20, 3584, v20')
        k('v_and_b32 v21, 31, v1')
        k('v_lshl_add_u32 v20, v21, 4, v20')
        k('v_lshlrev_b32 v21, 4, v1')
        k('s_mul_i32 s34, s84, 448')
        k('s_lshl_b32 s37, s85, 4')
        k('s_lshl_b32 s38, s30, 2')
        k('s_add_u32 s37, s37, s38')
        k('s_mul_i32 s37, s37, 3584')
        k('s_add_u32 s34, s34, s37')
        k('s_waitcnt lgkmcnt(0)')
        srd(k, 68, 64, 65, 512 * 1792 * 2)
        srd(k, 72, 66, 67, 512 * 1792 * 2)
        srd(k, 76, 62, 63, 1792 * 512 * 2)
        srd(k, 80, 60, 61, 512 * 512 * 2)
        k('s_lshl_b32 s37, s85, 4')
        k('s_add_u32 s37, s37, s38')
        k('s_lshl_b32 s37, s37, 10')
        for i in range(4):
            k(f'buffer_load_dwordx4 v[{154+4*i}:{157+4*i}], v21, s[80:83], s37 offen offset:{i*1024}')
        for i in range(2):
            k(f's_add_u32 s37, s34, {2 * i * 3584}')
            k(f'buffer_load_dwordx4 v[{130+8*i}:{133+8*i}], v20, s[68:71], s37 offen')
            k(f'buffer_load_dwordx4 v[{134+8*i}:{137+8*i}], v20, s[72:75], s37 offen')
        k('s_mul_i32 s34, s84, 224')
        k('s_mul_i32 s37, s85, 7')
        k('s_add_u32 s34, s34, s37')
        k('s_add_u32 s34, s34, s30')
        k('s_lshl_b32 s34, s34, 10')
        k('buffer_load_dwordx4 v[146:149], v21, s[76:79], s34 offen')
        k('s_add_u32 s34, s34, 4096')
        k('buffer_load_dwordx4 v[150:153], v21, s[76:79], s34 offen')
    k('s_add_u32 s30, s30, 4')
    k(f's_branch L_k1l{layer}_attn')
    k.label(f'L_k1l{layer}_comp')
    k('s_lshl_b32 s35, s30, 11')
    k('s_add_u32 s35, s35, 2048')
    k('s_waitcnt lgkmcnt(0)')
    srd(k, 20, 8, 9, XBYTES, O_OFF)
    st()
    k('v_and_b32 v10, 15, v1')
    k('v_lshrrev_b32 v13, 1, v10')
    k('v_xor_b32 v13, v13, v12')
    k('v_lshlrev_b32 v6, 7, v10')
    k('v_lshl_add_u32 v6, v13, 4, v6')
    k('v_xor_b32 v7, 64, v6')
    k('v_add_u32 v8, s35, v6')
    k('v_add_u32 v9, s35, v7')
    k('v_bfe_u32 v13, v1, 2, 2')
    k('v_lshl_add_u32 v14, v12, 3, v13')
    k('v_lshlrev_b32 v164, 7, v14')
    k('v_lshrrev_b32 v13, 1, v13')
    k('v_and_b32 v14, 1, v12')
    k('v_lshl_or_b32 v13, v14, 1, v13')
    k('v_xor_b32 v13, s30, v13')
    k('v_lshl_add_u32 v164, v13, 5, v164')
    k('v_and_b32 v14, 3, v1')
    k('v_lshl_add_u32 v164, v14, 3, v164')
    k(f'v_add_u32 v164, {WOFF}, v164')
    for (d, sreg) in ((165, 6), (166, 7), (167, 8), (168, 9), (169, 164)):
        k(f'v_add_u32 v{d}, {2 * SLOT}, v{sreg}')
    for v in range(16, 88):
        k(f'v_mov_b32 v{v}, 0')
    for v in range(ONES, ONES + 4):
        k(f'v_mov_b32 v{v}, 0x3f803f80')
    for v in range(170, 174):
        k(f'v_mov_b32 v{v}, 0')

    def fread(s):
        c, q, b = s // 2, s & 1, s & 1
        slot = c % 4
        hi = slot >= 2
        so = (slot & 1) * SLOT
        xb = (166 if q else 165) if hi else (7 if q else 6)
        sbase = (168 if q else 167) if hi else (9 if q else 8)
        wb = 169 if hi else 164
        for sg in range(3):
            o = so + sg * 8192 + q * 4096
            k(f'ds_read_b64_tr_b16 v[{WFB(b,sg)}:{WFB(b,sg)+1}], v{wb} offset:{o}')
            k(f'ds_read_b64_tr_b16 v[{WFB(b,sg)+2}:{WFB(b,sg)+3}], v{wb} offset:{o+512}')
        for t in range(4):
            k(f'ds_read_b128 v[{XFB(b,t)}:{XFB(b,t)+3}], v{xb} offset:{so + 2048 + t * 2048}')
        k(f'ds_read_b128 v[{XFB(b,4)}:{XFB(b,4)+3}], v{xb} offset:{so}')

    k('s_barrier')
    st()
    fread(0)
    for s in range(16):
        c, q, b = s // 2, s & 1, s & 1
        k('s_waitcnt lgkmcnt(0)')
        if q == 1 and c < 7:
            if c in (1, 3, 5): st()
            k('s_barrier')
            if c in (1, 3, 5): st()
        if s < 15:
            fread(s + 1)
        for sg in range(3):
            w = WFB(b, sg)
            for t in range(5):
                if sg == 0 and t == 4:
                    continue
                a = ACC(sg, t)
                k(f'v_mfma_f32_16x16x32_bf16 v[{a}:{a+3}], v[{w}:{w+3}], v[{XFB(b,t)}:{XFB(b,t)+3}], v[{a}:{a+3}]')
            a = CS(sg)
            k(f'v_mfma_f32_16x16x32_bf16 v[{a}:{a+3}], v[{w}:{w+3}], v[{ONES}:{ONES+3}], v[{a}:{a+3}]')
    st()
    k('s_mov_b32 s52, 0xffff0000')
    k('s_mov_b32 s53, 0x3b000000')
    k('s_mov_b32 s54, 0x3727c5ac')
    k('v_lshlrev_b32 v13, 3, v10')
    k('s_barrier')
    for t in range(5):
        k(f'ds_read_b64 v[{90+2*t}:{91+2*t}], v13 offset:{STAT + t * 128}')
    k(f'v_mul_u32_u24 v14, {ROWB}, v10')
    k('v_lshl_add_u32 v14, v12, 3, v14')
    k('s_mul_i32 s34, s30, 8960')
    k('v_add_u32 v14, s34, v14')
    k('s_waitcnt lgkmcnt(0)')
    for sg in range(3):
        for t in range(5):
            if sg == 0 and t == 4:
                continue
            a = ACC(sg, t)
            m, ri = (90 + 2 * t, 91 + 2 * t)
            for r in range(4):
                k(f'v_fma_f32 v{a+r}, -v{m}, v{CS(sg)+r}, v{a+r}')
            for r in range(4):
                k(f'v_mul_f32 v{a+r}, v{a+r}, v{ri}')
            k(f'v_cvt_pk_bf16_f32 v{a}, v{a}, v{a+1}')
            k(f'v_cvt_pk_bf16_f32 v{a+1}, v{a+2}, v{a+3}')
            rowoff = 0 if t == 4 else (16 + 16 * t) * ROWB
            k(f'ds_write_b64 v14, v[{a}:{a+1}] offset:{QKVA + rowoff + sg * 32}')
    st()
    k.label(f'L_k1l{layer}_attn')
    k('s_waitcnt lgkmcnt(0)')
    k('s_barrier')
    k('s_lshr_b32 s34, s30, 2')
    k('s_lshl_b32 s34, s34, 5')
    k('v_and_b32 v2, 31, v1')
    k('v_add_u32 v2, s34, v2')
    k('v_lshrrev_b32 v8, 5, v1')
    k('v_add_u32 v3, s31, v2')
    k('v_lshlrev_b32 v9, 3, v8')
    k('v_sub_u32 v7, v3, v9')
    k('v_sub_u32 v4, v2, v9')
    k('v_add_u32 v4, 10, v4')
    k(f'v_mul_u32_u24 v4, {ROWB}, v4')
    k('s_and_b32 s36, s30, 3')
    k('s_mul_i32 s34, s36, 8960')
    k('v_add_u32 v4, s34, v4')
    k('v_add_u32 v6, 16, v2')
    k(f'v_mul_u32_u24 v6, {ROWB}, v6')
    k('v_add_u32 v6, s34, v6')
    Q = 16
    KK = lambda i: 24 + 8 * i
    VV = lambda i: 56 + 8 * i
    k(f'ds_read_b128 v[{Q}:{Q+3}], v6 offset:{QKVA}')
    k(f'ds_read_b128 v[{Q+4}:{Q+7}], v6 offset:{QKVA + 16}')
    for i in range(4):
        o = QKVA + (6 - 2 * i) * ROWB + 32
        k(f'ds_read_b128 v[{KK(i)}:{KK(i)+3}], v4 offset:{o}')
        k(f'ds_read_b128 v[{KK(i)+4}:{KK(i)+7}], v4 offset:{o+16}')
    for i in range(2):
        o = QKVA + (6 - 2 * i) * ROWB + 64
        k(f'ds_read_b128 v[{VV(i)}:{VV(i)+3}], v4 offset:{o}')
        k(f'ds_read_b128 v[{VV(i)+4}:{VV(i)+7}], v4 offset:{o+16}')
    k('s_waitcnt lgkmcnt(4)')
    for i in range(2, 4):
        o = QKVA + (6 - 2 * i) * ROWB + 64
        k(f'ds_read_b128 v[{VV(i)}:{VV(i)+3}], v4 offset:{o}')
        k(f'ds_read_b128 v[{VV(i)+4}:{VV(i)+7}], v4 offset:{o+16}')
    L = 88
    P = 92
    for j in range(8):
        for i in range(4):
            src2 = '0' if j == 0 else f'v{L+i}'
            k(f'v_dot2_f32_bf16 v{L+i}, v{Q+j}, v{KK(i)+j}, {src2}')
    for i in range(0, 4, 2):
        k(f'v_cvt_pk_bf16_f32 v{P+i//2}, v{L+i}, v{L+i+1}')
    for i in range(0, 4, 2):
        k(f'v_lshlrev_b32 v{L+i}, 16, v{P+i//2}')
        k(f'v_and_b32 v{L+i+1}, s52, v{P+i//2}')
    k('v_mov_b32 v94, 0xcf6e6b28')
    for i in range(4):
        k(f'v_cmp_le_i32 vcc, {2*i}, v7')
        k(f'v_cndmask_b32 v{L+i}, v94, v{L+i}, vcc')
    k(f'v_max3_f32 v95, v{L}, v{L+1}, v{L+2}')
    k(f'v_max_f32 v95, v95, v{L+3}')
    k('v_mov_b32 v96, v95')
    k('v_permlane32_swap_b32 v95, v96')
    k('v_max_f32 v95, v95, v96')
    k('s_mov_b32 s34, 0x3eb8aa3b')
    for i in range(4):
        k(f'v_sub_f32 v{L+i}, v{L+i}, v95')
    for i in range(4):
        k(f'v_mul_f32 v{L+i}, s34, v{L+i}')
    for i in range(4):
        k(f'v_exp_f32 v{L+i}, v{L+i}')
    k(f'v_add_f32 v95, v{L}, v{L+1}')
    k(f'v_add_f32 v96, v{L+2}, v{L+3}')
    k('v_add_f32 v95, v95, v96')
    k('v_mov_b32 v96, v95')
    k('v_permlane32_swap_b32 v95, v96')
    k('v_add_f32 v95, v95, v96')
    k('v_rcp_f32 v95, v95')
    for i in range(4):
        k(f'v_mul_f32 v{L+i}, v{L+i}, v95')
    for i in range(0, 4, 2):
        k(f'v_cvt_pk_bf16_f32 v{P+i//2}, v{L+i}, v{L+i+1}')
    k('s_mov_b32 s38, 0x05040100')
    k('s_mov_b32 s37, 0x07060302')
    k('s_waitcnt lgkmcnt(0)')
    OO = 24
    for wp in range(2):
        a_, b_ = 2 * wp, 2 * wp + 1
        for j in range(8):
            k(f'v_perm_b32 v{40+2*j}, v{VV(b_)+j}, v{VV(a_)+j}, s38')
            k(f'v_perm_b32 v{41+2*j}, v{VV(b_)+j}, v{VV(a_)+j}, s37')
        for j in range(16):
            src2 = '0' if wp == 0 else f'v{OO+j}'
            k(f'v_dot2_f32_bf16 v{OO+j}, v{40+j}, v{P+wp}, {src2}')
    for d in range(8):
        k(f'v_permlane32_swap_b32 v{OO+d}, v{OO+8+d}')
    for d in range(8):
        k(f'v_add_f32 v{OO+d}, v{OO+d}, v{OO+8+d}')
    for j in range(4):
        k(f'v_cvt_pk_bf16_f32 v{56+j}, v{OO+2*j}, v{OO+2*j+1}')
    k('v_lshlrev_b32 v5, 10, v3')
    k('v_lshl_add_u32 v5, v8, 4, v5')
    k('s_lshl_b32 s34, s29, 7')
    k('s_lshl_b32 s36, s36, 5')
    k('s_add_u32 s34, s34, s36')
    k('v_add_u32 v5, s34, v5')
    k('buffer_store_dwordx4 v[56:59], v5, s[20:23], 0 offen')
    st()
    k('s_waitcnt vmcnt(0)' if DIAG else '')
    st()
    st.flush(8, 9, layer - 1, 6, 7, 60)
    k.label(f'L_k1l{layer}_done')
    k('s_endpgm')
    return k, 4 * SLOT


def k2(layer):
    k = Kern(f'k2l{layer}_kernel', nvgpr=128, accum_offset=128, nsgpr=100)
    st = Stamps(k)
    CH = 16384
    ACC = lambda j: 12 + 4 * j
    RES = lambda j: 44 + 2 * j
    WR = lambda j: 52 + 2 * j
    WF = lambda b, j: 64 + b * 20 + 4 * j
    OF = lambda b: 64 + b * 20 + 16
    k('s_cmp_ge_u32 s2, 256')
    k(f's_cbranch_scc1 L_k2l{layer}_done')
    st()
    k(f's_load_dwordx2 s[4:5], s[0:1], {0 if layer == 1 else 80}')
    k('s_load_dwordx2 s[6:7], s[0:1], 16')
    k('s_load_dwordx2 s[8:9], s[0:1], 80')
    k('s_load_dwordx2 s[10:11], s[0:1], 32')
    k('s_and_b32 s36, s2, 7')
    k('s_lshr_b32 s37, s2, 3')
    k('s_lshl_b32 s36, s36, 2')
    k('s_lshr_b32 s38, s37, 3')
    k('s_add_u32 s36, s36, s38')
    k('s_and_b32 s37, s37, 7')
    k('s_lshl_b32 s36, s36, 6')
    k('s_lshl_b32 s41, s37, 7')
    k('v_and_b32 v1, 63, v0')
    k('v_lshrrev_b32 v2, 6, v0')
    k('v_readfirstlane_b32 s39, v2')
    k('v_lshrrev_b32 v10, 3, v1')
    k('v_and_b32 v11, 7, v1')
    k('v_lshrrev_b32 v61, 4, v1')
    k('s_lshl_b32 s40, s39, 4')
    k('s_add_u32 s40, s40, s36')
    k('s_cmp_lt_u32 s39, 4')
    k(f's_cbranch_scc1 L_k2l{layer}_comp')
    k('s_sub_u32 s39, s39, 4')
    k('s_sub_u32 s40, s40, 64')
    k('v_add_u32 v4, s40, v10')
    k('v_lshlrev_b32 v4, 10, v4')
    k('v_xor_b32 v5, v11, v61')
    k('v_lshl_add_u32 v2, v5, 4, v4')
    k('v_xor_b32 v5, 4, v5')
    k('v_lshl_add_u32 v3, v5, 4, v4')
    k('v_add_u32 v3, 8192, v3')
    k('v_bfe_u32 v4, v10, 1, 1')
    k('s_and_b32 s42, s39, 1')
    k('s_lshl_b32 s42, s42, 1')
    k('v_or_b32 v4, s42, v4')
    k('v_lshrrev_b32 v5, 1, v11')
    k('v_xor_b32 v4, v4, v5')
    k('v_lshlrev_b32 v6, 10, v10')
    k('v_lshl_add_u32 v6, v4, 5, v6')
    k('v_and_b32 v5, 1, v11')
    k('v_lshl_add_u32 v6, v5, 4, v6')
    k('v_add_u32 v6, s41, v6')
    k('s_lshl_b32 s43, s39, 13')
    k('s_lshl_b32 s44, s39, 10')
    k('s_lshl_b32 s45, s39, 11')
    k('s_waitcnt lgkmcnt(0)')
    srd(k, 12, 8, 9, XBYTES, O_OFF)
    srd(k, 16, 6, 7, 512 * 512 * 2)

    def issue2(c):
        k(f's_mov_b32 s46, {c * 128}')
        k(f's_add_u32 m0, s45, {c * CH}')
        k('buffer_load_dwordx4 v2, s[12:15], s46 offen lds')
        k(f's_add_u32 m0, s45, {c * CH + 1024}')
        k('buffer_load_dwordx4 v3, s[12:15], s46 offen lds')
        for i in range(2):
            k(f's_add_u32 s47, s43, {(c * 64 + 32 * i) * 1024}')
            k(f's_add_u32 m0, s44, {c * CH + 8192 + i * 4096}')
            k('buffer_load_dwordx4 v6, s[16:19], s47 offen lds')
    LA = 3
    for c in range(LA):
        issue2(c)
    issued = LA
    for c in range(8):
        k(f's_waitcnt vmcnt({(issued - (c + 1)) * 4})')
        k('s_barrier')
        if issued < 8:
            issue2(issued)
            issued += 1
    k('s_endpgm')
    k.label(f'L_k2l{layer}_comp')
    k('s_lshl_b32 s45, s39, 11')
    k('s_waitcnt lgkmcnt(0)')
    st()
    srd(k, 20, 4, 5, XBYTES, 0 if layer == 1 else X2_OFF)
    srd(k, 24, 8, 9, XBYTES, X1_OFF if layer == 1 else X3_OFF)
    srd(k, 28, 8, 9, 32768, ST_OFF + (layer - 1) * 32768)
    srd(k, 32, 10, 11, 1024)
    k('v_and_b32 v60, 15, v1')
    k('v_add_u32 v62, s40, v60')
    k('v_lshlrev_b32 v9, 10, v62')
    k('v_lshl_add_u32 v9, v61, 3, v9')
    k('v_add_u32 v9, s41, v9')
    k('v_lshlrev_b32 v10, 3, v61')
    k('v_add_u32 v10, s41, v10')
    for j in range(4):
        k(f'buffer_load_dwordx2 v[{RES(j)}:{RES(j)+1}], v9, s[20:23], 0 offen offset:{j*32}')
    for j in range(4):
        k(f'buffer_load_dwordx2 v[{WR(j)}:{WR(j)+1}], v10, s[32:35], 0 offen offset:{j*32}')
    k('v_lshrrev_b32 v4, 1, v60')
    k('v_xor_b32 v4, v4, v61')
    k('v_lshlrev_b32 v2, 7, v60')
    k('v_lshl_add_u32 v2, v4, 4, v2')
    k('v_add_u32 v2, s45, v2')
    k('v_xor_b32 v3, 64, v2')
    k('v_bfe_u32 v8, v1, 2, 2')
    k('v_lshl_add_u32 v11, v61, 3, v8')
    k('v_lshlrev_b32 v11, 7, v11')
    k('v_and_b32 v5, 3, v1')
    k('v_lshl_add_u32 v11, v5, 3, v11')
    k('v_add_u32 v11, 8192, v11')
    k('v_lshrrev_b32 v8, 1, v8')
    k('v_and_b32 v5, 1, v61')
    k('v_lshl_or_b32 v8, v5, 1, v8')
    for j in range(4):
        k(f'v_xor_b32 v{4+j}, {j}, v8')
        k(f'v_lshl_add_u32 v{4+j}, v{4+j}, 5, v11')
    for i in range(6):
        k(f'v_add_u32 v{28+i}, 65536, v{2+i}')
    for v in range(12, 28):
        k(f'v_mov_b32 v{v}, 0')

    def fread(s):
        c, q, b = s // 2, s & 1, s & 1
        hi = c >= 4
        co = (c & 3) * CH
        base = 28 if hi else 2
        for j in range(4):
            k(f'ds_read_b64_tr_b16 v[{WF(b,j)}:{WF(b,j)+1}], v{base+2+j} offset:{co + q*4096}')
            k(f'ds_read_b64_tr_b16 v[{WF(b,j)+2}:{WF(b,j)+3}], v{base+2+j} offset:{co + q*4096 + 512}')
        k(f'ds_read_b128 v[{OF(b)}:{OF(b)+3}], v{base+q} offset:{co}')

    k('s_barrier')
    st()
    fread(0)
    for s in range(16):
        c, q, b = s // 2, s & 1, s & 1
        if q == 1 and c < 7:
            k('s_barrier')
        k('s_waitcnt lgkmcnt(0)')
        if s < 15:
            fread(s + 1)
        for j in range(4):
            k(f'v_mfma_f32_16x16x32_bf16 v[{ACC(j)}:{ACC(j)+3}], v[{WF(b,j)}:{WF(b,j)+3}], v[{OF(b)}:{OF(b)+3}], v[{ACC(j)}:{ACC(j)+3}]')
    st()
    k('s_mov_b32 s46, 0xffff0000')
    k('v_mov_b32 v63, 0x3f803f80')
    k('v_mov_b32 v108, 0')
    k('v_mov_b32 v109, 0')
    k('v_mov_b32 v110, 0')
    k('s_waitcnt vmcnt(0)')
    for j in range(4):
        for h in range(2):
            a = ACC(j) + 2 * h
            o = 112 + 2 * j + h
            k(f'v_cvt_pk_bf16_f32 v120, v{a}, v{a+1}')
            k('v_lshlrev_b32 v121, 16, v120')
            k('v_and_b32 v122, s46, v120')
            k(f'v_lshlrev_b32 v123, 16, v{RES(j)+h}')
            k(f'v_and_b32 v124, s46, v{RES(j)+h}')
            k('v_add_f32 v121, v121, v123')
            k('v_add_f32 v122, v122, v124')
            k(f'v_cvt_pk_bf16_f32 v{o}, v121, v122')
            k(f'v_dot2c_f32_bf16 v108, v{o}, v63')
            k(f'v_dot2c_f32_bf16 v109, v{o}, v{o}')
            k(f'v_dot2c_f32_bf16 v110, v{o}, v{WR(j)+h}')
        k(f'buffer_store_dwordx2 v[{112+2*j}:{113+2*j}], v9, s[24:27], 0 offen offset:{j*32}')
    for v in range(108, 111):
        xrow_reduce(k, v, 125 + v - 108)
    k('v_mov_b32 v111, 0')
    k('v_cmp_eq_u32 vcc, 1, v61')
    k('v_cndmask_b32 v108, v108, v109, vcc')
    k('v_cmp_eq_u32 vcc, 2, v61')
    k('v_cndmask_b32 v108, v108, v110, vcc')
    k('v_cmp_eq_u32 vcc, 3, v61')
    k('v_cndmask_b32 v108, v108, v111, vcc')
    k('v_lshlrev_b32 v120, 4, v62')
    k('v_lshl_add_u32 v120, v61, 2, v120')
    k('buffer_atomic_add_f32 v108, v120, s[28:31], 0 offen')
    st()
    k('s_waitcnt vmcnt(0)' if DIAG else '')
    st()
    st.flush(8, 9, 2 + layer - 1, 6, 7, 60)
    k.label(f'L_k2l{layer}_done')
    k('s_endpgm')
    return k, 131072


def normalize_dword(k, x, m, rinv, t0, t1, s_mask, out):
    k(f'v_lshlrev_b32 v{t0}, 16, v{x}')
    k(f'v_and_b32 v{t1}, s{s_mask}, v{x}')
    k(f'v_sub_f32 v{t0}, v{t0}, v{m}')
    k(f'v_sub_f32 v{t1}, v{t1}, v{m}')
    k(f'v_cvt_pk_bf16_f32 v{t0}, v{t0}, v{t1}')
    k(f'v_and_b32 v{t1}, s{s_mask}, v{t0}')
    k(f'v_lshlrev_b32 v{t0}, 16, v{t0}')
    k(f'v_mul_f32 v{t0}, v{t0}, v{rinv}')
    k(f'v_mul_f32 v{t1}, v{t1}, v{rinv}')
    k(f'v_cvt_pk_bf16_f32 v{out}, v{t0}, v{t1}')


def add_dwords(k, a, b, t0, t1, t2, t3, s_mask, out):
    k(f'v_lshlrev_b32 v{t0}, 16, v{a}')
    k(f'v_and_b32 v{t1}, s{s_mask}, v{a}')
    k(f'v_lshlrev_b32 v{t2}, 16, v{b}')
    k(f'v_and_b32 v{t3}, s{s_mask}, v{b}')
    k(f'v_add_f32 v{t0}, v{t0}, v{t2}')
    k(f'v_add_f32 v{t1}, v{t1}, v{t3}')
    k(f'v_cvt_pk_bf16_f32 v{out}, v{t0}, v{t1}')


def dpp_max_reduce(k, src, t):
    k(f'v_max_u32_dpp v{t}, v{src}, v{src} quad_perm:[1,0,3,2] row_mask:0xf bank_mask:0xf')
    k(f'v_max_u32_dpp v{t}, v{t}, v{t} quad_perm:[2,3,0,1] row_mask:0xf bank_mask:0xf')
    k(f'v_max_u32_dpp v{t}, v{t}, v{t} row_half_mirror row_mask:0xf bank_mask:0xf')
    k(f'v_max_u32_dpp v{t}, v{t}, v{t} row_mirror row_mask:0xf bank_mask:0xf')
    k(f'v_max_u32_dpp v{t}, v{t}, v{t} row_bcast:15 row_mask:0xa bank_mask:0xf')
    k(f'v_max_u32_dpp v{t}, v{t}, v{t} row_bcast:31 row_mask:0xc bank_mask:0xf')


NFFN = 56
NLN = 128
PART_OFF = 9 * MB


def k4(layer):
    k = Kern(f'k4l{layer}_kernel', nvgpr=128, accum_offset=128, nsgpr=100)
    st = Stamps(k, base=80)
    GOFF, UOFF, DOFF, RED = 0, 32768, 65536, 98304
    CAND = RED + 16384
    HB = CAND + 128
    CNT = HB + 1024
    k(f's_cmp_ge_u32 s2, {NFFN + NLN}')
    k(f's_cbranch_scc1 L_k4l{layer}_done')
    st()
    k('s_load_dwordx2 s[4:5], s[0:1], 80')
    k('s_load_dwordx2 s[6:7], s[0:1], 40')
    k('s_load_dwordx2 s[8:9], s[0:1], 48')
    k('s_load_dwordx2 s[10:11], s[0:1], 32')
    k('s_load_dwordx2 s[70:71], s[0:1], 64')
    k('s_load_dwordx2 s[66:67], s[0:1], 56')
    k('v_and_b32 v1, 63, v0')
    k('v_lshrrev_b32 v2, 6, v0')
    k('v_readfirstlane_b32 s68, v2')
    k('s_mov_b32 s72, 0xffff0000')
    k('s_mov_b32 s73, 0x3b000000')
    k('s_mov_b32 s74, 0x3727c5ac')
    k('v_lshlrev_b32 v3, 4, v0')
    k('s_waitcnt lgkmcnt(0)')
    srd(k, 12, 4, 5, XBYTES, X1_OFF if layer == 1 else X3_OFF)
    srd(k, 24, 4, 5, 32768, ST_OFF + (layer - 1) * 32768)
    k(f's_cmp_ge_u32 s2, {NFFN}')
    k(f's_cbranch_scc1 L_k4l{layer}_ln')
    k('s_and_b32 s69, s2, 7')
    k('s_mul_i32 s69, s69, 7')
    k('s_lshr_b32 s75, s2, 3')
    k('s_add_u32 s69, s69, s75')
    k('s_cmp_lt_u32 s68, 4')
    k(f's_cbranch_scc1 L_k4l{layer}_comp')
    k('s_sub_u32 s68, s68, 4')
    srd(k, 16, 6, 7, 512 * 1792 * 2)
    srd(k, 20, 8, 9, 512 * 1792 * 2)
    srd(k, 44, 66, 67, 1792 * 512 * 2)
    k('s_barrier')
    k('v_lshrrev_b32 v5, 2, v1')
    k('v_mul_u32_u24 v6, 3584, v5')
    k('v_lshrrev_b32 v7, 5, v1')
    k('v_lshlrev_b32 v7, 1, v7')
    k('v_and_b32 v8, 3, v1')
    k('v_xor_b32 v7, v7, v8')
    k('v_lshl_add_u32 v6, v7, 4, v6')
    k('s_lshl_b32 s75, s69, 6')
    k('v_add_u32 v6, s75, v6')
    k('s_mul_i32 s76, s68, 458752')
    k('s_lshl_b32 s77, s68, 13')
    for mat in range(2):
        for i in range(8):
            k(f's_add_u32 s40, s76, {16 * i * 3584}')
            k(f's_add_u32 m0, s77, {mat * 32768 + i * 1024}')
            k(f'buffer_load_dwordx4 v6, s[{16+4*mat}:{19+4*mat}], s40 offen lds')
    k('v_lshrrev_b32 v7, 1, v1')
    k('v_and_b32 v8, 1, v1')
    k('s_lshl_b32 s78, s69, 15')
    k('s_lshl_b32 s79, s68, 13')
    k('s_add_u32 s78, s78, s79')
    for i in range(8):
        k('s_and_b32 s40, s68, 1')
        k('s_lshl_b32 s40, s40, 2')
        k(f's_or_b32 s40, s40, {i & 3}')
        k('v_xor_b32 v9, s40, v7')
        k('v_lshlrev_b32 v9, 5, v9')
        k('v_lshl_add_u32 v9, v8, 4, v9')
        k(f's_add_u32 s41, s78, {i * 1024}')
        k(f's_add_u32 m0, s79, {DOFF + i * 1024}')
        k('buffer_load_dwordx4 v9, s[44:47], s41 offen lds')
    k('s_waitcnt vmcnt(0)')
    k('s_barrier')
    k('s_endpgm')
    k.label(f'L_k4l{layer}_comp')
    for i in range(8):
        k(f's_mov_b32 s40, {4096 * i}')
        k(f'buffer_load_dwordx4 v[{32+4*i}:{35+4*i}], v3, s[24:27], s40 offen')
    srd(k, 28, 10, 11, 1024)
    k('v_lshlrev_b32 v4, 4, v1')
    k('buffer_load_dwordx4 v[64:67], v4, s[28:31], 0 offen')
    srd(k, 32, 4, 5, SM_SIZE, SM_OFF)
    k('s_lshl_b32 s77, s68, 13')
    k(f'v_mov_b32 v5, {CNT}')
    k('v_mov_b32 v6, 0')
    k('ds_write_b32 v5, v6')
    k('s_waitcnt lgkmcnt(0)')
    k('s_barrier')
    st()
    k('v_mov_b32 v8, 0x3f803f80')
    k('v_mov_b32 v9, 0')
    k('s_waitcnt vmcnt(0)')
    st()
    for d in range(4):
        k(f'v_dot2c_f32_bf16 v9, v{64+d}, v8')
    k('v_add_f32_dpp v9, v9, v9 quad_perm:[1,0,3,2] row_mask:0xf bank_mask:0xf')
    k('v_add_f32_dpp v9, v9, v9 quad_perm:[2,3,0,1] row_mask:0xf bank_mask:0xf')
    k('v_add_f32_dpp v9, v9, v9 row_half_mirror row_mask:0xf bank_mask:0xf')
    k('v_add_f32_dpp v9, v9, v9 row_mirror row_mask:0xf bank_mask:0xf')
    xrow_reduce(k, 9, 10)
    for i in range(8):
        b = 32 + 4 * i
        ln_scalars(k, b, b + 1, 10, 11, 12, 13, 72, 73, 74)
        k(f'v_fma_f32 v12, -v10, v9, v{b+2}')
        k('v_mul_f32 v12, v12, v11')
        k('v_cvt_pk_bf16_f32 v12, v12, v12')
        k('v_lshlrev_b32 v12, 16, v12')
        k('v_ashrrev_i32 v13, 31, v12')
        k('v_or_b32 v13, 0x80000000, v13')
        k('v_xor_b32 v12, v12, v13')
        k(f'v_sub_u32 v13, {2047 - 256 * i}, v0')
        k(f'v_and_or_b32 v{16+i}, v12, s72, v13')
    regs = list(range(16, 24))
    spare = 24
    net = [(0, 1), (2, 3), (4, 5), (6, 7), (0, 2), (1, 3), (4, 6), (5, 7), (1, 2), (5, 6), (0, 4), (3, 7),
           (1, 5), (2, 6), (1, 4), (3, 6), (2, 4), (3, 5), (3, 4)]
    for (a, b) in net:
        k(f'v_max_u32 v{spare}, v{regs[a]}, v{regs[b]}')
        k(f'v_min_u32 v{regs[b]}, v{regs[a]}, v{regs[b]}')
        regs[a], spare = spare, regs[a]
    k('v_mov_b32 v26, 0')
    st()
    for n in range(8):
        dpp_max_reduce(k, regs[0], 25)
        k(f'v_readlane_b32 s{50+n}, v25, 63')
        k(f'v_writelane_b32 v26, s{50+n}, {n}')
        if n < 7:
            k(f'v_cmp_eq_u32 vcc, s{50+n}, v{regs[0]}')
            for i in range(7 - n):
                k(f'v_cndmask_b32 v{regs[i]}, v{regs[i]}, v{regs[i+1]}, vcc')
    k('s_lshl_b32 s40, s68, 5')
    k('v_lshlrev_b32 v27, 2, v1')
    k('v_add_u32 v27, s40, v27')
    k(f'v_add_u32 v27, {RED}, v27')
    k('v_cmp_gt_u32 vcc, 8, v1')
    k('s_and_saveexec_b64 s[48:49], vcc')
    k(f'ds_write_b32 v27, v26 offset:{CAND - RED}')
    k('s_mov_b64 exec, 1')
    k('v_mov_b32 v6, 1')
    k('ds_add_u32 v5, v6')
    k('s_mov_b64 exec, s[48:49]')
    k.label(f'L_k4l{layer}_poll')
    k('ds_read_b32 v6, v5')
    k('s_waitcnt lgkmcnt(0)')
    k('v_readfirstlane_b32 s40, v6')
    k('s_cmp_lt_u32 s40, 4')
    k(f's_cbranch_scc1 L_k4l{layer}_poll')
    k('v_and_b32 v27, 31, v1')
    k('v_lshlrev_b32 v27, 2, v27')
    k(f'v_add_u32 v27, {RED}, v27')
    k(f'ds_read_b32 v28, v27 offset:{CAND - RED}')
    k('v_mov_b32 v26, 0')
    k('s_waitcnt lgkmcnt(0)')
    st()
    for n in range(8):
        dpp_max_reduce(k, 28, 25)
        k(f'v_readlane_b32 s{58+n}, v25, 63')
        k(f'v_writelane_b32 v26, s{58+n}, {n}')
        if n < 7:
            k(f'v_cmp_eq_u32 vcc, s{58+n}, v28')
            k('v_cndmask_b32 v28, v28, 0, vcc')
    st()
    k('v_and_b32 v27, 7, v1')
    k('v_lshlrev_b32 v27, 2, v27')
    k('ds_bpermute_b32 v28, v27, v26')
    k('v_lshrrev_b32 v61, 4, v1')
    k('s_or_b32 s40, s2, s68')
    k('s_cmp_lg_u32 s40, 0')
    k(f's_cbranch_scc1 L_k4l{layer}_nokeys')
    k('v_lshlrev_b32 v27, 2, v1')
    k('v_cmp_gt_u32 vcc, 8, v1')
    k('s_and_saveexec_b64 s[48:49], vcc')
    k(f's_mov_b32 s40, {SEL_REL}')
    k('buffer_store_dword v26, v27, s[32:35], s40 offen')
    k('s_mov_b64 exec, s[48:49]')
    k.label(f'L_k4l{layer}_nokeys')
    k('s_waitcnt lgkmcnt(0)')
    k('v_and_b32 v28, 0x7ff, v28')
    k('v_sub_u32 v28, 2047, v28')
    k('v_lshlrev_b32 v29, 10, v28')
    k('v_lshl_add_u32 v29, v61, 4, v29')
    k('s_lshl_b32 s40, s68, 8')
    k('v_lshlrev_b32 v30, 4, v28')
    k('buffer_load_dwordx2 v[14:15], v30, s[24:27], 0 offen')
    for s in range(4):
        k(f'buffer_load_dwordx4 v[{32+4*s}:{35+4*s}], v29, s[12:15], s40 offen offset:{s*64}')
    k('v_bfe_u32 v62, v1, 2, 2')
    k('v_lshl_add_u32 v62, v61, 3, v62')
    k('v_lshlrev_b32 v62, 6, v62')
    k('v_and_b32 v63, 1, v61')
    k('v_lshl_add_u32 v62, v63, 5, v62')
    k('v_and_b32 v63, 3, v1')
    k('v_lshl_add_u32 v62, v63, 3, v62')
    k('v_add_u32 v62, s77, v62')
    k('v_xor_b32 v63, 32, v62')
    k('s_barrier')
    st()
    FR = lambda mat, tl, s: 64 + ((mat * 2 + tl) * 4 + s) * 4
    cnt = 0
    for s in range(4):
        for mat in range(2):
            for tl in range(2):
                b = FR(mat, tl, s)
                if cnt >= 12:
                    k('s_waitcnt lgkmcnt(10)')
                k(f'ds_read_b64_tr_b16 v[{b}:{b+1}], v{62+tl} offset:{mat*32768 + s*2048}')
                k(f'ds_read_b64_tr_b16 v[{b+2}:{b+3}], v{62+tl} offset:{mat*32768 + s*2048 + 256}')
                cnt += 2
    k('s_waitcnt vmcnt(4)')
    ln_scalars(k, 14, 15, 10, 11, 12, 13, 72, 73, 74)
    k('s_waitcnt vmcnt(0)')
    for d in range(16):
        normalize_dword(k, 32 + d, 10, 11, 12, 13, 72, 32 + d)
    for v in range(48, 64):
        if v not in (61,):
            pass
    AC = lambda mat, tl: 16 + (mat * 2 + tl) * 4
    for v in range(16, 32):
        k(f'v_mov_b32 v{v}, 0')
    k('s_waitcnt lgkmcnt(0)')
    for s in range(4):
        for mat in range(2):
            for tl in range(2):
                b = FR(mat, tl, s)
                a = AC(mat, tl)
                k(f'v_mfma_f32_16x16x32_bf16 v[{a}:{a+3}], v[{b}:{b+3}], v[{32+4*s}:{35+4*s}], v[{a}:{a+3}]')
    st()
    k('s_lshl_b32 s40, s68, 12')
    k('v_lshlrev_b32 v56, 4, v1')
    k(f'v_add_u32 v56, {RED}, v56')
    k('v_add_u32 v57, s40, v56')
    for q in range(4):
        k(f'ds_write_b128 v57, v[{16+4*q}:{19+4*q}] offset:{q*1024}')
    k('s_waitcnt lgkmcnt(0)')
    k('s_barrier')
    k('s_cmp_ge_u32 s68, 2')
    k(f's_cbranch_scc1 L_k4l{layer}_skiph')
    k('s_lshl_b32 s40, s68, 10')
    k('v_add_u32 v57, s40, v56')
    for w in range(4):
        k(f'ds_read_b128 v[{64+8*w}:{67+8*w}], v57 offset:{w*4096}')
        k(f'ds_read_b128 v[{68+8*w}:{71+8*w}], v57 offset:{w*4096 + 2048}')
    k('s_waitcnt lgkmcnt(0)')
    for e in range(8):
        k(f'v_add_f32 v{64+e}, v{64+e}, v{72+e}')
        k(f'v_add_f32 v{80+e}, v{80+e}, v{88+e}')
    for e in range(8):
        k(f'v_add_f32 v{64+e}, v{64+e}, v{80+e}')
    for e in range(0, 8, 2):
        k(f'v_cvt_pk_bf16_f32 v72, v{64+e}, v{65+e}')
        k(f'v_lshlrev_b32 v{64+e}, 16, v72')
        k(f'v_and_b32 v{65+e}, s72, v72')
    k('s_mov_b32 s40, 0xbfb8aa3b')
    for e in range(4):
        k(f'v_mul_f32 v{72+e}, s40, v{64+e}')
    for e in range(4):
        k(f'v_exp_f32 v{72+e}, v{72+e}')
    for e in range(4):
        k(f'v_add_f32 v{72+e}, 1.0, v{72+e}')
    for e in range(4):
        k(f'v_rcp_f32 v{72+e}, v{72+e}')
    for e in range(4):
        k(f'v_mul_f32 v{64+e}, v{64+e}, v{72+e}')
    for e in range(0, 4, 2):
        k(f'v_cvt_pk_bf16_f32 v72, v{64+e}, v{65+e}')
        k(f'v_lshlrev_b32 v{64+e}, 16, v72')
        k(f'v_and_b32 v{65+e}, s72, v72')
    for e in range(4):
        k(f'v_mul_f32 v{64+e}, v{64+e}, v{68+e}')
    k('v_cvt_pk_bf16_f32 v76, v64, v65')
    k('v_cvt_pk_bf16_f32 v77, v66, v67')
    k('v_and_b32 v58, 15, v1')
    k('v_lshlrev_b32 v58, 6, v58')
    k('v_lshl_add_u32 v58, v61, 3, v58')
    k('s_lshl_b32 s40, s68, 5')
    k('v_add_u32 v58, s40, v58')
    k(f'v_add_u32 v58, {RED}, v58')
    k(f'ds_write_b64 v58, v[76:77] offset:{HB - RED}')
    k.label(f'L_k4l{layer}_skiph')
    k('s_waitcnt lgkmcnt(0)')
    k('s_barrier')
    k('v_and_b32 v58, 15, v1')
    k('v_lshlrev_b32 v59, 6, v58')
    k('v_lshl_add_u32 v59, v61, 4, v59')
    k(f'v_add_u32 v59, {RED}, v59')
    k(f'ds_read_b128 v[32:35], v59 offset:{HB - RED}')
    k('v_bfe_u32 v60, v1, 2, 2')
    k('v_lshl_add_u32 v36, v61, 3, v60')
    k('v_lshlrev_b32 v36, 10, v36')
    k('v_and_b32 v37, 3, v1')
    k('v_lshl_add_u32 v36, v37, 3, v36')
    k(f'v_add_u32 v36, {DOFF}, v36')
    k('v_and_b32 v37, 1, v61')
    k('v_lshl_or_b32 v60, v37, 2, v60')
    k('s_lshl_b32 s40, s68, 8')
    k('v_add_u32 v36, s40, v36')
    for j in range(8):
        k(f'v_xor_b32 v37, {j}, v60')
        k(f'v_lshl_add_u32 v{40+j}, v37, 5, v36')
    for j in range(7):
        k(f'ds_read_b64_tr_b16 v[{64+4*j}:{65+4*j}], v{40+j}')
        k(f'ds_read_b64_tr_b16 v[{66+4*j}:{67+4*j}], v{40+j} offset:4096')
    k('s_waitcnt lgkmcnt(8)')
    k('ds_read_b64_tr_b16 v[92:93], v47')
    k('ds_read_b64_tr_b16 v[94:95], v47 offset:4096')
    srd(k, 36, 4, 5, 56 * 16384, PART_OFF)
    k('v_lshlrev_b32 v38, 11, v58')
    k('v_lshl_add_u32 v38, v61, 4, v38')
    k('s_lshl_b32 s40, s69, 14')
    k('s_lshl_b32 s41, s68, 9')
    k('s_add_u32 s40, s40, s41')
    k('v_add_u32 v38, s40, v38')
    k('s_waitcnt lgkmcnt(0)')
    for j in range(8):
        k(f'v_mfma_f32_16x16x32_bf16 v[{96+4*j}:{99+4*j}], v[{64+4*j}:{67+4*j}], v[32:35], 0')
    k('v_cmp_gt_u32 vcc, 8, v58')
    k('s_and_saveexec_b64 s[48:49], vcc')
    for j in range(8):
        k(f'buffer_store_dwordx4 v[{96+4*j}:{99+4*j}], v38, s[36:39], 0 offen offset:{j*64}')
    k('s_mov_b64 exec, s[48:49]')
    st()
    k('s_waitcnt vmcnt(0)' if DIAG else '')
    st()
    st.flush(4, 5, 4 + layer - 1, 6, 7, 60)
    k(f's_branch L_k4l{layer}_done')
    k.label(f'L_k4l{layer}_ln')
    if layer == 1:
        srd(k, 36, 4, 5, XBYTES, X2_OFF)
    else:
        srd(k, 36, 70, 71, XBYTES)
    k(f's_sub_u32 s40, s2, {NFFN}')
    k('s_lshl_b32 s40, s40, 4')
    k('v_lshrrev_b32 v2, 5, v0')
    k('v_add_u32 v2, s40, v2')
    k('v_lshlrev_b32 v3, 4, v2')
    k('buffer_load_dwordx2 v[14:15], v3, s[24:27], 0 offen')
    k('v_and_b32 v4, 31, v0')
    k('v_lshlrev_b32 v3, 10, v2')
    k('v_lshl_add_u32 v3, v4, 4, v3')
    for s in range(2):
        k(f'buffer_load_dwordx4 v[{32+4*s}:{35+4*s}], v3, s[12:15], 0 offen offset:{s*512}')
    k('s_waitcnt vmcnt(2)')
    ln_scalars(k, 14, 15, 10, 11, 12, 13, 72, 73, 74)
    for s in range(2):
        k('s_waitcnt vmcnt(1)')
        for d in range(4):
            x = 32 + 4 * s + d
            normalize_dword(k, x, 10, 11, 12, 13, 72, 16)
            add_dwords(k, x, 16, 12, 13, 17, 18, 72, 48 + 4 * s + d)
        k(f'buffer_store_dwordx4 v[{48+4*s}:{51+4*s}], v3, s[36:39], 0 offen offset:{s*512}')
    if DIAG == 2:
        st.flush(4, 5, 4 + layer - 1, 6, 7, 60)
    k.label(f'L_k4l{layer}_done')
    k('s_endpgm')
    return k, HB + 1024 + 64


def k5(layer):
    k = Kern(f'k5l{layer}_kernel', nvgpr=64, accum_offset=64, nsgpr=100)
    st = Stamps(k, base=80)
    k('s_cmp_ge_u32 s2, 32')
    k(f's_cbranch_scc1 L_k5l{layer}_done')
    st()
    k('s_load_dwordx2 s[4:5], s[0:1], 80')
    k('s_load_dwordx2 s[70:71], s[0:1], 64')
    k('s_mov_b32 s72, 0xffff0000')
    k('s_mov_b32 s73, 0x3b000000')
    k('s_mov_b32 s74, 0x3727c5ac')
    k('s_lshr_b32 s68, s2, 2')
    k('s_and_b32 s69, s2, 3')
    k('v_and_b32 v1, 31, v0')
    k('v_lshrrev_b32 v2, 5, v0')
    k('v_mul_u32_u24 v3, 114688, v2')
    k('v_lshl_add_u32 v3, v1, 4, v3')
    k('s_lshl_b32 s40, s68, 11')
    k('s_lshl_b32 s41, s69, 9')
    k('s_add_u32 s40, s40, s41')
    k('v_add_u32 v3, s40, v3')
    k('s_waitcnt lgkmcnt(0)')
    srd(k, 36, 4, 5, 56 * 16384, PART_OFF)
    srd(k, 32, 4, 5, SM_SIZE, SM_OFF)
    k('s_lshl_b32 s41, s68, 2')
    k(f's_add_u32 s41, s41, {SEL_REL}')
    k('v_mov_b32 v4, 0')
    k('buffer_load_dword v26, v4, s[32:35], s41 offen')
    for i in range(7):
        k(f's_mov_b32 s40, {i * 16384}')
        k(f'buffer_load_dwordx4 v[{32+4*i}:{35+4*i}], v3, s[36:39], s40 offen')
    srd(k, 12, 4, 5, XBYTES, X1_OFF if layer == 1 else X3_OFF)
    srd(k, 24, 4, 5, 32768, ST_OFF + (layer - 1) * 32768)
    if layer == 1:
        srd(k, 44, 4, 5, XBYTES, X2_OFF)
    else:
        srd(k, 44, 70, 71, XBYTES)
    k('s_waitcnt vmcnt(7)')
    k('v_and_b32 v28, 0x7ff, v26')
    k('v_sub_u32 v28, 2047, v28')
    k('v_lshlrev_b32 v30, 4, v28')
    k('buffer_load_dwordx2 v[14:15], v30, s[24:27], 0 offen')
    k('v_lshlrev_b32 v31, 10, v28')
    k('v_lshl_add_u32 v31, v1, 3, v31')
    k('s_lshl_b32 s41, s69, 8')
    k('v_add_u32 v31, s41, v31')
    k('buffer_load_dwordx2 v[16:17], v31, s[12:15], 0 offen')
    k('s_waitcnt vmcnt(2)')
    for i in range(1, 7):
        for e in range(4):
            k(f'v_add_f32 v{32+e}, v{32+e}, v{32+4*i+e}')
    k('v_lshlrev_b32 v5, 4, v0')
    k('ds_write_b128 v5, v[32:35]')
    k('s_waitcnt lgkmcnt(0)')
    k('s_barrier')
    k('v_cmp_gt_u32 vcc, 32, v0')
    k('s_and_saveexec_b64 s[48:49], vcc')
    k(f's_cbranch_execz L_k5l{layer}_done')
    for g in range(8):
        k(f'ds_read_b128 v[{32+4*g}:{35+4*g}], v5 offset:{g*512}')
    k('s_waitcnt lgkmcnt(0)')
    for g in range(1, 8):
        for e in range(4):
            k(f'v_add_f32 v{32+e}, v{32+e}, v{32+4*g+e}')
    for e in range(0, 4, 2):
        k(f'v_cvt_pk_bf16_f32 v40, v{32+e}, v{33+e}')
        k(f'v_lshlrev_b32 v{32+e}, 16, v40')
        k(f'v_and_b32 v{33+e}, s72, v40')
    k('v_and_b32 v20, s72, v26')
    k('v_ashrrev_i32 v21, 31, v20')
    k('v_not_b32 v21, v21')
    k('v_or_b32 v21, 0x80000000, v21')
    k('v_xor_b32 v20, v20, v21')
    k('v_and_b32 v20, s72, v20')
    k('s_mov_b32 s40, 0xbfb8aa3b')
    k('v_mul_f32 v20, s40, v20')
    k('v_exp_f32 v20, v20')
    k('v_add_f32 v20, 1.0, v20')
    k('v_rcp_f32 v20, v20')
    k('v_cvt_pk_bf16_f32 v20, v20, v20')
    k('v_lshlrev_b32 v20, 16, v20')
    for e in range(4):
        k(f'v_mul_f32 v{32+e}, v{32+e}, v20')
    k('v_cvt_pk_bf16_f32 v44, v32, v33')
    k('v_cvt_pk_bf16_f32 v45, v34, v35')
    k('s_waitcnt vmcnt(0)')
    ln_scalars(k, 14, 15, 10, 11, 12, 13, 72, 73, 74)
    for d in range(2):
        normalize_dword(k, 16 + d, 10, 11, 12, 13, 72, 18)
        add_dwords(k, 18, 44 + d, 12, 13, 19, 22, 72, 18)
        add_dwords(k, 16 + d, 18, 12, 13, 19, 22, 72, 46 + d)
    k('buffer_store_dwordx2 v[46:47], v31, s[44:47], 0 offen')
    if DIAG == 2:
        st.flush(4, 5, 6 + layer - 1, 6, 7, 60)
    k.label(f'L_k5l{layer}_done')
    k('s_endpgm')
    return k, 4096


def build(path, extra_launch=0):
    hdr = open('interleave_layers__sliding_local_dilated__moe_arch_mod__prompt.s.ref').read().split('; Override')[0]
    ks = []
    launches = []
    for layer in (1, 2):
        for fn, grid, blk in ((k1, 256, 512), (k2, 256, 512), (k4, NFFN + NLN, 512), (k5, 32, 256)):
            kk, lds = fn(layer)
            ks.append(kk)
            launches.append(f'; @launch kernel={kk.name} grid=({grid},1,1) block=({blk},1,1) lds={lds}')
    if extra_launch:
        e = Kern('nop_kernel', nvgpr=8, accum_offset=8, nsgpr=16)
        e('s_endpgm')
        ks.append(e)
        for i in range(extra_launch):
            launches.append('; @launch kernel=nop_kernel grid=(256,1,1) block=(256,1,1) lds=0')
    out = hdr + '\n'.join(launches) + '\n.amdgcn_target "amdgcn-amd-amdhsa--gfx950"\n.text\n'
    for kk in ks:
        out += kk.text()
    out += '.section .rodata,"a"\n'
    for kk in ks:
        out += kk.desc()
    open(path, 'w').write(out)


if __name__ == '__main__':
    path = sys.argv[1] if len(sys.argv) > 1 else 'interleave_layers__sliding_local_dilated__moe_arch_mod__prompt.s'
    if len(sys.argv) > 3:
        DIAG = int(sys.argv[3])
    build(path, int(sys.argv[2]) if len(sys.argv) > 2 else 0)
```

```python
import sys
sys.path.insert(0, 'gen')
from asmlib import Kern

MB = 1 << 20
O_OFF = 0
X1_OFF = 2 * MB
X2_OFF = 4 * MB
X3_OFF = 6 * MB
ST_OFF = 8 * MB
SM_OFF = 8 * MB + 65536
H_REL = 0
SEL_REL = 32768
SM_SIZE = 65536

XBYTES = 2048 * 512 * 2
NPF = 64


def srd(k, d, lo, hi, size, add=0):
    if add:
        k(f's_add_u32 s{d}, s{lo}, {add}')
        k(f's_addc_u32 s{d+1}, s{hi}, 0')
        k(f's_and_b32 s{d+1}, s{d+1}, 0xffff')
    else:
        k(f's_mov_b32 s{d}, s{lo}')
        k(f's_and_b32 s{d+1}, s{hi}, 0xffff')
    k(f's_mov_b32 s{d+2}, {size}')
    k(f's_mov_b32 s{d+3}, 0x00020000')


DIAG = False
DBG_OFF = 16 * MB


class Stamps:
    def __init__(self, k, base=64):
        self.k = k
        self.n = 0
        self.base = base

    def __call__(self):
        if DIAG == 2:
            if self.n == 0:
                self.rt()
            return
        if DIAG:
            b = self.base + 2 * self.n
            self.k(f's_memtime s[{b}:{b+1}]')
            self.n += 1

    def rt(self):
        if DIAG:
            b = self.base + 2 * self.n
            self.k(f's_memrealtime s[{b}:{b+1}]')
            self.n += 1

    def flush(self, ws_lo, ws_hi, slot, vt0, vt1, sd):
        if not DIAG:
            return
        k = self.k
        n_save = self.n
        if DIAG == 2:
            k('s_waitcnt vmcnt(0)')
            self.rt()
        k('s_waitcnt lgkmcnt(0)')
        srd(k, sd, ws_lo, ws_hi, 1 << 20, DBG_OFF + slot * (1 << 18))
        k(f'v_mov_b32 v{vt0}, 0')
        for i in range(self.n):
            k(f'v_writelane_b32 v{vt0}, s{self.base + 2*i}, {i}')
        k(f'v_lshrrev_b32 v{vt1}, 6, v0')
        k(f's_lshl_b32 s{self.base}, s2, 3')
        k(f'v_add_u32 v{vt1}, s{self.base}, v{vt1}')
        k(f'v_lshlrev_b32 v{vt1}, 6, v{vt1}')
        k(f'v_and_b32 v{vt0+1 if False else vt1+1}, 63, v0')
        k(f'v_lshl_add_u32 v{vt1}, v{vt1+1}, 2, v{vt1}')
        k(f'v_cmp_gt_u32 vcc, 16, v{vt1+1}')
        k('s_and_b64 exec, exec, vcc')
        k(f'buffer_store_dword v{vt0}, v{vt1}, s[{sd}:{sd+3}], 0 offen')
        self.n = n_save


def xrow_reduce(k, v, tmp):
    k(f'v_mov_b32 v{tmp}, v{v}')
    k(f'v_permlane16_swap_b32 v{v}, v{tmp}')
    k(f'v_add_f32 v{v}, v{v}, v{tmp}')
    k(f'v_mov_b32 v{tmp}, v{v}')
    k(f'v_permlane32_swap_b32 v{v}, v{tmp}')
    k(f'v_add_f32 v{v}, v{v}, v{tmp}')


def ln_scalars(k, s1, s2, m, rinv, t1, t2, s_mask, s_inv512, s_eps):
    k(f'v_mul_f32 v{t1}, s{s_inv512}, v{s1}')
    k(f'v_mul_f32 v{t2}, s{s_inv512}, v{s2}')
    k(f'v_fma_f32 v{t2}, -v{t1}, v{t1}, v{t2}')
    k(f'v_max_f32 v{t2}, 0, v{t2}')
    k(f'v_cvt_pk_bf16_f32 v{t1}, v{t1}, v{t2}')
    k(f'v_lshlrev_b32 v{m}, 16, v{t1}')
    k(f'v_and_b32 v{t2}, s{s_mask}, v{t1}')
    k(f'v_add_f32 v{t2}, s{s_eps}, v{t2}')
    k(f'v_cvt_pk_bf16_f32 v{t2}, v{t2}, v{t2}')
    k(f'v_lshlrev_b32 v{t2}, 16, v{t2}')
    k(f'v_sqrt_f32 v{t2}, v{t2}')
    k(f'v_cvt_pk_bf16_f32 v{t2}, v{t2}, v{t2}')
    k(f'v_lshlrev_b32 v{t2}, 16, v{t2}')
    k(f'v_rcp_f32 v{rinv}, v{t2}')


def k1(layer):
    k = Kern(f'k1l{layer}_kernel', nvgpr=200, accum_offset=200, nsgpr=100)
    st = Stamps(k)
    SLOT = 34816
    WOFF = 10240
    STAT = 0
    QKVA = 1024
    ROWB = 112
    ACC = lambda sg, t: 16 + (sg * 5 + t) * 4
    CS = lambda sg: 76 + 4 * sg
    XFB = lambda b, t: 88 + b * 24 + t * 4
    WFB = lambda b, sg: 136 + b * 12 + sg * 4
    ONES = 160
    k('s_cmp_ge_u32 s2, 256')
    k(f's_cbranch_scc1 L_k1l{layer}_done')
    st()
    k(f's_load_dwordx2 s[4:5], s[0:1], {0 if layer == 1 else 80}')
    k('s_load_dwordx2 s[6:7], s[0:1], 8')
    k('s_load_dwordx2 s[8:9], s[0:1], 80')
    k('s_and_b32 s28, s2, 7')
    k('s_lshr_b32 s29, s2, 3')
    k('s_lshr_b32 s30, s28, 1')
    k('s_lshl_b32 s30, s30, 3')
    k('s_lshr_b32 s31, s29, 2')
    k('s_add_u32 s30, s30, s31')
    k('s_and_b32 s28, s28, 1')
    k('s_lshl_b32 s28, s28, 2')
    k('s_and_b32 s29, s29, 3')
    k('s_add_u32 s29, s28, s29')
    k('s_lshl_b32 s31, s30, 6')
    k('v_and_b32 v1, 63, v0')
    k('v_lshrrev_b32 v2, 6, v0')
    k('v_readfirstlane_b32 s30, v2')
    k('v_lshrrev_b32 v10, 3, v1')
    k('v_and_b32 v11, 7, v1')
    k('v_lshrrev_b32 v12, 4, v1')
    k('s_cmp_lt_u32 s30, 4')
    k(f's_cbranch_scc1 L_k1l{layer}_comp')
    k('s_sub_u32 s30, s30, 4')
    k('s_lshl_b32 s34, s30, 4')
    k('s_add_u32 s34, s34, s31')
    k('v_add_u32 v13, s34, v10')
    k('v_lshlrev_b32 v13, 10, v13')
    k('v_xor_b32 v14, v11, v12')
    k('v_lshl_add_u32 v2, v14, 4, v13')
    k('v_xor_b32 v14, 4, v14')
    k('v_lshl_add_u32 v3, v14, 4, v13')
    k('v_add_u32 v3, 8192, v3')
    k('s_lshl_b32 s34, s30, 2')
    k('s_add_u32 s34, s34, s31')
    k('s_sub_u32 s34, s34, 16')
    k('v_add_u32 v13, s34, v10')
    k('v_lshlrev_b32 v13, 10, v13')
    k('s_lshl_b32 s34, s30, 1')
    k('v_add_u32 v14, s34, v12')
    k('v_and_b32 v14, 7, v14')
    k('v_xor_b32 v14, v11, v14')
    k('v_lshl_add_u32 v4, v14, 4, v13')
    k('v_bfe_u32 v13, v10, 1, 1')
    k('s_and_b32 s34, s30, 1')
    k('s_lshl_b32 s34, s34, 1')
    k('v_or_b32 v13, s34, v13')
    k('v_lshrrev_b32 v14, 1, v11')
    k('v_xor_b32 v13, v13, v14')
    k('v_mul_u32_u24 v5, 3072, v10')
    k('v_lshl_add_u32 v5, v13, 5, v5')
    k('v_and_b32 v14, 1, v11')
    k('v_lshl_add_u32 v5, v14, 4, v5')
    k('s_lshl_b32 s34, s29, 7')
    k('v_add_u32 v5, s34, v5')
    k('s_mul_i32 s32, s30, 24576')
    k('s_lshl_b32 s33, s30, 10')
    k('s_lshl_b32 s35, s30, 11')
    k('s_add_u32 s35, s35, 2048')
    k('s_lshl_b32 s36, s30, 9')
    k('s_waitcnt lgkmcnt(0)')
    srd(k, 12, 4, 5, XBYTES, 0 if layer == 1 else X2_OFF)
    srd(k, 16, 6, 7, 512 * 1536 * 2)
    k('s_mov_b64 s[56:57], 0xffffffff')

    def issue_chunk(c):
        sb = (c % 4) * SLOT
        k(f's_mov_b32 s37, {c * 128}')
        k(f's_add_u32 m0, s35, {sb}')
        k('buffer_load_dwordx4 v2, s[12:15], s37 offen lds')
        k(f's_add_u32 m0, s35, {sb + 1024}')
        k('buffer_load_dwordx4 v3, s[12:15], s37 offen lds')
        k(f's_add_u32 m0, s36, {sb}')
        k('s_mov_b64 exec, s[56:57]')
        k('buffer_load_dwordx4 v4, s[12:15], s37 offen lds')
        k('s_mov_b64 exec, -1')
        for sg in range(3):
            for i in range(2):
                k(f's_add_u32 s34, s32, {(c * 64 + 32 * i) * 3072 + sg * 1024}')
                k(f's_add_u32 m0, s33, {sb + WOFF + sg * 8192 + i * 4096}')
                k('buffer_load_dwordx4 v5, s[16:19], s34 offen lds')

    issue_chunk(0)
    issue_chunk(1)
    if layer == 1:
        srd(k, 24, 8, 9, 65536, ST_OFF)
    k('v_lshlrev_b32 v6, 5, v1')
    k('v_add_u32 v6, s35, v6')
    k('v_and_b32 v7, 31, v1')
    k('v_lshlrev_b32 v7, 4, v7')
    k('v_add_u32 v7, s36, v7')
    for v in range(120, 128):
        k(f'v_mov_b32 v{v}, 0')
    k('s_mov_b32 s52, 0xffff0000')
    k('s_mov_b32 s53, 0x3b000000')
    k('s_mov_b32 s54, 0x3727c5ac')
    for c in range(8):
        k(f's_waitcnt vmcnt({9 if c < 7 else 0})')
        k('s_barrier')
        sl = c % 4
        if sl == 2:
            k(f'v_add_u32 v6, {2 * SLOT}, v6')
            k(f'v_add_u32 v7, {2 * SLOT}, v7')
        if sl == 0 and c > 0:
            k(f'v_subrev_u32 v6, {2 * SLOT}, v6')
            k(f'v_subrev_u32 v7, {2 * SLOT}, v7')
        so = (sl & 1) * SLOT
        k(f'ds_read_b128 v[100:103], v6 offset:{so}')
        k(f'ds_read_b128 v[104:107], v6 offset:{so + 16}')
        k(f'ds_read_b128 v[108:111], v7 offset:{so}')
        if c + 2 <= 7:
            issue_chunk(c + 2)
        k('s_waitcnt lgkmcnt(0)')
        for d in range(12):
            acc = 120 if d < 8 else 124
            k(f'v_lshlrev_b32 v112, 16, v{100+d}')
            k(f'v_and_b32 v113, s52, v{100+d}')
            k(f'v_add_f32 v{acc}, v{acc}, v112')
            k(f'v_add_f32 v{acc+1}, v{acc+1}, v113')
            k(f'v_fma_f32 v{acc+2}, v112, v112, v{acc+2}')
            k(f'v_fma_f32 v{acc+3}, v113, v113, v{acc+3}')
    k('v_add_f32 v120, v120, v121')
    k('v_add_f32 v121, v122, v123')
    k('v_add_f32 v122, v124, v125')
    k('v_add_f32 v123, v126, v127')
    for v in range(120, 124):
        k(f'v_add_f32_dpp v{v}, v{v}, v{v} quad_perm:[1,0,3,2] row_mask:0xf bank_mask:0xf')
    for v in range(120, 124):
        k(f'v_add_f32_dpp v{v}, v{v}, v{v} quad_perm:[2,3,0,1] row_mask:0xf bank_mask:0xf')
    for v in range(122, 124):
        k(f'v_add_f32_dpp v{v}, v{v}, v{v} row_half_mirror row_mask:0xf bank_mask:0xf')
    ln_scalars(k, 120, 121, 124, 125, 112, 113, 52, 53, 54)
    ln_scalars(k, 122, 123, 126, 127, 114, 115, 52, 53, 54)
    k('v_lshrrev_b32 v112, 2, v1')
    k('v_lshlrev_b32 v112, 3, v112')
    k('s_lshl_b32 s34, s30, 7')
    k('v_add_u32 v112, s34, v112')
    k(f'ds_write_b64 v112, v[124:125] offset:{STAT}')
    k('v_bfe_u32 v112, v1, 3, 2')
    k('v_lshlrev_b32 v112, 3, v112')
    k('s_lshl_b32 s34, s30, 5')
    k('v_add_u32 v112, s34, v112')
    k(f'ds_write_b64 v112, v[126:127] offset:{STAT + 512}')
    if layer == 1:
        k('s_cmp_lg_u32 s30, 0')
        k(f's_cbranch_scc1 L_k1l{layer}_nz')
        k('v_mov_b32 v100, 0')
        k('v_mov_b32 v101, 0')
        k('v_mov_b32 v102, 0')
        k('v_mov_b32 v103, 0')
        k('s_lshl_b32 s34, s2, 8')
        k('v_lshlrev_b32 v104, 4, v1')
        k('v_add_u32 v104, s34, v104')
        k('v_cmp_gt_u32 vcc, 16, v1')
        k('s_and_saveexec_b64 s[58:59], vcc')
        k('buffer_store_dwordx4 v[100:103], v104, s[24:27], 0 offen')
        k('s_mov_b64 exec, s[58:59]')
        k.label(f'L_k1l{layer}_nz')
    srd(k, 20, 8, 9, XBYTES, O_OFF)
    k('s_waitcnt lgkmcnt(0)')
    k('s_barrier')
    if layer == 1:
        k('s_load_dwordx2 s[60:61], s[0:1], 16')
        k('s_load_dwordx4 s[64:67], s[0:1], 40')
        k('s_load_dwordx2 s[62:63], s[0:1], 56')
        k('s_and_b32 s84, s2, 7')
        k('s_lshr_b32 s85, s2, 3')
        k('v_lshrrev_b32 v20, 5, v1')
        k('v_mul_u32_u24 v20, 3584, v20')
        k('v_and_b32 v21, 31, v1')
        k('v_lshl_add_u32 v20, v21, 4, v20')
        k('v_lshlrev_b32 v21, 4, v1')
        k('s_mul_i32 s34, s84, 448')
        k('s_lshl_b32 s37, s85, 4')
        k('s_lshl_b32 s38, s30, 2')
        k('s_add_u32 s37, s37, s38')
        k('s_mul_i32 s37, s37, 3584')
        k('s_add_u32 s34, s34, s37')
        k('s_waitcnt lgkmcnt(0)')
        srd(k, 68, 64, 65, 512 * 1792 * 2)
        srd(k, 72, 66, 67, 512 * 1792 * 2)
        srd(k, 76, 62, 63, 1792 * 512 * 2)
        srd(k, 80, 60, 61, 512 * 512 * 2)
        k('s_lshl_b32 s37, s85, 4')
        k('s_add_u32 s37, s37, s38')
        k('s_lshl_b32 s37, s37, 10')
        for i in range(4):
            k(f'buffer_load_dwordx4 v[{154+4*i}:{157+4*i}], v21, s[80:83], s37 offen offset:{i*1024}')
        for i in range(2):
            k(f's_add_u32 s37, s34, {2 * i * 3584}')
            k(f'buffer_load_dwordx4 v[{130+8*i}:{133+8*i}], v20, s[68:71], s37 offen')
            k(f'buffer_load_dwordx4 v[{134+8*i}:{137+8*i}], v20, s[72:75], s37 offen')
        k('s_mul_i32 s34, s84, 224')
        k('s_mul_i32 s37, s85, 7')
        k('s_add_u32 s34, s34, s37')
        k('s_add_u32 s34, s34, s30')
        k('s_lshl_b32 s34, s34, 10')
        k('buffer_load_dwordx4 v[146:149], v21, s[76:79], s34 offen')
        k('s_add_u32 s34, s34, 4096')
        k('buffer_load_dwordx4 v[150:153], v21, s[76:79], s34 offen')
    k('s_add_u32 s30, s30, 4')
    k(f's_branch L_k1l{layer}_attn')
    k.label(f'L_k1l{layer}_comp')
    k('s_lshl_b32 s35, s30, 11')
    k('s_add_u32 s35, s35, 2048')
    k('s_waitcnt lgkmcnt(0)')
    srd(k, 20, 8, 9, XBYTES, O_OFF)
    st()
    k('v_and_b32 v10, 15, v1')
    k('v_lshrrev_b32 v13, 1, v10')
    k('v_xor_b32 v13, v13, v12')
    k('v_lshlrev_b32 v6, 7, v10')
    k('v_lshl_add_u32 v6, v13, 4, v6')
    k('v_xor_b32 v7, 64, v6')
    k('v_add_u32 v8, s35, v6')
    k('v_add_u32 v9, s35, v7')
    k('v_bfe_u32 v13, v1, 2, 2')
    k('v_lshl_add_u32 v14, v12, 3, v13')
    k('v_lshlrev_b32 v164, 7, v14')
    k('v_lshrrev_b32 v13, 1, v13')
    k('v_and_b32 v14, 1, v12')
    k('v_lshl_or_b32 v13, v14, 1, v13')
    k('v_xor_b32 v13, s30, v13')
    k('v_lshl_add_u32 v164, v13, 5, v164')
    k('v_and_b32 v14, 3, v1')
    k('v_lshl_add_u32 v164, v14, 3, v164')
    k(f'v_add_u32 v164, {WOFF}, v164')
    for (d, sreg) in ((165, 6), (166, 7), (167, 8), (168, 9), (169, 164)):
        k(f'v_add_u32 v{d}, {2 * SLOT}, v{sreg}')
    for v in range(16, 88):
        k(f'v_mov_b32 v{v}, 0')
    for v in range(ONES, ONES + 4):
        k(f'v_mov_b32 v{v}, 0x3f803f80')
    for v in range(170, 174):
        k(f'v_mov_b32 v{v}, 0')

    def fread(s):
        c, q, b = s // 2, s & 1, s & 1
        slot = c % 4
        hi = slot >= 2
        so = (slot & 1) * SLOT
        xb = (166 if q else 165) if hi else (7 if q else 6)
        sbase = (168 if q else 167) if hi else (9 if q else 8)
        wb = 169 if hi else 164
        for sg in range(3):
            o = so + sg * 8192 + q * 4096
            k(f'ds_read_b64_tr_b16 v[{WFB(b,sg)}:{WFB(b,sg)+1}], v{wb} offset:{o}')
            k(f'ds_read_b64_tr_b16 v[{WFB(b,sg)+2}:{WFB(b,sg)+3}], v{wb} offset:{o+512}')
        for t in range(4):
            k(f'ds_read_b128 v[{XFB(b,t)}:{XFB(b,t)+3}], v{xb} offset:{so + 2048 + t * 2048}')
        k(f'ds_read_b128 v[{XFB(b,4)}:{XFB(b,4)+3}], v{xb} offset:{so}')

    k('s_barrier')
    st()
    fread(0)
    for s in range(16):
        c, q, b = s // 2, s & 1, s & 1
        k('s_waitcnt lgkmcnt(0)')
        if q == 1 and c < 7:
            if c in (1, 3, 5): st()
            k('s_barrier')
            if c in (1, 3, 5): st()
        if s < 15:
            fread(s + 1)
        for sg in range(3):
            w = WFB(b, sg)
            for t in range(5):
                if sg == 0 and t == 4:
                    continue
                a = ACC(sg, t)
                k(f'v_mfma_f32_16x16x32_bf16 v[{a}:{a+3}], v[{w}:{w+3}], v[{XFB(b,t)}:{XFB(b,t)+3}], v[{a}:{a+3}]')
            a = CS(sg)
            k(f'v_mfma_f32_16x16x32_bf16 v[{a}:{a+3}], v[{w}:{w+3}], v[{ONES}:{ONES+3}], v[{a}:{a+3}]')
    st()
    k('s_mov_b32 s52, 0xffff0000')
    k('s_mov_b32 s53, 0x3b000000')
    k('s_mov_b32 s54, 0x3727c5ac')
    k('v_lshlrev_b32 v13, 3, v10')
    k('s_barrier')
    for t in range(5):
        k(f'ds_read_b64 v[{90+2*t}:{91+2*t}], v13 offset:{STAT + t * 128}')
    k(f'v_mul_u32_u24 v14, {ROWB}, v10')
    k('v_lshl_add_u32 v14, v12, 3, v14')
    k('s_mul_i32 s34, s30, 8960')
    k('v_add_u32 v14, s34, v14')
    k('s_waitcnt lgkmcnt(0)')
    for sg in range(3):
        for t in range(5):
            if sg == 0 and t == 4:
                continue
            a = ACC(sg, t)
            m, ri = (90 + 2 * t, 91 + 2 * t)
            for r in range(4):
                k(f'v_fma_f32 v{a+r}, -v{m}, v{CS(sg)+r}, v{a+r}')
            for r in range(4):
                k(f'v_mul_f32 v{a+r}, v{a+r}, v{ri}')
            k(f'v_cvt_pk_bf16_f32 v{a}, v{a}, v{a+1}')
            k(f'v_cvt_pk_bf16_f32 v{a+1}, v{a+2}, v{a+3}')
            rowoff = 0 if t == 4 else (16 + 16 * t) * ROWB
            k(f'ds_write_b64 v14, v[{a}:{a+1}] offset:{QKVA + rowoff + sg * 32}')
    st()
    k.label(f'L_k1l{layer}_attn')
    k('s_waitcnt lgkmcnt(0)')
    k('s_barrier')
    k('s_lshr_b32 s34, s30, 2')
    k('s_lshl_b32 s34, s34, 5')
    k('v_and_b32 v2, 31, v1')
    k('v_add_u32 v2, s34, v2')
    k('v_lshrrev_b32 v8, 5, v1')
    k('v_add_u32 v3, s31, v2')
    k('v_lshlrev_b32 v9, 3, v8')
    k('v_sub_u32 v7, v3, v9')
    k('v_sub_u32 v4, v2, v9')
    k('v_add_u32 v4, 10, v4')
    k(f'v_mul_u32_u24 v4, {ROWB}, v4')
    k('s_and_b32 s36, s30, 3')
    k('s_mul_i32 s34, s36, 8960')
    k('v_add_u32 v4, s34, v4')
    k('v_add_u32 v6, 16, v2')
    k(f'v_mul_u32_u24 v6, {ROWB}, v6')
    k('v_add_u32 v6, s34, v6')
    Q = 16
    KK = lambda i: 24 + 8 * i
    VV = lambda i: 56 + 8 * i
    k(f'ds_read_b128 v[{Q}:{Q+3}], v6 offset:{QKVA}')
    k(f'ds_read_b128 v[{Q+4}:{Q+7}], v6 offset:{QKVA + 16}')
    for i in range(4):
        o = QKVA + (6 - 2 * i) * ROWB + 32
        k(f'ds_read_b128 v[{KK(i)}:{KK(i)+3}], v4 offset:{o}')
        k(f'ds_read_b128 v[{KK(i)+4}:{KK(i)+7}], v4 offset:{o+16}')
    for i in range(2):
        o = QKVA + (6 - 2 * i) * ROWB + 64
        k(f'ds_read_b128 v[{VV(i)}:{VV(i)+3}], v4 offset:{o}')
        k(f'ds_read_b128 v[{VV(i)+4}:{VV(i)+7}], v4 offset:{o+16}')
    k('s_waitcnt lgkmcnt(4)')
    for i in range(2, 4):
        o = QKVA + (6 - 2 * i) * ROWB + 64
        k(f'ds_read_b128 v[{VV(i)}:{VV(i)+3}], v4 offset:{o}')
        k(f'ds_read_b128 v[{VV(i)+4}:{VV(i)+7}], v4 offset:{o+16}')
    L = 88
    P = 92
    for j in range(8):
        for i in range(4):
            src2 = '0' if j == 0 else f'v{L+i}'
            k(f'v_dot2_f32_bf16 v{L+i}, v{Q+j}, v{KK(i)+j}, {src2}')
    for i in range(0, 4, 2):
        k(f'v_cvt_pk_bf16_f32 v{P+i//2}, v{L+i}, v{L+i+1}')
    for i in range(0, 4, 2):
        k(f'v_lshlrev_b32 v{L+i}, 16, v{P+i//2}')
        k(f'v_and_b32 v{L+i+1}, s52, v{P+i//2}')
    k('v_mov_b32 v94, 0xcf6e6b28')
    for i in range(4):
        k(f'v_cmp_le_i32 vcc, {2*i}, v7')
        k(f'v_cndmask_b32 v{L+i}, v94, v{L+i}, vcc')
    k(f'v_max3_f32 v95, v{L}, v{L+1}, v{L+2}')
    k(f'v_max_f32 v95, v95, v{L+3}')
    k('v_mov_b32 v96, v95')
    k('v_permlane32_swap_b32 v95, v96')
    k('v_max_f32 v95, v95, v96')
    k('s_mov_b32 s34, 0x3eb8aa3b')
    for i in range(4):
        k(f'v_sub_f32 v{L+i}, v{L+i}, v95')
    for i in range(4):
        k(f'v_mul_f32 v{L+i}, s34, v{L+i}')
    for i in range(4):
        k(f'v_exp_f32 v{L+i}, v{L+i}')
    k(f'v_add_f32 v95, v{L}, v{L+1}')
    k(f'v_add_f32 v96, v{L+2}, v{L+3}')
    k('v_add_f32 v95, v95, v96')
    k('v_mov_b32 v96, v95')
    k('v_permlane32_swap_b32 v95, v96')
    k('v_add_f32 v95, v95, v96')
    k('v_rcp_f32 v95, v95')
    for i in range(4):
        k(f'v_mul_f32 v{L+i}, v{L+i}, v95')
    for i in range(0, 4, 2):
        k(f'v_cvt_pk_bf16_f32 v{P+i//2}, v{L+i}, v{L+i+1}')
    k('s_mov_b32 s38, 0x05040100')
    k('s_mov_b32 s37, 0x07060302')
    k('s_waitcnt lgkmcnt(0)')
    OO = 24
    for wp in range(2):
        a_, b_ = 2 * wp, 2 * wp + 1
        for j in range(8):
            k(f'v_perm_b32 v{40+2*j}, v{VV(b_)+j}, v{VV(a_)+j}, s38')
            k(f'v_perm_b32 v{41+2*j}, v{VV(b_)+j}, v{VV(a_)+j}, s37')
        for j in range(16):
            src2 = '0' if wp == 0 else f'v{OO+j}'
            k(f'v_dot2_f32_bf16 v{OO+j}, v{40+j}, v{P+wp}, {src2}')
    for d in range(8):
        k(f'v_permlane32_swap_b32 v{OO+d}, v{OO+8+d}')
    for d in range(8):
        k(f'v_add_f32 v{OO+d}, v{OO+d}, v{OO+8+d}')
    for j in range(4):
        k(f'v_cvt_pk_bf16_f32 v{56+j}, v{OO+2*j}, v{OO+2*j+1}')
    k('v_lshlrev_b32 v5, 10, v3')
    k('v_lshl_add_u32 v5, v8, 4, v5')
    k('s_lshl_b32 s34, s29, 7')
    k('s_lshl_b32 s36, s36, 5')
    k('s_add_u32 s34, s34, s36')
    k('v_add_u32 v5, s34, v5')
    k('buffer_store_dwordx4 v[56:59], v5, s[20:23], 0 offen')
    st()
    k('s_waitcnt vmcnt(0)' if DIAG else '')
    st()
    st.flush(8, 9, layer - 1, 6, 7, 60)
    k.label(f'L_k1l{layer}_done')
    k('s_endpgm')
    return k, 4 * SLOT


def k2(layer):
    k = Kern(f'k2l{layer}_kernel', nvgpr=128, accum_offset=128, nsgpr=100)
    st = Stamps(k)
    CH = 16384
    ACC = lambda j: 12 + 4 * j
    RES = lambda j: 44 + 2 * j
    WR = lambda j: 52 + 2 * j
    WF = lambda b, j: 64 + b * 20 + 4 * j
    OF = lambda b: 64 + b * 20 + 16
    k('s_cmp_ge_u32 s2, 256')
    k(f's_cbranch_scc1 L_k2l{layer}_done')
    st()
    k(f's_load_dwordx2 s[4:5], s[0:1], {0 if layer == 1 else 80}')
    k('s_load_dwordx2 s[6:7], s[0:1], 16')
    k('s_load_dwordx2 s[8:9], s[0:1], 80')
    k('s_load_dwordx2 s[10:11], s[0:1], 32')
    k('s_and_b32 s36, s2, 7')
    k('s_lshr_b32 s37, s2, 3')
    k('s_lshl_b32 s36, s36, 2')
    k('s_lshr_b32 s38, s37, 3')
    k('s_add_u32 s36, s36, s38')
    k('s_and_b32 s37, s37, 7')
    k('s_lshl_b32 s36, s36, 6')
    k('s_lshl_b32 s41, s37, 7')
    k('v_and_b32 v1, 63, v0')
    k('v_lshrrev_b32 v2, 6, v0')
    k('v_readfirstlane_b32 s39, v2')
    k('v_lshrrev_b32 v10, 3, v1')
    k('v_and_b32 v11, 7, v1')
    k('v_lshrrev_b32 v61, 4, v1')
    k('s_lshl_b32 s40, s39, 4')
    k('s_add_u32 s40, s40, s36')
    k('s_cmp_lt_u32 s39, 4')
    k(f's_cbranch_scc1 L_k2l{layer}_comp')
    k('s_sub_u32 s39, s39, 4')
    k('s_sub_u32 s40, s40, 64')
    k('v_add_u32 v4, s40, v10')
    k('v_lshlrev_b32 v4, 10, v4')
    k('v_xor_b32 v5, v11, v61')
    k('v_lshl_add_u32 v2, v5, 4, v4')
    k('v_xor_b32 v5, 4, v5')
    k('v_lshl_add_u32 v3, v5, 4, v4')
    k('v_add_u32 v3, 8192, v3')
    k('v_bfe_u32 v4, v10, 1, 1')
    k('s_and_b32 s42, s39, 1')
    k('s_lshl_b32 s42, s42, 1')
    k('v_or_b32 v4, s42, v4')
    k('v_lshrrev_b32 v5, 1, v11')
    k('v_xor_b32 v4, v4, v5')
    k('v_lshlrev_b32 v6, 10, v10')
    k('v_lshl_add_u32 v6, v4, 5, v6')
    k('v_and_b32 v5, 1, v11')
    k('v_lshl_add_u32 v6, v5, 4, v6')
    k('v_add_u32 v6, s41, v6')
    k('s_lshl_b32 s43, s39, 13')
    k('s_lshl_b32 s44, s39, 10')
    k('s_lshl_b32 s45, s39, 11')
    k('s_waitcnt lgkmcnt(0)')
    srd(k, 12, 8, 9, XBYTES, O_OFF)
    srd(k, 16, 6, 7, 512 * 512 * 2)

    def issue2(c):
        k(f's_mov_b32 s46, {c * 128}')
        k(f's_add_u32 m0, s45, {c * CH}')
        k('buffer_load_dwordx4 v2, s[12:15], s46 offen lds')
        k(f's_add_u32 m0, s45, {c * CH + 1024}')
        k('buffer_load_dwordx4 v3, s[12:15], s46 offen lds')
        for i in range(2):
            k(f's_add_u32 s47, s43, {(c * 64 + 32 * i) * 1024}')
            k(f's_add_u32 m0, s44, {c * CH + 8192 + i * 4096}')
            k('buffer_load_dwordx4 v6, s[16:19], s47 offen lds')
    LA = 3
    for c in range(LA):
        issue2(c)
    issued = LA
    for c in range(8):
        k(f's_waitcnt vmcnt({(issued - (c + 1)) * 4})')
        k('s_barrier')
        if issued < 8:
            issue2(issued)
            issued += 1
    k('s_endpgm')
    k.label(f'L_k2l{layer}_comp')
    k('s_lshl_b32 s45, s39, 11')
    k('s_waitcnt lgkmcnt(0)')
    st()
    srd(k, 20, 4, 5, XBYTES, 0 if layer == 1 else X2_OFF)
    srd(k, 24, 8, 9, XBYTES, X1_OFF if layer == 1 else X3_OFF)
    srd(k, 28, 8, 9, 32768, ST_OFF + (layer - 1) * 32768)
    srd(k, 32, 10, 11, 1024)
    k('v_and_b32 v60, 15, v1')
    k('v_add_u32 v62, s40, v60')
    k('v_lshlrev_b32 v9, 10, v62')
    k('v_lshl_add_u32 v9, v61, 3, v9')
    k('v_add_u32 v9, s41, v9')
    k('v_lshlrev_b32 v10, 3, v61')
    k('v_add_u32 v10, s41, v10')
    for j in range(4):
        k(f'buffer_load_dwordx2 v[{RES(j)}:{RES(j)+1}], v9, s[20:23], 0 offen offset:{j*32}')
    for j in range(4):
        k(f'buffer_load_dwordx2 v[{WR(j)}:{WR(j)+1}], v10, s[32:35], 0 offen offset:{j*32}')
    k('v_lshrrev_b32 v4, 1, v60')
    k('v_xor_b32 v4, v4, v61')
    k('v_lshlrev_b32 v2, 7, v60')
    k('v_lshl_add_u32 v2, v4, 4, v2')
    k('v_add_u32 v2, s45, v2')
    k('v_xor_b32 v3, 64, v2')
    k('v_bfe_u32 v8, v1, 2, 2')
    k('v_lshl_add_u32 v11, v61, 3, v8')
    k('v_lshlrev_b32 v11, 7, v11')
    k('v_and_b32 v5, 3, v1')
    k('v_lshl_add_u32 v11, v5, 3, v11')
    k('v_add_u32 v11, 8192, v11')
    k('v_lshrrev_b32 v8, 1, v8')
    k('v_and_b32 v5, 1, v61')
    k('v_lshl_or_b32 v8, v5, 1, v8')
    for j in range(4):
        k(f'v_xor_b32 v{4+j}, {j}, v8')
        k(f'v_lshl_add_u32 v{4+j}, v{4+j}, 5, v11')
    for i in range(6):
        k(f'v_add_u32 v{28+i}, 65536, v{2+i}')
    for v in range(12, 28):
        k(f'v_mov_b32 v{v}, 0')

    def fread(s):
        c, q, b = s // 2, s & 1, s & 1
        hi = c >= 4
        co = (c & 3) * CH
        base = 28 if hi else 2
        for j in range(4):
            k(f'ds_read_b64_tr_b16 v[{WF(b,j)}:{WF(b,j)+1}], v{base+2+j} offset:{co + q*4096}')
            k(f'ds_read_b64_tr_b16 v[{WF(b,j)+2}:{WF(b,j)+3}], v{base+2+j} offset:{co + q*4096 + 512}')
        k(f'ds_read_b128 v[{OF(b)}:{OF(b)+3}], v{base+q} offset:{co}')

    k('s_barrier')
    st()
    fread(0)
    for s in range(16):
        c, q, b = s // 2, s & 1, s & 1
        if q == 1 and c < 7:
            k('s_barrier')
        k('s_waitcnt lgkmcnt(0)')
        if s < 15:
            fread(s + 1)
        for j in range(4):
            k(f'v_mfma_f32_16x16x32_bf16 v[{ACC(j)}:{ACC(j)+3}], v[{WF(b,j)}:{WF(b,j)+3}], v[{OF(b)}:{OF(b)+3}], v[{ACC(j)}:{ACC(j)+3}]')
    st()
    k('s_mov_b32 s46, 0xffff0000')
    k('v_mov_b32 v63, 0x3f803f80')
    k('v_mov_b32 v108, 0')
    k('v_mov_b32 v109, 0')
    k('v_mov_b32 v110, 0')
    k('s_waitcnt vmcnt(0)')
    for j in range(4):
        for h in range(2):
            a = ACC(j) + 2 * h
            o = 112 + 2 * j + h
            k(f'v_cvt_pk_bf16_f32 v120, v{a}, v{a+1}')
            k('v_lshlrev_b32 v121, 16, v120')
            k('v_and_b32 v122, s46, v120')
            k(f'v_lshlrev_b32 v123, 16, v{RES(j)+h}')
            k(f'v_and_b32 v124, s46, v{RES(j)+h}')
            k('v_add_f32 v121, v121, v123')
            k('v_add_f32 v122, v122, v124')
            k(f'v_cvt_pk_bf16_f32 v{o}, v121, v122')
            k(f'v_dot2c_f32_bf16 v108, v{o}, v63')
            k(f'v_dot2c_f32_bf16 v109, v{o}, v{o}')
            k(f'v_dot2c_f32_bf16 v110, v{o}, v{WR(j)+h}')
        k(f'buffer_store_dwordx2 v[{112+2*j}:{113+2*j}], v9, s[24:27], 0 offen offset:{j*32}')
    for v in range(108, 111):
        xrow_reduce(k, v, 125 + v - 108)
    k('v_mov_b32 v111, 0')
    k('v_cmp_eq_u32 vcc, 1, v61')
    k('v_cndmask_b32 v108, v108, v109, vcc')
    k('v_cmp_eq_u32 vcc, 2, v61')
    k('v_cndmask_b32 v108, v108, v110, vcc')
    k('v_cmp_eq_u32 vcc, 3, v61')
    k('v_cndmask_b32 v108, v108, v111, vcc')
    k('v_lshlrev_b32 v120, 4, v62')
    k('v_lshl_add_u32 v120, v61, 2, v120')
    k('buffer_atomic_add_f32 v108, v120, s[28:31], 0 offen')
    st()
    k('s_waitcnt vmcnt(0)' if DIAG else '')
    st()
    st.flush(8, 9, 2 + layer - 1, 6, 7, 60)
    k.label(f'L_k2l{layer}_done')
    k('s_endpgm')
    return k, 131072


def normalize_dword(k, x, m, rinv, t0, t1, s_mask, out):
    k(f'v_lshlrev_b32 v{t0}, 16, v{x}')
    k(f'v_and_b32 v{t1}, s{s_mask}, v{x}')
    k(f'v_sub_f32 v{t0}, v{t0}, v{m}')
    k(f'v_sub_f32 v{t1}, v{t1}, v{m}')
    k(f'v_cvt_pk_bf16_f32 v{t0}, v{t0}, v{t1}')
    k(f'v_and_b32 v{t1}, s{s_mask}, v{t0}')
    k(f'v_lshlrev_b32 v{t0}, 16, v{t0}')
    k(f'v_mul_f32 v{t0}, v{t0}, v{rinv}')
    k(f'v_mul_f32 v{t1}, v{t1}, v{rinv}')
    k(f'v_cvt_pk_bf16_f32 v{out}, v{t0}, v{t1}')


def add_dwords(k, a, b, t0, t1, t2, t3, s_mask, out):
    k(f'v_lshlrev_b32 v{t0}, 16, v{a}')
    k(f'v_and_b32 v{t1}, s{s_mask}, v{a}')
    k(f'v_lshlrev_b32 v{t2}, 16, v{b}')
    k(f'v_and_b32 v{t3}, s{s_mask}, v{b}')
    k(f'v_add_f32 v{t0}, v{t0}, v{t2}')
    k(f'v_add_f32 v{t1}, v{t1}, v{t3}')
    k(f'v_cvt_pk_bf16_f32 v{out}, v{t0}, v{t1}')


def dpp_max_reduce(k, src, t):
    k(f'v_max_u32_dpp v{t}, v{src}, v{src} quad_perm:[1,0,3,2] row_mask:0xf bank_mask:0xf')
    k(f'v_max_u32_dpp v{t}, v{t}, v{t} quad_perm:[2,3,0,1] row_mask:0xf bank_mask:0xf')
    k(f'v_max_u32_dpp v{t}, v{t}, v{t} row_half_mirror row_mask:0xf bank_mask:0xf')
    k(f'v_max_u32_dpp v{t}, v{t}, v{t} row_mirror row_mask:0xf bank_mask:0xf')
    k(f'v_max_u32_dpp v{t}, v{t}, v{t} row_bcast:15 row_mask:0xa bank_mask:0xf')
    k(f'v_max_u32_dpp v{t}, v{t}, v{t} row_bcast:31 row_mask:0xc bank_mask:0xf')


NFFN = 56
NLN = 128
PART_OFF = 9 * MB


def reducer(k, layer, st):
    k(f's_sub_u32 s40, s2, {NFFN + NLN}')
    k('s_lshr_b32 s68, s40, 2')
    k('s_and_b32 s69, s40, 3')
    k('v_and_b32 v1, 31, v0')
    k('v_lshrrev_b32 v2, 5, v0')
    k('v_mul_u32_u24 v3, 114688, v2')
    k('v_lshl_add_u32 v3, v1, 4, v3')
    k('s_lshl_b32 s40, s68, 11')
    k('s_lshl_b32 s41, s69, 9')
    k('s_add_u32 s40, s40, s41')
    k('v_add_u32 v3, s40, v3')
    srd(k, 36, 4, 5, 56 * 16384, PART_OFF)
    srd(k, 32, 4, 5, SM_SIZE, SM_OFF)
    if layer == 1:
        srd(k, 44, 4, 5, XBYTES, X2_OFF)
    else:
        srd(k, 44, 70, 71, XBYTES)
    k('s_lshl_b32 s41, s68, 2')
    k(f's_add_u32 s41, s41, {SEL_REL}')
    k('v_mov_b32 v4, 0')
    k('s_mov_b32 s42, 0')
    k.label(f'L_red{layer}_poll')
    k('buffer_load_dword v5, v4, s[96:99], 0 offen sc1')
    k('s_add_u32 s42, s42, 1')
    k('s_waitcnt vmcnt(0)')
    k('v_readfirstlane_b32 s43, v5')
    k(f's_cmp_ge_u32 s43, {NFFN + NLN}')
    k(f's_cbranch_scc1 L_red{layer}_go')
    k('s_cmp_lt_u32 s42, 0x200000')
    k(f's_cbranch_scc1 L_red{layer}_poll')
    k.label(f'L_red{layer}_go')
    k('buffer_load_dword v26, v4, s[32:35], s41 offen sc1')
    for i in range(7):
        k(f's_mov_b32 s40, {i * 16384}')
        k(f'buffer_load_dwordx4 v[{32+4*i}:{35+4*i}], v3, s[36:39], s40 offen sc1')
    k('s_waitcnt vmcnt(7)')
    k('v_and_b32 v28, 0x7ff, v26')
    k('v_sub_u32 v28, 2047, v28')
    k('v_lshlrev_b32 v30, 4, v28')
    k('buffer_load_dwordx2 v[14:15], v30, s[24:27], 0 offen')
    k('v_lshlrev_b32 v31, 10, v28')
    k('v_lshl_add_u32 v31, v1, 3, v31')
    k('s_lshl_b32 s41, s69, 8')
    k('v_add_u32 v31, s41, v31')
    k('buffer_load_dwordx2 v[16:17], v31, s[12:15], 0 offen')
    k('s_waitcnt vmcnt(2)')
    for i in range(1, 7):
        for e in range(4):
            k(f'v_add_f32 v{32+e}, v{32+e}, v{32+4*i+e}')
    k('v_lshlrev_b32 v5, 4, v0')
    k('ds_write_b128 v5, v[32:35]')
    k('s_waitcnt lgkmcnt(0)')
    k('s_barrier')
    k('v_cmp_gt_u32 vcc, 32, v0')
    k('s_and_saveexec_b64 s[48:49], vcc')
    k(f's_cbranch_execz L_k4l{layer}_done')
    for g in range(8):
        k(f'ds_read_b128 v[{32+4*g}:{35+4*g}], v5 offset:{g*512}')
    k('s_waitcnt lgkmcnt(0)')
    for g in range(1, 8):
        for e in range(4):
            k(f'v_add_f32 v{32+e}, v{32+e}, v{32+4*g+e}')
    for e in range(0, 4, 2):
        k(f'v_cvt_pk_bf16_f32 v40, v{32+e}, v{33+e}')
        k(f'v_lshlrev_b32 v{32+e}, 16, v40')
        k(f'v_and_b32 v{33+e}, s72, v40')
    k('v_and_b32 v20, s72, v26')
    k('v_ashrrev_i32 v21, 31, v20')
    k('v_not_b32 v21, v21')
    k('v_or_b32 v21, 0x80000000, v21')
    k('v_xor_b32 v20, v20, v21')
    k('v_and_b32 v20, s72, v20')
    k('s_mov_b32 s40, 0xbfb8aa3b')
    k('v_mul_f32 v20, s40, v20')
    k('v_exp_f32 v20, v20')
    k('v_add_f32 v20, 1.0, v20')
    k('v_rcp_f32 v20, v20')
    k('v_cvt_pk_bf16_f32 v20, v20, v20')
    k('v_lshlrev_b32 v20, 16, v20')
    for e in range(4):
        k(f'v_mul_f32 v{32+e}, v{32+e}, v20')
    k('v_cvt_pk_bf16_f32 v44, v32, v33')
    k('v_cvt_pk_bf16_f32 v45, v34, v35')
    k('s_waitcnt vmcnt(0)')
    ln_scalars(k, 14, 15, 10, 11, 12, 13, 72, 73, 74)
    for d in range(2):
        normalize_dword(k, 16 + d, 10, 11, 12, 13, 72, 18)
        add_dwords(k, 18, 44 + d, 12, 13, 19, 22, 72, 18)
        add_dwords(k, 16 + d, 18, 12, 13, 19, 22, 72, 46 + d)
    k('buffer_store_dwordx2 v[46:47], v31, s[44:47], 0 offen sc1')
    if DIAG == 2:
        st.flush(4, 5, 6 + layer - 1, 6, 7, 60)


def k4(layer):
    k = Kern(f'k4l{layer}_kernel', nvgpr=128, accum_offset=128, nsgpr=102)
    st = Stamps(k, base=80)
    GOFF, UOFF, DOFF, RED = 0, 32768, 65536, 98304
    CAND = RED + 16384
    HB = CAND + 128
    CNT = HB + 1024
    k(f's_cmp_ge_u32 s2, {NFFN + NLN + 32}')
    k(f's_cbranch_scc1 L_k4l{layer}_done')
    st()
    k('s_load_dwordx2 s[4:5], s[0:1], 80')
    k('s_load_dwordx2 s[64:65], s[0:1], 72')
    k('s_load_dwordx2 s[6:7], s[0:1], 40')
    k('s_load_dwordx2 s[8:9], s[0:1], 48')
    k('s_load_dwordx2 s[10:11], s[0:1], 32')
    k('s_load_dwordx2 s[70:71], s[0:1], 64')
    k('s_load_dwordx2 s[66:67], s[0:1], 56')
    k('v_and_b32 v1, 63, v0')
    k('v_lshrrev_b32 v2, 6, v0')
    k('v_readfirstlane_b32 s68, v2')
    k('s_mov_b32 s72, 0xffff0000')
    k('s_mov_b32 s73, 0x3b000000')
    k('s_mov_b32 s74, 0x3727c5ac')
    k('v_lshlrev_b32 v3, 4, v0')
    k('s_waitcnt lgkmcnt(0)')
    srd(k, 12, 4, 5, XBYTES, X1_OFF if layer == 1 else X3_OFF)
    srd(k, 24, 4, 5, 32768, ST_OFF + (layer - 1) * 32768)
    srd(k, 96, 64, 65, 256)
    k(f's_cmp_ge_u32 s2, {NFFN + NLN}')
    k(f's_cbranch_scc1 L_k4l{layer}_red')
    k(f's_cmp_ge_u32 s2, {NFFN}')
    k(f's_cbranch_scc1 L_k4l{layer}_ln')
    k('s_and_b32 s69, s2, 7')
    k('s_mul_i32 s69, s69, 7')
    k('s_lshr_b32 s75, s2, 3')
    k('s_add_u32 s69, s69, s75')
    k('s_cmp_lt_u32 s68, 4')
    k(f's_cbranch_scc1 L_k4l{layer}_comp')
    k('s_sub_u32 s68, s68, 4')
    srd(k, 16, 6, 7, 512 * 1792 * 2)
    srd(k, 20, 8, 9, 512 * 1792 * 2)
    srd(k, 44, 66, 67, 1792 * 512 * 2)
    k('s_barrier')
    k('v_lshrrev_b32 v5, 2, v1')
    k('v_mul_u32_u24 v6, 3584, v5')
    k('v_lshrrev_b32 v7, 5, v1')
    k('v_lshlrev_b32 v7, 1, v7')
    k('v_and_b32 v8, 3, v1')
    k('v_xor_b32 v7, v7, v8')
    k('v_lshl_add_u32 v6, v7, 4, v6')
    k('s_lshl_b32 s75, s69, 6')
    k('v_add_u32 v6, s75, v6')
    k('s_mul_i32 s76, s68, 458752')
    k('s_lshl_b32 s77, s68, 13')
    for mat in range(2):
        for i in range(8):
            k(f's_add_u32 s40, s76, {16 * i * 3584}')
            k(f's_add_u32 m0, s77, {mat * 32768 + i * 1024}')
            k(f'buffer_load_dwordx4 v6, s[{16+4*mat}:{19+4*mat}], s40 offen lds')
    k('v_lshrrev_b32 v7, 1, v1')
    k('v_and_b32 v8, 1, v1')
    k('s_lshl_b32 s78, s69, 15')
    k('s_lshl_b32 s79, s68, 13')
    k('s_add_u32 s78, s78, s79')
    for i in range(8):
        k('s_and_b32 s40, s68, 1')
        k('s_lshl_b32 s40, s40, 2')
        k(f's_or_b32 s40, s40, {i & 3}')
        k('v_xor_b32 v9, s40, v7')
        k('v_lshlrev_b32 v9, 5, v9')
        k('v_lshl_add_u32 v9, v8, 4, v9')
        k(f's_add_u32 s41, s78, {i * 1024}')
        k(f's_add_u32 m0, s79, {DOFF + i * 1024}')
        k('buffer_load_dwordx4 v9, s[44:47], s41 offen lds')
    k('s_waitcnt vmcnt(0)')
    k('s_barrier')
    k('s_endpgm')
    k.label(f'L_k4l{layer}_comp')
    for i in range(8):
        k(f's_mov_b32 s40, {4096 * i}')
        k(f'buffer_load_dwordx4 v[{32+4*i}:{35+4*i}], v3, s[24:27], s40 offen')
    srd(k, 28, 10, 11, 1024)
    k('v_lshlrev_b32 v4, 4, v1')
    k('buffer_load_dwordx4 v[64:67], v4, s[28:31], 0 offen')
    srd(k, 32, 4, 5, SM_SIZE, SM_OFF)
    k('s_lshl_b32 s77, s68, 13')
    k(f'v_mov_b32 v5, {CNT}')
    k('v_mov_b32 v6, 0')
    k('ds_write_b32 v5, v6')
    k('s_waitcnt lgkmcnt(0)')
    k('s_barrier')
    st()
    k('v_mov_b32 v8, 0x3f803f80')
    k('v_mov_b32 v9, 0')
    k('s_waitcnt vmcnt(0)')
    st()
    for d in range(4):
        k(f'v_dot2c_f32_bf16 v9, v{64+d}, v8')
    k('v_add_f32_dpp v9, v9, v9 quad_perm:[1,0,3,2] row_mask:0xf bank_mask:0xf')
    k('v_add_f32_dpp v9, v9, v9 quad_perm:[2,3,0,1] row_mask:0xf bank_mask:0xf')
    k('v_add_f32_dpp v9, v9, v9 row_half_mirror row_mask:0xf bank_mask:0xf')
    k('v_add_f32_dpp v9, v9, v9 row_mirror row_mask:0xf bank_mask:0xf')
    xrow_reduce(k, 9, 10)
    for i in range(8):
        b = 32 + 4 * i
        ln_scalars(k, b, b + 1, 10, 11, 12, 13, 72, 73, 74)
        k(f'v_fma_f32 v12, -v10, v9, v{b+2}')
        k('v_mul_f32 v12, v12, v11')
        k('v_cvt_pk_bf16_f32 v12, v12, v12')
        k('v_lshlrev_b32 v12, 16, v12')
        k('v_ashrrev_i32 v13, 31, v12')
        k('v_or_b32 v13, 0x80000000, v13')
        k('v_xor_b32 v12, v12, v13')
        k(f'v_sub_u32 v13, {2047 - 256 * i}, v0')
        k(f'v_and_or_b32 v{16+i}, v12, s72, v13')
    regs = list(range(16, 24))
    spare = 24
    net = [(0, 1), (2, 3), (4, 5), (6, 7), (0, 2), (1, 3), (4, 6), (5, 7), (1, 2), (5, 6), (0, 4), (3, 7),
           (1, 5), (2, 6), (1, 4), (3, 6), (2, 4), (3, 5), (3, 4)]
    for (a, b) in net:
        k(f'v_max_u32 v{spare}, v{regs[a]}, v{regs[b]}')
        k(f'v_min_u32 v{regs[b]}, v{regs[a]}, v{regs[b]}')
        regs[a], spare = spare, regs[a]
    k('v_mov_b32 v26, 0')
    st()
    for n in range(8):
        dpp_max_reduce(k, regs[0], 25)
        k(f'v_readlane_b32 s{50+n}, v25, 63')
        k(f'v_writelane_b32 v26, s{50+n}, {n}')
        if n < 7:
            k(f'v_cmp_eq_u32 vcc, s{50+n}, v{regs[0]}')
            for i in range(7 - n):
                k(f'v_cndmask_b32 v{regs[i]}, v{regs[i]}, v{regs[i+1]}, vcc')
    k('s_lshl_b32 s40, s68, 5')
    k('v_lshlrev_b32 v27, 2, v1')
    k('v_add_u32 v27, s40, v27')
    k(f'v_add_u32 v27, {RED}, v27')
    k('v_cmp_gt_u32 vcc, 8, v1')
    k('s_and_saveexec_b64 s[48:49], vcc')
    k(f'ds_write_b32 v27, v26 offset:{CAND - RED}')
    k('s_mov_b64 exec, 1')
    k('v_mov_b32 v6, 1')
    k('ds_add_u32 v5, v6')
    k('s_mov_b64 exec, s[48:49]')
    k.label(f'L_k4l{layer}_poll')
    k('ds_read_b32 v6, v5')
    k('s_waitcnt lgkmcnt(0)')
    k('v_readfirstlane_b32 s40, v6')
    k('s_cmp_lt_u32 s40, 4')
    k(f's_cbranch_scc1 L_k4l{layer}_poll')
    k('v_and_b32 v27, 31, v1')
    k('v_lshlrev_b32 v27, 2, v27')
    k(f'v_add_u32 v27, {RED}, v27')
    k(f'ds_read_b32 v28, v27 offset:{CAND - RED}')
    k('v_mov_b32 v26, 0')
    k('s_waitcnt lgkmcnt(0)')
    st()
    for n in range(8):
        dpp_max_reduce(k, 28, 25)
        k(f'v_readlane_b32 s{58+n}, v25, 63')
        k(f'v_writelane_b32 v26, s{58+n}, {n}')
        if n < 7:
            k(f'v_cmp_eq_u32 vcc, s{58+n}, v28')
            k('v_cndmask_b32 v28, v28, 0, vcc')
    st()
    k('v_and_b32 v27, 7, v1')
    k('v_lshlrev_b32 v27, 2, v27')
    k('ds_bpermute_b32 v28, v27, v26')
    k('v_lshrrev_b32 v61, 4, v1')
    k('s_or_b32 s40, s2, s68')
    k('s_cmp_lg_u32 s40, 0')
    k(f's_cbranch_scc1 L_k4l{layer}_nokeys')
    k('v_lshlrev_b32 v27, 2, v1')
    k('v_cmp_gt_u32 vcc, 8, v1')
    k('s_and_saveexec_b64 s[48:49], vcc')
    k(f's_mov_b32 s40, {SEL_REL}')
    k('buffer_store_dword v26, v27, s[32:35], s40 offen sc1')
    k('s_mov_b64 exec, s[48:49]')
    k.label(f'L_k4l{layer}_nokeys')
    k('s_waitcnt lgkmcnt(0)')
    k('v_and_b32 v28, 0x7ff, v28')
    k('v_sub_u32 v28, 2047, v28')
    k('v_lshlrev_b32 v29, 10, v28')
    k('v_lshl_add_u32 v29, v61, 4, v29')
    k('s_lshl_b32 s40, s68, 8')
    k('v_lshlrev_b32 v30, 4, v28')
    k('buffer_load_dwordx2 v[14:15], v30, s[24:27], 0 offen')
    for s in range(4):
        k(f'buffer_load_dwordx4 v[{32+4*s}:{35+4*s}], v29, s[12:15], s40 offen offset:{s*64}')
    k('v_bfe_u32 v62, v1, 2, 2')
    k('v_lshl_add_u32 v62, v61, 3, v62')
    k('v_lshlrev_b32 v62, 6, v62')
    k('v_and_b32 v63, 1, v61')
    k('v_lshl_add_u32 v62, v63, 5, v62')
    k('v_and_b32 v63, 3, v1')
    k('v_lshl_add_u32 v62, v63, 3, v62')
    k('v_add_u32 v62, s77, v62')
    k('v_xor_b32 v63, 32, v62')
    k('s_barrier')
    st()
    FR = lambda mat, tl, s: 64 + ((mat * 2 + tl) * 4 + s) * 4
    cnt = 0
    for s in range(4):
        for mat in range(2):
            for tl in range(2):
                b = FR(mat, tl, s)
                if cnt >= 12:
                    k('s_waitcnt lgkmcnt(10)')
                k(f'ds_read_b64_tr_b16 v[{b}:{b+1}], v{62+tl} offset:{mat*32768 + s*2048}')
                k(f'ds_read_b64_tr_b16 v[{b+2}:{b+3}], v{62+tl} offset:{mat*32768 + s*2048 + 256}')
                cnt += 2
    k('s_waitcnt vmcnt(4)')
    ln_scalars(k, 14, 15, 10, 11, 12, 13, 72, 73, 74)
    k('s_waitcnt vmcnt(0)')
    for d in range(16):
        normalize_dword(k, 32 + d, 10, 11, 12, 13, 72, 32 + d)
    for v in range(48, 64):
        if v not in (61,):
            pass
    AC = lambda mat, tl: 16 + (mat * 2 + tl) * 4
    for v in range(16, 32):
        k(f'v_mov_b32 v{v}, 0')
    k('s_waitcnt lgkmcnt(0)')
    for s in range(4):
        for mat in range(2):
            for tl in range(2):
                b = FR(mat, tl, s)
                a = AC(mat, tl)
                k(f'v_mfma_f32_16x16x32_bf16 v[{a}:{a+3}], v[{b}:{b+3}], v[{32+4*s}:{35+4*s}], v[{a}:{a+3}]')
    st()
    k('s_lshl_b32 s40, s68, 12')
    k('v_lshlrev_b32 v56, 4, v1')
    k(f'v_add_u32 v56, {RED}, v56')
    k('v_add_u32 v57, s40, v56')
    for q in range(4):
        k(f'ds_write_b128 v57, v[{16+4*q}:{19+4*q}] offset:{q*1024}')
    k('s_waitcnt lgkmcnt(0)')
    k('s_barrier')
    k('s_cmp_ge_u32 s68, 2')
    k(f's_cbranch_scc1 L_k4l{layer}_skiph')
    k('s_lshl_b32 s40, s68, 10')
    k('v_add_u32 v57, s40, v56')
    for w in range(4):
        k(f'ds_read_b128 v[{64+8*w}:{67+8*w}], v57 offset:{w*4096}')
        k(f'ds_read_b128 v[{68+8*w}:{71+8*w}], v57 offset:{w*4096 + 2048}')
    k('s_waitcnt lgkmcnt(0)')
    for e in range(8):
        k(f'v_add_f32 v{64+e}, v{64+e}, v{72+e}')
        k(f'v_add_f32 v{80+e}, v{80+e}, v{88+e}')
    for e in range(8):
        k(f'v_add_f32 v{64+e}, v{64+e}, v{80+e}')
    for e in range(0, 8, 2):
        k(f'v_cvt_pk_bf16_f32 v72, v{64+e}, v{65+e}')
        k(f'v_lshlrev_b32 v{64+e}, 16, v72')
        k(f'v_and_b32 v{65+e}, s72, v72')
    k('s_mov_b32 s40, 0xbfb8aa3b')
    for e in range(4):
        k(f'v_mul_f32 v{72+e}, s40, v{64+e}')
    for e in range(4):
        k(f'v_exp_f32 v{72+e}, v{72+e}')
    for e in range(4):
        k(f'v_add_f32 v{72+e}, 1.0, v{72+e}')
    for e in range(4):
        k(f'v_rcp_f32 v{72+e}, v{72+e}')
    for e in range(4):
        k(f'v_mul_f32 v{64+e}, v{64+e}, v{72+e}')
    for e in range(0, 4, 2):
        k(f'v_cvt_pk_bf16_f32 v72, v{64+e}, v{65+e}')
        k(f'v_lshlrev_b32 v{64+e}, 16, v72')
        k(f'v_and_b32 v{65+e}, s72, v72')
    for e in range(4):
        k(f'v_mul_f32 v{64+e}, v{64+e}, v{68+e}')
    k('v_cvt_pk_bf16_f32 v76, v64, v65')
    k('v_cvt_pk_bf16_f32 v77, v66, v67')
    k('v_and_b32 v58, 15, v1')
    k('v_lshlrev_b32 v58, 6, v58')
    k('v_lshl_add_u32 v58, v61, 3, v58')
    k('s_lshl_b32 s40, s68, 5')
    k('v_add_u32 v58, s40, v58')
    k(f'v_add_u32 v58, {RED}, v58')
    k(f'ds_write_b64 v58, v[76:77] offset:{HB - RED}')
    k.label(f'L_k4l{layer}_skiph')
    k('s_waitcnt lgkmcnt(0)')
    k('s_barrier')
    k('v_and_b32 v58, 15, v1')
    k('v_lshlrev_b32 v59, 6, v58')
    k('v_lshl_add_u32 v59, v61, 4, v59')
    k(f'v_add_u32 v59, {RED}, v59')
    k(f'ds_read_b128 v[32:35], v59 offset:{HB - RED}')
    k('v_bfe_u32 v60, v1, 2, 2')
    k('v_lshl_add_u32 v36, v61, 3, v60')
    k('v_lshlrev_b32 v36, 10, v36')
    k('v_and_b32 v37, 3, v1')
    k('v_lshl_add_u32 v36, v37, 3, v36')
    k(f'v_add_u32 v36, {DOFF}, v36')
    k('v_and_b32 v37, 1, v61')
    k('v_lshl_or_b32 v60, v37, 2, v60')
    k('s_lshl_b32 s40, s68, 8')
    k('v_add_u32 v36, s40, v36')
    for j in range(8):
        k(f'v_xor_b32 v37, {j}, v60')
        k(f'v_lshl_add_u32 v{40+j}, v37, 5, v36')
    for j in range(7):
        k(f'ds_read_b64_tr_b16 v[{64+4*j}:{65+4*j}], v{40+j}')
        k(f'ds_read_b64_tr_b16 v[{66+4*j}:{67+4*j}], v{40+j} offset:4096')
    k('s_waitcnt lgkmcnt(8)')
    k('ds_read_b64_tr_b16 v[92:93], v47')
    k('ds_read_b64_tr_b16 v[94:95], v47 offset:4096')
    srd(k, 36, 4, 5, 56 * 16384, PART_OFF)
    k('v_lshlrev_b32 v38, 11, v58')
    k('v_lshl_add_u32 v38, v61, 4, v38')
    k('s_lshl_b32 s40, s69, 14')
    k('s_lshl_b32 s41, s68, 9')
    k('s_add_u32 s40, s40, s41')
    k('v_add_u32 v38, s40, v38')
    k('s_waitcnt lgkmcnt(0)')
    for j in range(8):
        k(f'v_mfma_f32_16x16x32_bf16 v[{96+4*j}:{99+4*j}], v[{64+4*j}:{67+4*j}], v[32:35], 0')
    k('v_cmp_gt_u32 vcc, 8, v58')
    k('s_and_saveexec_b64 s[48:49], vcc')
    for j in range(8):
        k(f'buffer_store_dwordx4 v[{96+4*j}:{99+4*j}], v38, s[36:39], 0 offen offset:{j*64} sc1')
    k('s_mov_b64 exec, s[48:49]')
    st()
    k.label(f'L_k4l{layer}_signal')
    k('s_waitcnt vmcnt(0)')
    k('s_barrier')
    k('v_cmp_eq_u32 vcc, 0, v0')
    k('s_and_saveexec_b64 s[48:49], vcc')
    k(f's_cbranch_execz L_k4l{layer}_sigdone')
    k('v_mov_b32 v2, 1')
    k('v_mov_b32 v3, 0')
    k('buffer_atomic_add v2, v3, s[96:99], 0 offen sc1')
    k.label(f'L_k4l{layer}_sigdone')
    k('s_mov_b64 exec, s[48:49]')
    st()
    st.flush(4, 5, 4 + layer - 1, 6, 7, 60)
    k(f's_branch L_k4l{layer}_done')
    k.label(f'L_k4l{layer}_ln')
    if layer == 1:
        srd(k, 36, 4, 5, XBYTES, X2_OFF)
    else:
        srd(k, 36, 70, 71, XBYTES)
    k(f's_sub_u32 s40, s2, {NFFN}')
    k('s_lshl_b32 s40, s40, 4')
    k('v_lshrrev_b32 v2, 5, v0')
    k('v_add_u32 v2, s40, v2')
    k('v_lshlrev_b32 v3, 4, v2')
    k('buffer_load_dwordx2 v[14:15], v3, s[24:27], 0 offen')
    k('v_and_b32 v4, 31, v0')
    k('v_lshlrev_b32 v3, 10, v2')
    k('v_lshl_add_u32 v3, v4, 4, v3')
    for s in range(2):
        k(f'buffer_load_dwordx4 v[{32+4*s}:{35+4*s}], v3, s[12:15], 0 offen offset:{s*512}')
    k('s_waitcnt vmcnt(2)')
    ln_scalars(k, 14, 15, 10, 11, 12, 13, 72, 73, 74)
    for s in range(2):
        k('s_waitcnt vmcnt(1)')
        for d in range(4):
            x = 32 + 4 * s + d
            normalize_dword(k, x, 10, 11, 12, 13, 72, 16)
            add_dwords(k, x, 16, 12, 13, 17, 18, 72, 48 + 4 * s + d)
        k(f'buffer_store_dwordx4 v[{48+4*s}:{51+4*s}], v3, s[36:39], 0 offen offset:{s*512} sc1')
    k(f's_branch L_k4l{layer}_signal')
    k.label(f'L_k4l{layer}_red')
    k('s_cmp_ge_u32 s68, 4')
    k(f's_cbranch_scc1 L_k4l{layer}_done')
    reducer(k, layer, st)
    k.label(f'L_k4l{layer}_done')
    k('s_endpgm')
    return k, HB + 1024 + 64


def k5(layer):
    k = Kern(f'k5l{layer}_kernel', nvgpr=64, accum_offset=64, nsgpr=100)
    st = Stamps(k, base=80)
    k('s_cmp_ge_u32 s2, 32')
    k(f's_cbranch_scc1 L_k5l{layer}_done')
    st()
    k('s_load_dwordx2 s[4:5], s[0:1], 80')
    k('s_load_dwordx2 s[70:71], s[0:1], 64')
    k('s_mov_b32 s72, 0xffff0000')
    k('s_mov_b32 s73, 0x3b000000')
    k('s_mov_b32 s74, 0x3727c5ac')
    k('s_lshr_b32 s68, s2, 2')
    k('s_and_b32 s69, s2, 3')
    k('v_and_b32 v1, 31, v0')
    k('v_lshrrev_b32 v2, 5, v0')
    k('v_mul_u32_u24 v3, 114688, v2')
    k('v_lshl_add_u32 v3, v1, 4, v3')
    k('s_lshl_b32 s40, s68, 11')
    k('s_lshl_b32 s41, s69, 9')
    k('s_add_u32 s40, s40, s41')
    k('v_add_u32 v3, s40, v3')
    k('s_waitcnt lgkmcnt(0)')
    srd(k, 36, 4, 5, 56 * 16384, PART_OFF)
    srd(k, 32, 4, 5, SM_SIZE, SM_OFF)
    k('s_lshl_b32 s41, s68, 2')
    k(f's_add_u32 s41, s41, {SEL_REL}')
    k('v_mov_b32 v4, 0')
    k('buffer_load_dword v26, v4, s[32:35], s41 offen')
    for i in range(7):
        k(f's_mov_b32 s40, {i * 16384}')
        k(f'buffer_load_dwordx4 v[{32+4*i}:{35+4*i}], v3, s[36:39], s40 offen')
    srd(k, 12, 4, 5, XBYTES, X1_OFF if layer == 1 else X3_OFF)
    srd(k, 24, 4, 5, 32768, ST_OFF + (layer - 1) * 32768)
    if layer == 1:
        srd(k, 44, 4, 5, XBYTES, X2_OFF)
    else:
        srd(k, 44, 70, 71, XBYTES)
    k('s_waitcnt vmcnt(7)')
    k('v_and_b32 v28, 0x7ff, v26')
    k('v_sub_u32 v28, 2047, v28')
    k('v_lshlrev_b32 v30, 4, v28')
    k('buffer_load_dwordx2 v[14:15], v30, s[24:27], 0 offen')
    k('v_lshlrev_b32 v31, 10, v28')
    k('v_lshl_add_u32 v31, v1, 3, v31')
    k('s_lshl_b32 s41, s69, 8')
    k('v_add_u32 v31, s41, v31')
    k('buffer_load_dwordx2 v[16:17], v31, s[12:15], 0 offen')
    k('s_waitcnt vmcnt(2)')
    for i in range(1, 7):
        for e in range(4):
            k(f'v_add_f32 v{32+e}, v{32+e}, v{32+4*i+e}')
    k('v_lshlrev_b32 v5, 4, v0')
    k('ds_write_b128 v5, v[32:35]')
    k('s_waitcnt lgkmcnt(0)')
    k('s_barrier')
    k('v_cmp_gt_u32 vcc, 32, v0')
    k('s_and_saveexec_b64 s[48:49], vcc')
    k(f's_cbranch_execz L_k5l{layer}_done')
    for g in range(8):
        k(f'ds_read_b128 v[{32+4*g}:{35+4*g}], v5 offset:{g*512}')
    k('s_waitcnt lgkmcnt(0)')
    for g in range(1, 8):
        for e in range(4):
            k(f'v_add_f32 v{32+e}, v{32+e}, v{32+4*g+e}')
    for e in range(0, 4, 2):
        k(f'v_cvt_pk_bf16_f32 v40, v{32+e}, v{33+e}')
        k(f'v_lshlrev_b32 v{32+e}, 16, v40')
        k(f'v_and_b32 v{33+e}, s72, v40')
    k('v_and_b32 v20, s72, v26')
    k('v_ashrrev_i32 v21, 31, v20')
    k('v_not_b32 v21, v21')
    k('v_or_b32 v21, 0x80000000, v21')
    k('v_xor_b32 v20, v20, v21')
    k('v_and_b32 v20, s72, v20')
    k('s_mov_b32 s40, 0xbfb8aa3b')
    k('v_mul_f32 v20, s40, v20')
    k('v_exp_f32 v20, v20')
    k('v_add_f32 v20, 1.0, v20')
    k('v_rcp_f32 v20, v20')
    k('v_cvt_pk_bf16_f32 v20, v20, v20')
    k('v_lshlrev_b32 v20, 16, v20')
    for e in range(4):
        k(f'v_mul_f32 v{32+e}, v{32+e}, v20')
    k('v_cvt_pk_bf16_f32 v44, v32, v33')
    k('v_cvt_pk_bf16_f32 v45, v34, v35')
    k('s_waitcnt vmcnt(0)')
    ln_scalars(k, 14, 15, 10, 11, 12, 13, 72, 73, 74)
    for d in range(2):
        normalize_dword(k, 16 + d, 10, 11, 12, 13, 72, 18)
        add_dwords(k, 18, 44 + d, 12, 13, 19, 22, 72, 18)
        add_dwords(k, 16 + d, 18, 12, 13, 19, 22, 72, 46 + d)
    k('buffer_store_dwordx2 v[46:47], v31, s[44:47], 0 offen')
    if DIAG == 2:
        st.flush(4, 5, 6 + layer - 1, 6, 7, 60)
    k.label(f'L_k5l{layer}_done')
    k('s_endpgm')
    return k, 4096


def build(path, extra_launch=0):
    hdr = open('interleave_layers__sliding_local_dilated__moe_arch_mod__prompt.s.ref').read().split('; Override')[0]
    ks = []
    launches = []
    for layer in (1, 2):
        for fn, grid, blk in ((k1, 256, 512), (k2, 256, 512), (k4, NFFN + NLN + 32, 512)):
            kk, lds = fn(layer)
            ks.append(kk)
            launches.append(f'; @launch kernel={kk.name} grid=({grid},1,1) block=({blk},1,1) lds={lds}')
    if extra_launch:
        e = Kern('nop_kernel', nvgpr=8, accum_offset=8, nsgpr=16)
        e('s_endpgm')
        ks.append(e)
        for i in range(extra_launch):
            launches.append('; @launch kernel=nop_kernel grid=(256,1,1) block=(256,1,1) lds=0')
    out = hdr + '\n'.join(launches) + '\n.amdgcn_target "amdgcn-amd-amdhsa--gfx950"\n.text\n'
    for kk in ks:
        out += kk.text()
    out += '.section .rodata,"a"\n'
    for kk in ks:
        out += kk.desc()
    open(path, 'w').write(out)


if __name__ == '__main__':
    path = sys.argv[1] if len(sys.argv) > 1 else 'interleave_layers__sliding_local_dilated__moe_arch_mod__prompt.s'
    if len(sys.argv) > 3:
        DIAG = int(sys.argv[3])
    build(path, int(sys.argv[2]) if len(sys.argv) > 2 else 0)
```

```python
import sys
sys.path.insert(0, 'gen')
from asmlib import Kern

MB = 1 << 20
O_OFF = 0
X1_OFF = 2 * MB
X2_OFF = 4 * MB
X3_OFF = 6 * MB
ST_OFF = 8 * MB
SM_OFF = 8 * MB + 65536
H_REL = 0
SEL_REL = 32768
SM_SIZE = 65536

XBYTES = 2048 * 512 * 2
NPF = 64


def srd(k, d, lo, hi, size, add=0):
    if add:
        k(f's_add_u32 s{d}, s{lo}, {add}')
        k(f's_addc_u32 s{d+1}, s{hi}, 0')
        k(f's_and_b32 s{d+1}, s{d+1}, 0xffff')
    else:
        k(f's_mov_b32 s{d}, s{lo}')
        k(f's_and_b32 s{d+1}, s{hi}, 0xffff')
    k(f's_mov_b32 s{d+2}, {size}')
    k(f's_mov_b32 s{d+3}, 0x00020000')


DIAG = False
DBG_OFF = 16 * MB


class Stamps:
    def __init__(self, k, base=64):
        self.k = k
        self.n = 0
        self.base = base

    def __call__(self):
        if DIAG == 2:
            if self.n == 0:
                self.rt()
            return
        if DIAG:
            b = self.base + 2 * self.n
            self.k(f's_memtime s[{b}:{b+1}]')
            self.n += 1

    def rt(self):
        if DIAG:
            b = self.base + 2 * self.n
            self.k(f's_memrealtime s[{b}:{b+1}]')
            self.n += 1

    def flush(self, ws_lo, ws_hi, slot, vt0, vt1, sd):
        if not DIAG:
            return
        k = self.k
        n_save = self.n
        if DIAG == 2:
            k('s_waitcnt vmcnt(0)')
            self.rt()
        k('s_waitcnt lgkmcnt(0)')
        srd(k, sd, ws_lo, ws_hi, 1 << 20, DBG_OFF + slot * (1 << 18))
        k(f'v_mov_b32 v{vt0}, 0')
        for i in range(self.n):
            k(f'v_writelane_b32 v{vt0}, s{self.base + 2*i}, {i}')
        k(f'v_lshrrev_b32 v{vt1}, 6, v0')
        k(f's_lshl_b32 s{self.base}, s2, 3')
        k(f'v_add_u32 v{vt1}, s{self.base}, v{vt1}')
        k(f'v_lshlrev_b32 v{vt1}, 6, v{vt1}')
        k(f'v_and_b32 v{vt0+1 if False else vt1+1}, 63, v0')
        k(f'v_lshl_add_u32 v{vt1}, v{vt1+1}, 2, v{vt1}')
        k(f'v_cmp_gt_u32 vcc, 16, v{vt1+1}')
        k('s_and_b64 exec, exec, vcc')
        k(f'buffer_store_dword v{vt0}, v{vt1}, s[{sd}:{sd+3}], 0 offen')
        self.n = n_save


def xrow_reduce(k, v, tmp):
    k(f'v_mov_b32 v{tmp}, v{v}')
    k(f'v_permlane16_swap_b32 v{v}, v{tmp}')
    k(f'v_add_f32 v{v}, v{v}, v{tmp}')
    k(f'v_mov_b32 v{tmp}, v{v}')
    k(f'v_permlane32_swap_b32 v{v}, v{tmp}')
    k(f'v_add_f32 v{v}, v{v}, v{tmp}')


def ln_scalars(k, s1, s2, m, rinv, t1, t2, s_mask, s_inv512, s_eps):
    k(f'v_mul_f32 v{t1}, s{s_inv512}, v{s1}')
    k(f'v_mul_f32 v{t2}, s{s_inv512}, v{s2}')
    k(f'v_fma_f32 v{t2}, -v{t1}, v{t1}, v{t2}')
    k(f'v_max_f32 v{t2}, 0, v{t2}')
    k(f'v_cvt_pk_bf16_f32 v{t1}, v{t1}, v{t2}')
    k(f'v_lshlrev_b32 v{m}, 16, v{t1}')
    k(f'v_and_b32 v{t2}, s{s_mask}, v{t1}')
    k(f'v_add_f32 v{t2}, s{s_eps}, v{t2}')
    k(f'v_cvt_pk_bf16_f32 v{t2}, v{t2}, v{t2}')
    k(f'v_lshlrev_b32 v{t2}, 16, v{t2}')
    k(f'v_sqrt_f32 v{t2}, v{t2}')
    k(f'v_cvt_pk_bf16_f32 v{t2}, v{t2}, v{t2}')
    k(f'v_lshlrev_b32 v{t2}, 16, v{t2}')
    k(f'v_rcp_f32 v{rinv}, v{t2}')


def k1(layer):
    k = Kern(f'k1l{layer}_kernel', nvgpr=200, accum_offset=200, nsgpr=100)
    st = Stamps(k)
    SLOT = 34816
    WOFF = 10240
    STAT = 0
    QKVA = 1024
    ROWB = 112
    ACC = lambda sg, t: 16 + (sg * 5 + t) * 4
    CS = lambda sg: 76 + 4 * sg
    XFB = lambda b, t: 88 + b * 24 + t * 4
    WFB = lambda b, sg: 136 + b * 12 + sg * 4
    ONES = 160
    k('s_cmp_ge_u32 s2, 256')
    k(f's_cbranch_scc1 L_k1l{layer}_done')
    st()
    k(f's_load_dwordx2 s[4:5], s[0:1], {0 if layer == 1 else 80}')
    k('s_load_dwordx2 s[6:7], s[0:1], 8')
    k('s_load_dwordx2 s[8:9], s[0:1], 80')
    k('s_and_b32 s28, s2, 7')
    k('s_lshr_b32 s29, s2, 3')
    k('s_lshr_b32 s30, s28, 1')
    k('s_lshl_b32 s30, s30, 3')
    k('s_lshr_b32 s31, s29, 2')
    k('s_add_u32 s30, s30, s31')
    k('s_and_b32 s28, s28, 1')
    k('s_lshl_b32 s28, s28, 2')
    k('s_and_b32 s29, s29, 3')
    k('s_add_u32 s29, s28, s29')
    k('s_lshl_b32 s31, s30, 6')
    k('v_and_b32 v1, 63, v0')
    k('v_lshrrev_b32 v2, 6, v0')
    k('v_readfirstlane_b32 s30, v2')
    k('v_lshrrev_b32 v10, 3, v1')
    k('v_and_b32 v11, 7, v1')
    k('v_lshrrev_b32 v12, 4, v1')
    k('s_cmp_lt_u32 s30, 4')
    k(f's_cbranch_scc1 L_k1l{layer}_comp')
    k('s_sub_u32 s30, s30, 4')
    k('s_lshl_b32 s34, s30, 4')
    k('s_add_u32 s34, s34, s31')
    k('v_add_u32 v13, s34, v10')
    k('v_lshlrev_b32 v13, 10, v13')
    k('v_xor_b32 v14, v11, v12')
    k('v_lshl_add_u32 v2, v14, 4, v13')
    k('v_xor_b32 v14, 4, v14')
    k('v_lshl_add_u32 v3, v14, 4, v13')
    k('v_add_u32 v3, 8192, v3')
    k('s_lshl_b32 s34, s30, 2')
    k('s_add_u32 s34, s34, s31')
    k('s_sub_u32 s34, s34, 16')
    k('v_add_u32 v13, s34, v10')
    k('v_lshlrev_b32 v13, 10, v13')
    k('s_lshl_b32 s34, s30, 1')
    k('v_add_u32 v14, s34, v12')
    k('v_and_b32 v14, 7, v14')
    k('v_xor_b32 v14, v11, v14')
    k('v_lshl_add_u32 v4, v14, 4, v13')
    k('v_bfe_u32 v13, v10, 1, 1')
    k('s_and_b32 s34, s30, 1')
    k('s_lshl_b32 s34, s34, 1')
    k('v_or_b32 v13, s34, v13')
    k('v_lshrrev_b32 v14, 1, v11')
    k('v_xor_b32 v13, v13, v14')
    k('v_mul_u32_u24 v5, 3072, v10')
    k('v_lshl_add_u32 v5, v13, 5, v5')
    k('v_and_b32 v14, 1, v11')
    k('v_lshl_add_u32 v5, v14, 4, v5')
    k('s_lshl_b32 s34, s29, 7')
    k('v_add_u32 v5, s34, v5')
    k('s_mul_i32 s32, s30, 24576')
    k('s_lshl_b32 s33, s30, 10')
    k('s_lshl_b32 s35, s30, 11')
    k('s_add_u32 s35, s35, 2048')
    k('s_lshl_b32 s36, s30, 9')
    k('s_waitcnt lgkmcnt(0)')
    srd(k, 12, 4, 5, XBYTES, 0 if layer == 1 else X2_OFF)
    srd(k, 16, 6, 7, 512 * 1536 * 2)
    k('s_mov_b64 s[56:57], 0xffffffff')

    def issue_chunk(c):
        sb = (c % 4) * SLOT
        k(f's_mov_b32 s37, {c * 128}')
        k(f's_add_u32 m0, s35, {sb}')
        k('buffer_load_dwordx4 v2, s[12:15], s37 offen lds')
        k(f's_add_u32 m0, s35, {sb + 1024}')
        k('buffer_load_dwordx4 v3, s[12:15], s37 offen lds')
        k(f's_add_u32 m0, s36, {sb}')
        k('s_mov_b64 exec, s[56:57]')
        k('buffer_load_dwordx4 v4, s[12:15], s37 offen lds')
        k('s_mov_b64 exec, -1')
        for sg in range(3):
            for i in range(2):
                k(f's_add_u32 s34, s32, {(c * 64 + 32 * i) * 3072 + sg * 1024}')
                k(f's_add_u32 m0, s33, {sb + WOFF + sg * 8192 + i * 4096}')
                k('buffer_load_dwordx4 v5, s[16:19], s34 offen lds')

    issue_chunk(0)
    issue_chunk(1)
    if layer == 1:
        srd(k, 24, 8, 9, 65536, ST_OFF)
    k('v_lshlrev_b32 v6, 5, v1')
    k('v_add_u32 v6, s35, v6')
    k('v_and_b32 v7, 31, v1')
    k('v_lshlrev_b32 v7, 4, v7')
    k('v_add_u32 v7, s36, v7')
    for v in range(120, 128):
        k(f'v_mov_b32 v{v}, 0')
    k('s_mov_b32 s52, 0xffff0000')
    k('s_mov_b32 s53, 0x3b000000')
    k('s_mov_b32 s54, 0x3727c5ac')
    for c in range(8):
        k(f's_waitcnt vmcnt({9 if c < 7 else 0})')
        k('s_barrier')
        sl = c % 4
        if sl == 2:
            k(f'v_add_u32 v6, {2 * SLOT}, v6')
            k(f'v_add_u32 v7, {2 * SLOT}, v7')
        if sl == 0 and c > 0:
            k(f'v_subrev_u32 v6, {2 * SLOT}, v6')
            k(f'v_subrev_u32 v7, {2 * SLOT}, v7')
        so = (sl & 1) * SLOT
        k(f'ds_read_b128 v[100:103], v6 offset:{so}')
        k(f'ds_read_b128 v[104:107], v6 offset:{so + 16}')
        k(f'ds_read_b128 v[108:111], v7 offset:{so}')
        if c + 2 <= 7:
            issue_chunk(c + 2)
        k('s_waitcnt lgkmcnt(0)')
        for d in range(12):
            acc = 120 if d < 8 else 124
            k(f'v_lshlrev_b32 v112, 16, v{100+d}')
            k(f'v_and_b32 v113, s52, v{100+d}')
            k(f'v_add_f32 v{acc}, v{acc}, v112')
            k(f'v_add_f32 v{acc+1}, v{acc+1}, v113')
            k(f'v_fma_f32 v{acc+2}, v112, v112, v{acc+2}')
            k(f'v_fma_f32 v{acc+3}, v113, v113, v{acc+3}')
    k('v_add_f32 v120, v120, v121')
    k('v_add_f32 v121, v122, v123')
    k('v_add_f32 v122, v124, v125')
    k('v_add_f32 v123, v126, v127')
    for v in range(120, 124):
        k(f'v_add_f32_dpp v{v}, v{v}, v{v} quad_perm:[1,0,3,2] row_mask:0xf bank_mask:0xf')
    for v in range(120, 124):
        k(f'v_add_f32_dpp v{v}, v{v}, v{v} quad_perm:[2,3,0,1] row_mask:0xf bank_mask:0xf')
    for v in range(122, 124):
        k(f'v_add_f32_dpp v{v}, v{v}, v{v} row_half_mirror row_mask:0xf bank_mask:0xf')
    ln_scalars(k, 120, 121, 124, 125, 112, 113, 52, 53, 54)
    ln_scalars(k, 122, 123, 126, 127, 114, 115, 52, 53, 54)
    k('v_lshrrev_b32 v112, 2, v1')
    k('v_lshlrev_b32 v112, 3, v112')
    k('s_lshl_b32 s34, s30, 7')
    k('v_add_u32 v112, s34, v112')
    k(f'ds_write_b64 v112, v[124:125] offset:{STAT}')
    k('v_bfe_u32 v112, v1, 3, 2')
    k('v_lshlrev_b32 v112, 3, v112')
    k('s_lshl_b32 s34, s30, 5')
    k('v_add_u32 v112, s34, v112')
    k(f'ds_write_b64 v112, v[126:127] offset:{STAT + 512}')
    if layer == 1:
        k('s_cmp_lg_u32 s30, 0')
        k(f's_cbranch_scc1 L_k1l{layer}_nz')
        k('v_mov_b32 v100, 0')
        k('v_mov_b32 v101, 0')
        k('v_mov_b32 v102, 0')
        k('v_mov_b32 v103, 0')
        k('s_lshl_b32 s34, s2, 8')
        k('v_lshlrev_b32 v104, 4, v1')
        k('v_add_u32 v104, s34, v104')
        k('v_cmp_gt_u32 vcc, 16, v1')
        k('s_and_saveexec_b64 s[58:59], vcc')
        k('buffer_store_dwordx4 v[100:103], v104, s[24:27], 0 offen')
        k('s_mov_b64 exec, s[58:59]')
        k.label(f'L_k1l{layer}_nz')
    srd(k, 20, 8, 9, XBYTES, O_OFF)
    k('s_waitcnt lgkmcnt(0)')
    k('s_barrier')
    if layer == 1:
        k('s_load_dwordx2 s[60:61], s[0:1], 16')
        k('s_load_dwordx4 s[64:67], s[0:1], 40')
        k('s_load_dwordx2 s[62:63], s[0:1], 56')
        k('s_and_b32 s84, s2, 7')
        k('s_lshr_b32 s85, s2, 3')
        k('v_lshrrev_b32 v20, 5, v1')
        k('v_mul_u32_u24 v20, 3584, v20')
        k('v_and_b32 v21, 31, v1')
        k('v_lshl_add_u32 v20, v21, 4, v20')
        k('v_lshlrev_b32 v21, 4, v1')
        k('s_mul_i32 s34, s84, 448')
        k('s_lshl_b32 s37, s85, 4')
        k('s_lshl_b32 s38, s30, 2')
        k('s_add_u32 s37, s37, s38')
        k('s_mul_i32 s37, s37, 3584')
        k('s_add_u32 s34, s34, s37')
        k('s_waitcnt lgkmcnt(0)')
        srd(k, 68, 64, 65, 512 * 1792 * 2)
        srd(k, 72, 66, 67, 512 * 1792 * 2)
        srd(k, 76, 62, 63, 1792 * 512 * 2)
        srd(k, 80, 60, 61, 512 * 512 * 2)
        k('s_lshl_b32 s37, s85, 4')
        k('s_add_u32 s37, s37, s38')
        k('s_lshl_b32 s37, s37, 10')
        for i in range(4):
            k(f'buffer_load_dwordx4 v[{154+4*i}:{157+4*i}], v21, s[80:83], s37 offen offset:{i*1024}')
        for i in range(2):
            k(f's_add_u32 s37, s34, {2 * i * 3584}')
            k(f'buffer_load_dwordx4 v[{130+8*i}:{133+8*i}], v20, s[68:71], s37 offen')
            k(f'buffer_load_dwordx4 v[{134+8*i}:{137+8*i}], v20, s[72:75], s37 offen')
        k('s_mul_i32 s34, s84, 224')
        k('s_mul_i32 s37, s85, 7')
        k('s_add_u32 s34, s34, s37')
        k('s_add_u32 s34, s34, s30')
        k('s_lshl_b32 s34, s34, 10')
        k('buffer_load_dwordx4 v[146:149], v21, s[76:79], s34 offen')
        k('s_add_u32 s34, s34, 4096')
        k('buffer_load_dwordx4 v[150:153], v21, s[76:79], s34 offen')
    k('s_add_u32 s30, s30, 4')
    k(f's_branch L_k1l{layer}_attn')
    k.label(f'L_k1l{layer}_comp')
    k('s_lshl_b32 s35, s30, 11')
    k('s_add_u32 s35, s35, 2048')
    k('s_waitcnt lgkmcnt(0)')
    srd(k, 20, 8, 9, XBYTES, O_OFF)
    st()
    k('v_and_b32 v10, 15, v1')
    k('v_lshrrev_b32 v13, 1, v10')
    k('v_xor_b32 v13, v13, v12')
    k('v_lshlrev_b32 v6, 7, v10')
    k('v_lshl_add_u32 v6, v13, 4, v6')
    k('v_xor_b32 v7, 64, v6')
    k('v_add_u32 v8, s35, v6')
    k('v_add_u32 v9, s35, v7')
    k('v_bfe_u32 v13, v1, 2, 2')
    k('v_lshl_add_u32 v14, v12, 3, v13')
    k('v_lshlrev_b32 v164, 7, v14')
    k('v_lshrrev_b32 v13, 1, v13')
    k('v_and_b32 v14, 1, v12')
    k('v_lshl_or_b32 v13, v14, 1, v13')
    k('v_xor_b32 v13, s30, v13')
    k('v_lshl_add_u32 v164, v13, 5, v164')
    k('v_and_b32 v14, 3, v1')
    k('v_lshl_add_u32 v164, v14, 3, v164')
    k(f'v_add_u32 v164, {WOFF}, v164')
    for (d, sreg) in ((165, 6), (166, 7), (167, 8), (168, 9), (169, 164)):
        k(f'v_add_u32 v{d}, {2 * SLOT}, v{sreg}')
    for v in range(16, 88):
        k(f'v_mov_b32 v{v}, 0')
    for v in range(ONES, ONES + 4):
        k(f'v_mov_b32 v{v}, 0x3f803f80')
    for v in range(170, 174):
        k(f'v_mov_b32 v{v}, 0')

    def fread(s):
        c, q, b = s // 2, s & 1, s & 1
        slot = c % 4
        hi = slot >= 2
        so = (slot & 1) * SLOT
        xb = (166 if q else 165) if hi else (7 if q else 6)
        sbase = (168 if q else 167) if hi else (9 if q else 8)
        wb = 169 if hi else 164
        for sg in range(3):
            o = so + sg * 8192 + q * 4096
            k(f'ds_read_b64_tr_b16 v[{WFB(b,sg)}:{WFB(b,sg)+1}], v{wb} offset:{o}')
            k(f'ds_read_b64_tr_b16 v[{WFB(b,sg)+2}:{WFB(b,sg)+3}], v{wb} offset:{o+512}')
        for t in range(4):
            k(f'ds_read_b128 v[{XFB(b,t)}:{XFB(b,t)+3}], v{xb} offset:{so + 2048 + t * 2048}')
        k(f'ds_read_b128 v[{XFB(b,4)}:{XFB(b,4)+3}], v{xb} offset:{so}')

    k('s_barrier')
    st()
    fread(0)
    for s in range(16):
        c, q, b = s // 2, s & 1, s & 1
        k('s_waitcnt lgkmcnt(0)')
        if q == 1 and c < 7:
            if c in (1, 3, 5): st()
            k('s_barrier')
            if c in (1, 3, 5): st()
        if s < 15:
            fread(s + 1)
        for sg in range(3):
            w = WFB(b, sg)
            for t in range(5):
                if sg == 0 and t == 4:
                    continue
                a = ACC(sg, t)
                k(f'v_mfma_f32_16x16x32_bf16 v[{a}:{a+3}], v[{w}:{w+3}], v[{XFB(b,t)}:{XFB(b,t)+3}], v[{a}:{a+3}]')
            a = CS(sg)
            k(f'v_mfma_f32_16x16x32_bf16 v[{a}:{a+3}], v[{w}:{w+3}], v[{ONES}:{ONES+3}], v[{a}:{a+3}]')
    st()
    k('s_mov_b32 s52, 0xffff0000')
    k('s_mov_b32 s53, 0x3b000000')
    k('s_mov_b32 s54, 0x3727c5ac')
    k('v_lshlrev_b32 v13, 3, v10')
    k('s_barrier')
    for t in range(5):
        k(f'ds_read_b64 v[{90+2*t}:{91+2*t}], v13 offset:{STAT + t * 128}')
    k(f'v_mul_u32_u24 v14, {ROWB}, v10')
    k('v_lshl_add_u32 v14, v12, 3, v14')
    k('s_mul_i32 s34, s30, 8960')
    k('v_add_u32 v14, s34, v14')
    k('s_waitcnt lgkmcnt(0)')
    for sg in range(3):
        for t in range(5):
            if sg == 0 and t == 4:
                continue
            a = ACC(sg, t)
            m, ri = (90 + 2 * t, 91 + 2 * t)
            for r in range(4):
                k(f'v_fma_f32 v{a+r}, -v{m}, v{CS(sg)+r}, v{a+r}')
            for r in range(4):
                k(f'v_mul_f32 v{a+r}, v{a+r}, v{ri}')
            k(f'v_cvt_pk_bf16_f32 v{a}, v{a}, v{a+1}')
            k(f'v_cvt_pk_bf16_f32 v{a+1}, v{a+2}, v{a+3}')
            rowoff = 0 if t == 4 else (16 + 16 * t) * ROWB
            k(f'ds_write_b64 v14, v[{a}:{a+1}] offset:{QKVA + rowoff + sg * 32}')
    st()
    k.label(f'L_k1l{layer}_attn')
    k('s_waitcnt lgkmcnt(0)')
    k('s_barrier')
    k('s_lshr_b32 s34, s30, 2')
    k('s_lshl_b32 s34, s34, 5')
    k('v_and_b32 v2, 31, v1')
    k('v_add_u32 v2, s34, v2')
    k('v_lshrrev_b32 v8, 5, v1')
    k('v_add_u32 v3, s31, v2')
    k('v_lshlrev_b32 v9, 3, v8')
    k('v_sub_u32 v7, v3, v9')
    k('v_sub_u32 v4, v2, v9')
    k('v_add_u32 v4, 10, v4')
    k(f'v_mul_u32_u24 v4, {ROWB}, v4')
    k('s_and_b32 s36, s30, 3')
    k('s_mul_i32 s34, s36, 8960')
    k('v_add_u32 v4, s34, v4')
    k('v_add_u32 v6, 16, v2')
    k(f'v_mul_u32_u24 v6, {ROWB}, v6')
    k('v_add_u32 v6, s34, v6')
    Q = 16
    KK = lambda i: 24 + 8 * i
    VV = lambda i: 56 + 8 * i
    k(f'ds_read_b128 v[{Q}:{Q+3}], v6 offset:{QKVA}')
    k(f'ds_read_b128 v[{Q+4}:{Q+7}], v6 offset:{QKVA + 16}')
    for i in range(4):
        o = QKVA + (6 - 2 * i) * ROWB + 32
        k(f'ds_read_b128 v[{KK(i)}:{KK(i)+3}], v4 offset:{o}')
        k(f'ds_read_b128 v[{KK(i)+4}:{KK(i)+7}], v4 offset:{o+16}')
    for i in range(2):
        o = QKVA + (6 - 2 * i) * ROWB + 64
        k(f'ds_read_b128 v[{VV(i)}:{VV(i)+3}], v4 offset:{o}')
        k(f'ds_read_b128 v[{VV(i)+4}:{VV(i)+7}], v4 offset:{o+16}')
    k('s_waitcnt lgkmcnt(4)')
    for i in range(2, 4):
        o = QKVA + (6 - 2 * i) * ROWB + 64
        k(f'ds_read_b128 v[{VV(i)}:{VV(i)+3}], v4 offset:{o}')
        k(f'ds_read_b128 v[{VV(i)+4}:{VV(i)+7}], v4 offset:{o+16}')
    L = 88
    P = 92
    for j in range(8):
        for i in range(4):
            src2 = '0' if j == 0 else f'v{L+i}'
            k(f'v_dot2_f32_bf16 v{L+i}, v{Q+j}, v{KK(i)+j}, {src2}')
    for i in range(0, 4, 2):
        k(f'v_cvt_pk_bf16_f32 v{P+i//2}, v{L+i}, v{L+i+1}')
    for i in range(0, 4, 2):
        k(f'v_lshlrev_b32 v{L+i}, 16, v{P+i//2}')
        k(f'v_and_b32 v{L+i+1}, s52, v{P+i//2}')
    k('v_mov_b32 v94, 0xcf6e6b28')
    for i in range(4):
        k(f'v_cmp_le_i32 vcc, {2*i}, v7')
        k(f'v_cndmask_b32 v{L+i}, v94, v{L+i}, vcc')
    k(f'v_max3_f32 v95, v{L}, v{L+1}, v{L+2}')
    k(f'v_max_f32 v95, v95, v{L+3}')
    k('v_mov_b32 v96, v95')
    k('v_permlane32_swap_b32 v95, v96')
    k('v_max_f32 v95, v95, v96')
    k('s_mov_b32 s34, 0x3eb8aa3b')
    for i in range(4):
        k(f'v_sub_f32 v{L+i}, v{L+i}, v95')
    for i in range(4):
        k(f'v_mul_f32 v{L+i}, s34, v{L+i}')
    for i in range(4):
        k(f'v_exp_f32 v{L+i}, v{L+i}')
    k(f'v_add_f32 v95, v{L}, v{L+1}')
    k(f'v_add_f32 v96, v{L+2}, v{L+3}')
    k('v_add_f32 v95, v95, v96')
    k('v_mov_b32 v96, v95')
    k('v_permlane32_swap_b32 v95, v96')
    k('v_add_f32 v95, v95, v96')
    k('v_rcp_f32 v95, v95')
    for i in range(4):
        k(f'v_mul_f32 v{L+i}, v{L+i}, v95')
    for i in range(0, 4, 2):
        k(f'v_cvt_pk_bf16_f32 v{P+i//2}, v{L+i}, v{L+i+1}')
    k('s_mov_b32 s38, 0x05040100')
    k('s_mov_b32 s37, 0x07060302')
    k('s_waitcnt lgkmcnt(0)')
    OO = 24
    for wp in range(2):
        a_, b_ = 2 * wp, 2 * wp + 1
        for j in range(8):
            k(f'v_perm_b32 v{40+2*j}, v{VV(b_)+j}, v{VV(a_)+j}, s38')
            k(f'v_perm_b32 v{41+2*j}, v{VV(b_)+j}, v{VV(a_)+j}, s37')
        for j in range(16):
            src2 = '0' if wp == 0 else f'v{OO+j}'
            k(f'v_dot2_f32_bf16 v{OO+j}, v{40+j}, v{P+wp}, {src2}')
    for d in range(8):
        k(f'v_permlane32_swap_b32 v{OO+d}, v{OO+8+d}')
    for d in range(8):
        k(f'v_add_f32 v{OO+d}, v{OO+d}, v{OO+8+d}')
    for j in range(4):
        k(f'v_cvt_pk_bf16_f32 v{56+j}, v{OO+2*j}, v{OO+2*j+1}')
    k('v_lshlrev_b32 v5, 10, v3')
    k('v_lshl_add_u32 v5, v8, 4, v5')
    k('s_lshl_b32 s34, s29, 7')
    k('s_lshl_b32 s36, s36, 5')
    k('s_add_u32 s34, s34, s36')
    k('v_add_u32 v5, s34, v5')
    k('buffer_store_dwordx4 v[56:59], v5, s[20:23], 0 offen')
    st()
    k('s_waitcnt vmcnt(0)' if DIAG else '')
    st()
    st.flush(8, 9, layer - 1, 6, 7, 60)
    k.label(f'L_k1l{layer}_done')
    k('s_endpgm')
    return k, 4 * SLOT


def k2(layer):
    k = Kern(f'k2l{layer}_kernel', nvgpr=128, accum_offset=128, nsgpr=100)
    st = Stamps(k)
    CH = 16384
    ACC = lambda j: 12 + 4 * j
    RES = lambda j: 44 + 2 * j
    WR = lambda j: 52 + 2 * j
    WF = lambda b, j: 64 + b * 20 + 4 * j
    OF = lambda b: 64 + b * 20 + 16
    k('s_cmp_ge_u32 s2, 256')
    k(f's_cbranch_scc1 L_k2l{layer}_done')
    st()
    k(f's_load_dwordx2 s[4:5], s[0:1], {0 if layer == 1 else 80}')
    k('s_load_dwordx2 s[6:7], s[0:1], 16')
    k('s_load_dwordx2 s[8:9], s[0:1], 80')
    k('s_load_dwordx2 s[10:11], s[0:1], 32')
    k('s_and_b32 s36, s2, 7')
    k('s_lshr_b32 s37, s2, 3')
    k('s_lshl_b32 s36, s36, 2')
    k('s_lshr_b32 s38, s37, 3')
    k('s_add_u32 s36, s36, s38')
    k('s_and_b32 s37, s37, 7')
    k('s_lshl_b32 s36, s36, 6')
    k('s_lshl_b32 s41, s37, 7')
    k('v_and_b32 v1, 63, v0')
    k('v_lshrrev_b32 v2, 6, v0')
    k('v_readfirstlane_b32 s39, v2')
    k('v_lshrrev_b32 v10, 3, v1')
    k('v_and_b32 v11, 7, v1')
    k('v_lshrrev_b32 v61, 4, v1')
    k('s_lshl_b32 s40, s39, 4')
    k('s_add_u32 s40, s40, s36')
    k('s_cmp_lt_u32 s39, 4')
    k(f's_cbranch_scc1 L_k2l{layer}_comp')
    k('s_sub_u32 s39, s39, 4')
    k('s_sub_u32 s40, s40, 64')
    k('v_add_u32 v4, s40, v10')
    k('v_lshlrev_b32 v4, 10, v4')
    k('v_xor_b32 v5, v11, v61')
    k('v_lshl_add_u32 v2, v5, 4, v4')
    k('v_xor_b32 v5, 4, v5')
    k('v_lshl_add_u32 v3, v5, 4, v4')
    k('v_add_u32 v3, 8192, v3')
    k('v_bfe_u32 v4, v10, 1, 1')
    k('s_and_b32 s42, s39, 1')
    k('s_lshl_b32 s42, s42, 1')
    k('v_or_b32 v4, s42, v4')
    k('v_lshrrev_b32 v5, 1, v11')
    k('v_xor_b32 v4, v4, v5')
    k('v_lshlrev_b32 v6, 10, v10')
    k('v_lshl_add_u32 v6, v4, 5, v6')
    k('v_and_b32 v5, 1, v11')
    k('v_lshl_add_u32 v6, v5, 4, v6')
    k('v_add_u32 v6, s41, v6')
    k('s_lshl_b32 s43, s39, 13')
    k('s_lshl_b32 s44, s39, 10')
    k('s_lshl_b32 s45, s39, 11')
    k('s_waitcnt lgkmcnt(0)')
    srd(k, 12, 8, 9, XBYTES, O_OFF)
    srd(k, 16, 6, 7, 512 * 512 * 2)

    def issue2(c):
        k(f's_mov_b32 s46, {c * 128}')
        k(f's_add_u32 m0, s45, {c * CH}')
        k('buffer_load_dwordx4 v2, s[12:15], s46 offen lds')
        k(f's_add_u32 m0, s45, {c * CH + 1024}')
        k('buffer_load_dwordx4 v3, s[12:15], s46 offen lds')
        for i in range(2):
            k(f's_add_u32 s47, s43, {(c * 64 + 32 * i) * 1024}')
            k(f's_add_u32 m0, s44, {c * CH + 8192 + i * 4096}')
            k('buffer_load_dwordx4 v6, s[16:19], s47 offen lds')
    LA = 3
    for c in range(LA):
        issue2(c)
    issued = LA
    for c in range(8):
        k(f's_waitcnt vmcnt({(issued - (c + 1)) * 4})')
        k('s_barrier')
        if issued < 8:
            issue2(issued)
            issued += 1
    k('s_endpgm')
    k.label(f'L_k2l{layer}_comp')
    k('s_lshl_b32 s45, s39, 11')
    k('s_waitcnt lgkmcnt(0)')
    st()
    srd(k, 20, 4, 5, XBYTES, 0 if layer == 1 else X2_OFF)
    srd(k, 24, 8, 9, XBYTES, X1_OFF if layer == 1 else X3_OFF)
    srd(k, 28, 8, 9, 32768, ST_OFF + (layer - 1) * 32768)
    srd(k, 32, 10, 11, 1024)
    k('v_and_b32 v60, 15, v1')
    k('v_add_u32 v62, s40, v60')
    k('v_lshlrev_b32 v9, 10, v62')
    k('v_lshl_add_u32 v9, v61, 3, v9')
    k('v_add_u32 v9, s41, v9')
    k('v_lshlrev_b32 v10, 3, v61')
    k('v_add_u32 v10, s41, v10')
    for j in range(4):
        k(f'buffer_load_dwordx2 v[{RES(j)}:{RES(j)+1}], v9, s[20:23], 0 offen offset:{j*32}')
    for j in range(4):
        k(f'buffer_load_dwordx2 v[{WR(j)}:{WR(j)+1}], v10, s[32:35], 0 offen offset:{j*32}')
    k('v_lshrrev_b32 v4, 1, v60')
    k('v_xor_b32 v4, v4, v61')
    k('v_lshlrev_b32 v2, 7, v60')
    k('v_lshl_add_u32 v2, v4, 4, v2')
    k('v_add_u32 v2, s45, v2')
    k('v_xor_b32 v3, 64, v2')
    k('v_bfe_u32 v8, v1, 2, 2')
    k('v_lshl_add_u32 v11, v61, 3, v8')
    k('v_lshlrev_b32 v11, 7, v11')
    k('v_and_b32 v5, 3, v1')
    k('v_lshl_add_u32 v11, v5, 3, v11')
    k('v_add_u32 v11, 8192, v11')
    k('v_lshrrev_b32 v8, 1, v8')
    k('v_and_b32 v5, 1, v61')
    k('v_lshl_or_b32 v8, v5, 1, v8')
    for j in range(4):
        k(f'v_xor_b32 v{4+j}, {j}, v8')
        k(f'v_lshl_add_u32 v{4+j}, v{4+j}, 5, v11')
    for i in range(6):
        k(f'v_add_u32 v{28+i}, 65536, v{2+i}')
    for v in range(12, 28):
        k(f'v_mov_b32 v{v}, 0')

    def fread(s):
        c, q, b = s // 2, s & 1, s & 1
        hi = c >= 4
        co = (c & 3) * CH
        base = 28 if hi else 2
        for j in range(4):
            k(f'ds_read_b64_tr_b16 v[{WF(b,j)}:{WF(b,j)+1}], v{base+2+j} offset:{co + q*4096}')
            k(f'ds_read_b64_tr_b16 v[{WF(b,j)+2}:{WF(b,j)+3}], v{base+2+j} offset:{co + q*4096 + 512}')
        k(f'ds_read_b128 v[{OF(b)}:{OF(b)+3}], v{base+q} offset:{co}')

    k('s_barrier')
    st()
    fread(0)
    for s in range(16):
        c, q, b = s // 2, s & 1, s & 1
        if q == 1 and c < 7:
            k('s_barrier')
        k('s_waitcnt lgkmcnt(0)')
        if s < 15:
            fread(s + 1)
        for j in range(4):
            k(f'v_mfma_f32_16x16x32_bf16 v[{ACC(j)}:{ACC(j)+3}], v[{WF(b,j)}:{WF(b,j)+3}], v[{OF(b)}:{OF(b)+3}], v[{ACC(j)}:{ACC(j)+3}]')
    st()
    k('s_mov_b32 s46, 0xffff0000')
    k('v_mov_b32 v63, 0x3f803f80')
    k('v_mov_b32 v108, 0')
    k('v_mov_b32 v109, 0')
    k('v_mov_b32 v110, 0')
    k('s_waitcnt vmcnt(0)')
    for j in range(4):
        for h in range(2):
            a = ACC(j) + 2 * h
            o = 112 + 2 * j + h
            k(f'v_cvt_pk_bf16_f32 v120, v{a}, v{a+1}')
            k('v_lshlrev_b32 v121, 16, v120')
            k('v_and_b32 v122, s46, v120')
            k(f'v_lshlrev_b32 v123, 16, v{RES(j)+h}')
            k(f'v_and_b32 v124, s46, v{RES(j)+h}')
            k('v_add_f32 v121, v121, v123')
            k('v_add_f32 v122, v122, v124')
            k(f'v_cvt_pk_bf16_f32 v{o}, v121, v122')
            k(f'v_dot2c_f32_bf16 v108, v{o}, v63')
            k(f'v_dot2c_f32_bf16 v109, v{o}, v{o}')
            k(f'v_dot2c_f32_bf16 v110, v{o}, v{WR(j)+h}')
        k(f'buffer_store_dwordx2 v[{112+2*j}:{113+2*j}], v9, s[24:27], 0 offen offset:{j*32}')
    for v in range(108, 111):
        xrow_reduce(k, v, 125 + v - 108)
    k('v_mov_b32 v111, 0')
    k('v_cmp_eq_u32 vcc, 1, v61')
    k('v_cndmask_b32 v108, v108, v109, vcc')
    k('v_cmp_eq_u32 vcc, 2, v61')
    k('v_cndmask_b32 v108, v108, v110, vcc')
    k('v_cmp_eq_u32 vcc, 3, v61')
    k('v_cndmask_b32 v108, v108, v111, vcc')
    k('v_lshlrev_b32 v120, 4, v62')
    k('v_lshl_add_u32 v120, v61, 2, v120')
    k('buffer_atomic_add_f32 v108, v120, s[28:31], 0 offen')
    srd(k, 48, 8, 9, 32768, FLG_OFF + (layer - 1) * 32768)
    k('v_mov_b32 v121, 0')
    k('s_lshl_b32 s47, s2, 7')
    k('v_mov_b32 v122, s47')
    k('v_cmp_eq_u32 vcc, 0, v0')
    k('s_and_saveexec_b64 s[52:53], vcc')
    k(f's_cbranch_execz L_k2l{layer}_nf')
    k('buffer_store_dword v121, v122, s[48:51], 0 offen')
    k.label(f'L_k2l{layer}_nf')
    k('s_mov_b64 exec, s[52:53]')
    st()
    k('s_waitcnt vmcnt(0)' if DIAG else '')
    st()
    st.flush(8, 9, 2 + layer - 1, 6, 7, 60)
    k.label(f'L_k2l{layer}_done')
    k('s_endpgm')
    return k, 131072


def normalize_dword(k, x, m, rinv, t0, t1, s_mask, out):
    k(f'v_lshlrev_b32 v{t0}, 16, v{x}')
    k(f'v_and_b32 v{t1}, s{s_mask}, v{x}')
    k(f'v_sub_f32 v{t0}, v{t0}, v{m}')
    k(f'v_sub_f32 v{t1}, v{t1}, v{m}')
    k(f'v_cvt_pk_bf16_f32 v{t0}, v{t0}, v{t1}')
    k(f'v_and_b32 v{t1}, s{s_mask}, v{t0}')
    k(f'v_lshlrev_b32 v{t0}, 16, v{t0}')
    k(f'v_mul_f32 v{t0}, v{t0}, v{rinv}')
    k(f'v_mul_f32 v{t1}, v{t1}, v{rinv}')
    k(f'v_cvt_pk_bf16_f32 v{out}, v{t0}, v{t1}')


def add_dwords(k, a, b, t0, t1, t2, t3, s_mask, out):
    k(f'v_lshlrev_b32 v{t0}, 16, v{a}')
    k(f'v_and_b32 v{t1}, s{s_mask}, v{a}')
    k(f'v_lshlrev_b32 v{t2}, 16, v{b}')
    k(f'v_and_b32 v{t3}, s{s_mask}, v{b}')
    k(f'v_add_f32 v{t0}, v{t0}, v{t2}')
    k(f'v_add_f32 v{t1}, v{t1}, v{t3}')
    k(f'v_cvt_pk_bf16_f32 v{out}, v{t0}, v{t1}')


def dpp_max_reduce(k, src, t):
    k(f'v_max_u32_dpp v{t}, v{src}, v{src} quad_perm:[1,0,3,2] row_mask:0xf bank_mask:0xf')
    k(f'v_max_u32_dpp v{t}, v{t}, v{t} quad_perm:[2,3,0,1] row_mask:0xf bank_mask:0xf')
    k(f'v_max_u32_dpp v{t}, v{t}, v{t} row_half_mirror row_mask:0xf bank_mask:0xf')
    k(f'v_max_u32_dpp v{t}, v{t}, v{t} row_mirror row_mask:0xf bank_mask:0xf')
    k(f'v_max_u32_dpp v{t}, v{t}, v{t} row_bcast:15 row_mask:0xa bank_mask:0xf')
    k(f'v_max_u32_dpp v{t}, v{t}, v{t} row_bcast:31 row_mask:0xc bank_mask:0xf')


NFFN = 56
NLN = 128
FLG_OFF = 10 * MB + 512 * 1024
PART_OFF = 9 * MB


def reducer(k, layer, st):
    k(f's_sub_u32 s40, s2, {NFFN + NLN}')
    k('s_lshr_b32 s68, s40, 2')
    k('s_and_b32 s69, s40, 3')
    k('v_and_b32 v1, 31, v0')
    k('v_lshrrev_b32 v2, 5, v0')
    k('v_mul_u32_u24 v3, 114688, v2')
    k('v_lshl_add_u32 v3, v1, 4, v3')
    k('s_lshl_b32 s40, s68, 11')
    k('s_lshl_b32 s41, s69, 9')
    k('s_add_u32 s40, s40, s41')
    k('v_add_u32 v3, s40, v3')
    srd(k, 36, 4, 5, 56 * 16384, PART_OFF)
    srd(k, 32, 4, 5, SM_SIZE, SM_OFF)
    if layer == 1:
        srd(k, 44, 4, 5, XBYTES, X2_OFF)
    else:
        srd(k, 44, 70, 71, XBYTES)
    k('s_lshl_b32 s41, s68, 2')
    k(f's_add_u32 s41, s41, {SEL_REL}')
    k('v_mov_b32 v4, 0')
    k('s_mov_b32 s42, 0')
    k('v_readfirstlane_b32 s43, v0')
    k('s_cmp_lg_u32 s43, 0')
    k(f's_cbranch_scc1 L_red{layer}_go')
    k('v_lshlrev_b32 v6, 7, v0')
    k('s_movk_i32 s43, 0x2000')
    k(f'v_add_u32 v9, 128, v0')
    k(f'v_min_u32 v9, {NFFN + NLN - 1}, v9')
    k('v_lshlrev_b32 v9, 7, v9')
    k.label(f'L_red{layer}_poll')
    k('buffer_load_dword v5, v6, s[96:99], 0 offen sc1')
    k('buffer_load_dword v7, v6, s[96:99], s43 offen sc1')
    k('buffer_load_dword v8, v9, s[96:99], 0 offen sc1')
    k('s_add_u32 s42, s42, 1')
    k('s_waitcnt vmcnt(0)')
    k('v_and_b32 v5, v5, v7')
    k('v_and_b32 v5, v5, v8')
    k('v_cmp_ne_u32 vcc, 1, v5')
    k('s_nop 4')
    k('s_cmp_eq_u64 vcc, 0')
    k(f's_cbranch_scc1 L_red{layer}_go0')
    k('s_sleep 2')
    k('s_cmp_lt_u32 s42, 0x100000')
    k(f's_cbranch_scc1 L_red{layer}_poll')
    k.label(f'L_red{layer}_go0')
    k('s_mov_b64 exec, -1')
    k.label(f'L_red{layer}_go')
    k('s_barrier')
    k('buffer_load_dword v26, v4, s[32:35], s41 offen sc1')
    for i in range(7):
        k(f's_mov_b32 s40, {i * 16384}')
        k(f'buffer_load_dwordx4 v[{32+4*i}:{35+4*i}], v3, s[36:39], s40 offen sc1')
    k('s_waitcnt vmcnt(7)')
    k('v_and_b32 v28, 0x7ff, v26')
    k('v_sub_u32 v28, 2047, v28')
    k('v_lshlrev_b32 v30, 4, v28')
    k('buffer_load_dwordx2 v[14:15], v30, s[24:27], 0 offen')
    k('v_lshlrev_b32 v31, 10, v28')
    k('v_lshl_add_u32 v31, v1, 3, v31')
    k('s_lshl_b32 s41, s69, 8')
    k('v_add_u32 v31, s41, v31')
    k('buffer_load_dwordx2 v[16:17], v31, s[12:15], 0 offen')
    k('s_waitcnt vmcnt(2)')
    for i in range(1, 7):
        for e in range(4):
            k(f'v_add_f32 v{32+e}, v{32+e}, v{32+4*i+e}')
    k('v_lshlrev_b32 v5, 4, v0')
    k('ds_write_b128 v5, v[32:35]')
    k('s_waitcnt lgkmcnt(0)')
    k('s_barrier')
    k('v_cmp_gt_u32 vcc, 32, v0')
    k('s_and_saveexec_b64 s[48:49], vcc')
    k(f's_cbranch_execz L_k4l{layer}_done')
    for g in range(8):
        k(f'ds_read_b128 v[{32+4*g}:{35+4*g}], v5 offset:{g*512}')
    k('s_waitcnt lgkmcnt(0)')
    for g in range(1, 8):
        for e in range(4):
            k(f'v_add_f32 v{32+e}, v{32+e}, v{32+4*g+e}')
    for e in range(0, 4, 2):
        k(f'v_cvt_pk_bf16_f32 v40, v{32+e}, v{33+e}')
        k(f'v_lshlrev_b32 v{32+e}, 16, v40')
        k(f'v_and_b32 v{33+e}, s72, v40')
    k('v_and_b32 v20, s72, v26')
    k('v_ashrrev_i32 v21, 31, v20')
    k('v_not_b32 v21, v21')
    k('v_or_b32 v21, 0x80000000, v21')
    k('v_xor_b32 v20, v20, v21')
    k('v_and_b32 v20, s72, v20')
    k('s_mov_b32 s40, 0xbfb8aa3b')
    k('v_mul_f32 v20, s40, v20')
    k('v_exp_f32 v20, v20')
    k('v_add_f32 v20, 1.0, v20')
    k('v_rcp_f32 v20, v20')
    k('v_cvt_pk_bf16_f32 v20, v20, v20')
    k('v_lshlrev_b32 v20, 16, v20')
    for e in range(4):
        k(f'v_mul_f32 v{32+e}, v{32+e}, v20')
    k('v_cvt_pk_bf16_f32 v44, v32, v33')
    k('v_cvt_pk_bf16_f32 v45, v34, v35')
    k('s_waitcnt vmcnt(0)')
    ln_scalars(k, 14, 15, 10, 11, 12, 13, 72, 73, 74)
    for d in range(2):
        normalize_dword(k, 16 + d, 10, 11, 12, 13, 72, 18)
        add_dwords(k, 18, 44 + d, 12, 13, 19, 22, 72, 18)
        add_dwords(k, 16 + d, 18, 12, 13, 19, 22, 72, 46 + d)
    k('buffer_store_dwordx2 v[46:47], v31, s[44:47], 0 offen sc1')
    if DIAG == 2:
        st.flush(4, 5, 6 + layer - 1, 6, 7, 60)


def k4(layer):
    k = Kern(f'k4l{layer}_kernel', nvgpr=128, accum_offset=128, nsgpr=102)
    st = Stamps(k, base=80)
    GOFF, UOFF, DOFF, RED = 0, 32768, 65536, 98304
    CAND = RED + 16384
    HB = CAND + 128
    CNT = HB + 1024
    k(f's_cmp_ge_u32 s2, {NFFN + NLN + 32}')
    k(f's_cbranch_scc1 L_k4l{layer}_done')
    st()
    k('s_load_dwordx2 s[4:5], s[0:1], 80')
    k('s_load_dwordx2 s[64:65], s[0:1], 72')
    k('s_load_dwordx2 s[6:7], s[0:1], 40')
    k('s_load_dwordx2 s[8:9], s[0:1], 48')
    k('s_load_dwordx2 s[10:11], s[0:1], 32')
    k('s_load_dwordx2 s[70:71], s[0:1], 64')
    k('s_load_dwordx2 s[66:67], s[0:1], 56')
    k('v_and_b32 v1, 63, v0')
    k('v_lshrrev_b32 v2, 6, v0')
    k('v_readfirstlane_b32 s68, v2')
    k('s_mov_b32 s72, 0xffff0000')
    k('s_mov_b32 s73, 0x3b000000')
    k('s_mov_b32 s74, 0x3727c5ac')
    k('v_lshlrev_b32 v3, 4, v0')
    k('s_waitcnt lgkmcnt(0)')
    srd(k, 12, 4, 5, XBYTES, X1_OFF if layer == 1 else X3_OFF)
    srd(k, 24, 4, 5, 32768, ST_OFF + (layer - 1) * 32768)
    srd(k, 96, 4, 5, 32768, FLG_OFF + (layer - 1) * 32768)
    k(f's_cmp_ge_u32 s2, {NFFN + NLN}')
    k(f's_cbranch_scc1 L_k4l{layer}_red')
    k(f's_cmp_ge_u32 s2, {NFFN}')
    k(f's_cbranch_scc1 L_k4l{layer}_ln')
    k('s_and_b32 s69, s2, 7')
    k('s_mul_i32 s69, s69, 7')
    k('s_lshr_b32 s75, s2, 3')
    k('s_add_u32 s69, s69, s75')
    k('s_cmp_lt_u32 s68, 4')
    k(f's_cbranch_scc1 L_k4l{layer}_comp')
    k('s_sub_u32 s68, s68, 4')
    srd(k, 16, 6, 7, 512 * 1792 * 2)
    srd(k, 20, 8, 9, 512 * 1792 * 2)
    srd(k, 44, 66, 67, 1792 * 512 * 2)
    k('s_barrier')
    k('v_lshrrev_b32 v5, 2, v1')
    k('v_mul_u32_u24 v6, 3584, v5')
    k('v_lshrrev_b32 v7, 5, v1')
    k('v_lshlrev_b32 v7, 1, v7')
    k('v_and_b32 v8, 3, v1')
    k('v_xor_b32 v7, v7, v8')
    k('v_lshl_add_u32 v6, v7, 4, v6')
    k('s_lshl_b32 s75, s69, 6')
    k('v_add_u32 v6, s75, v6')
    k('s_mul_i32 s76, s68, 458752')
    k('s_lshl_b32 s77, s68, 13')
    for mat in range(2):
        for i in range(8):
            k(f's_add_u32 s40, s76, {16 * i * 3584}')
            k(f's_add_u32 m0, s77, {mat * 32768 + i * 1024}')
            k(f'buffer_load_dwordx4 v6, s[{16+4*mat}:{19+4*mat}], s40 offen lds')
    k('v_lshrrev_b32 v7, 1, v1')
    k('v_and_b32 v8, 1, v1')
    k('s_lshl_b32 s78, s69, 15')
    k('s_lshl_b32 s79, s68, 13')
    k('s_add_u32 s78, s78, s79')
    for i in range(8):
        k('s_and_b32 s40, s68, 1')
        k('s_lshl_b32 s40, s40, 2')
        k(f's_or_b32 s40, s40, {i & 3}')
        k('v_xor_b32 v9, s40, v7')
        k('v_lshlrev_b32 v9, 5, v9')
        k('v_lshl_add_u32 v9, v8, 4, v9')
        k(f's_add_u32 s41, s78, {i * 1024}')
        k(f's_add_u32 m0, s79, {DOFF + i * 1024}')
        k('buffer_load_dwordx4 v9, s[44:47], s41 offen lds')
    k('s_waitcnt vmcnt(0)')
    k('s_barrier')
    k('s_endpgm')
    k.label(f'L_k4l{layer}_comp')
    for i in range(8):
        k(f's_mov_b32 s40, {4096 * i}')
        k(f'buffer_load_dwordx4 v[{32+4*i}:{35+4*i}], v3, s[24:27], s40 offen')
    srd(k, 28, 10, 11, 1024)
    k('v_lshlrev_b32 v4, 4, v1')
    k('buffer_load_dwordx4 v[64:67], v4, s[28:31], 0 offen')
    srd(k, 32, 4, 5, SM_SIZE, SM_OFF)
    k('s_lshl_b32 s77, s68, 13')
    k(f'v_mov_b32 v5, {CNT}')
    k('v_mov_b32 v6, 0')
    k('ds_write_b32 v5, v6')
    k('s_waitcnt lgkmcnt(0)')
    k('s_barrier')
    st()
    k('v_mov_b32 v8, 0x3f803f80')
    k('v_mov_b32 v9, 0')
    k('s_waitcnt vmcnt(0)')
    st()
    for d in range(4):
        k(f'v_dot2c_f32_bf16 v9, v{64+d}, v8')
    k('v_add_f32_dpp v9, v9, v9 quad_perm:[1,0,3,2] row_mask:0xf bank_mask:0xf')
    k('v_add_f32_dpp v9, v9, v9 quad_perm:[2,3,0,1] row_mask:0xf bank_mask:0xf')
    k('v_add_f32_dpp v9, v9, v9 row_half_mirror row_mask:0xf bank_mask:0xf')
    k('v_add_f32_dpp v9, v9, v9 row_mirror row_mask:0xf bank_mask:0xf')
    xrow_reduce(k, 9, 10)
    for i in range(8):
        b = 32 + 4 * i
        ln_scalars(k, b, b + 1, 10, 11, 12, 13, 72, 73, 74)
        k(f'v_fma_f32 v12, -v10, v9, v{b+2}')
        k('v_mul_f32 v12, v12, v11')
        k('v_cvt_pk_bf16_f32 v12, v12, v12')
        k('v_lshlrev_b32 v12, 16, v12')
        k('v_ashrrev_i32 v13, 31, v12')
        k('v_or_b32 v13, 0x80000000, v13')
        k('v_xor_b32 v12, v12, v13')
        k(f'v_sub_u32 v13, {2047 - 256 * i}, v0')
        k(f'v_and_or_b32 v{16+i}, v12, s72, v13')
    regs = list(range(16, 24))
    spare = 24
    net = [(0, 1), (2, 3), (4, 5), (6, 7), (0, 2), (1, 3), (4, 6), (5, 7), (1, 2), (5, 6), (0, 4), (3, 7),
           (1, 5), (2, 6), (1, 4), (3, 6), (2, 4), (3, 5), (3, 4)]
    for (a, b) in net:
        k(f'v_max_u32 v{spare}, v{regs[a]}, v{regs[b]}')
        k(f'v_min_u32 v{regs[b]}, v{regs[a]}, v{regs[b]}')
        regs[a], spare = spare, regs[a]
    k('v_mov_b32 v26, 0')
    st()
    for n in range(8):
        dpp_max_reduce(k, regs[0], 25)
        k(f'v_readlane_b32 s{50+n}, v25, 63')
        k(f'v_writelane_b32 v26, s{50+n}, {n}')
        if n < 7:
            k(f'v_cmp_eq_u32 vcc, s{50+n}, v{regs[0]}')
            for i in range(7 - n):
                k(f'v_cndmask_b32 v{regs[i]}, v{regs[i]}, v{regs[i+1]}, vcc')
    k('s_lshl_b32 s40, s68, 5')
    k('v_lshlrev_b32 v27, 2, v1')
    k('v_add_u32 v27, s40, v27')
    k(f'v_add_u32 v27, {RED}, v27')
    k('v_cmp_gt_u32 vcc, 8, v1')
    k('s_and_saveexec_b64 s[48:49], vcc')
    k(f'ds_write_b32 v27, v26 offset:{CAND - RED}')
    k('s_mov_b64 exec, 1')
    k('v_mov_b32 v6, 1')
    k('ds_add_u32 v5, v6')
    k('s_mov_b64 exec, s[48:49]')
    k.label(f'L_k4l{layer}_poll')
    k('ds_read_b32 v6, v5')
    k('s_waitcnt lgkmcnt(0)')
    k('v_readfirstlane_b32 s40, v6')
    k('s_cmp_lt_u32 s40, 4')
    k(f's_cbranch_scc1 L_k4l{layer}_poll')
    k('v_and_b32 v27, 31, v1')
    k('v_lshlrev_b32 v27, 2, v27')
    k(f'v_add_u32 v27, {RED}, v27')
    k(f'ds_read_b32 v28, v27 offset:{CAND - RED}')
    k('v_mov_b32 v26, 0')
    k('s_waitcnt lgkmcnt(0)')
    st()
    for n in range(8):
        dpp_max_reduce(k, 28, 25)
        k(f'v_readlane_b32 s{58+n}, v25, 63')
        k(f'v_writelane_b32 v26, s{58+n}, {n}')
        if n < 7:
            k(f'v_cmp_eq_u32 vcc, s{58+n}, v28')
            k('v_cndmask_b32 v28, v28, 0, vcc')
    st()
    k('v_and_b32 v27, 7, v1')
    k('v_lshlrev_b32 v27, 2, v27')
    k('ds_bpermute_b32 v28, v27, v26')
    k('v_lshrrev_b32 v61, 4, v1')
    k('s_or_b32 s40, s2, s68')
    k('s_cmp_lg_u32 s40, 0')
    k(f's_cbranch_scc1 L_k4l{layer}_nokeys')
    k('v_lshlrev_b32 v27, 2, v1')
    k('v_cmp_gt_u32 vcc, 8, v1')
    k('s_and_saveexec_b64 s[48:49], vcc')
    k(f's_mov_b32 s40, {SEL_REL}')
    k('buffer_store_dword v26, v27, s[32:35], s40 offen sc1')
    k('s_mov_b64 exec, s[48:49]')
    k.label(f'L_k4l{layer}_nokeys')
    k('s_waitcnt lgkmcnt(0)')
    k('v_and_b32 v28, 0x7ff, v28')
    k('v_sub_u32 v28, 2047, v28')
    k('v_lshlrev_b32 v29, 10, v28')
    k('v_lshl_add_u32 v29, v61, 4, v29')
    k('s_lshl_b32 s40, s68, 8')
    k('v_lshlrev_b32 v30, 4, v28')
    k('buffer_load_dwordx2 v[14:15], v30, s[24:27], 0 offen')
    for s in range(4):
        k(f'buffer_load_dwordx4 v[{32+4*s}:{35+4*s}], v29, s[12:15], s40 offen offset:{s*64}')
    k('v_bfe_u32 v62, v1, 2, 2')
    k('v_lshl_add_u32 v62, v61, 3, v62')
    k('v_lshlrev_b32 v62, 6, v62')
    k('v_and_b32 v63, 1, v61')
    k('v_lshl_add_u32 v62, v63, 5, v62')
    k('v_and_b32 v63, 3, v1')
    k('v_lshl_add_u32 v62, v63, 3, v62')
    k('v_add_u32 v62, s77, v62')
    k('v_xor_b32 v63, 32, v62')
    k('s_barrier')
    st()
    FR = lambda mat, tl, s: 64 + ((mat * 2 + tl) * 4 + s) * 4
    cnt = 0
    for s in range(4):
        for mat in range(2):
            for tl in range(2):
                b = FR(mat, tl, s)
                if cnt >= 12:
                    k('s_waitcnt lgkmcnt(10)')
                k(f'ds_read_b64_tr_b16 v[{b}:{b+1}], v{62+tl} offset:{mat*32768 + s*2048}')
                k(f'ds_read_b64_tr_b16 v[{b+2}:{b+3}], v{62+tl} offset:{mat*32768 + s*2048 + 256}')
                cnt += 2
    k('s_waitcnt vmcnt(4)')
    ln_scalars(k, 14, 15, 10, 11, 12, 13, 72, 73, 74)
    k('s_waitcnt vmcnt(0)')
    for d in range(16):
        normalize_dword(k, 32 + d, 10, 11, 12, 13, 72, 32 + d)
    for v in range(48, 64):
        if v not in (61,):
            pass
    AC = lambda mat, tl: 16 + (mat * 2 + tl) * 4
    for v in range(16, 32):
        k(f'v_mov_b32 v{v}, 0')
    k('s_waitcnt lgkmcnt(0)')
    for s in range(4):
        for mat in range(2):
            for tl in range(2):
                b = FR(mat, tl, s)
                a = AC(mat, tl)
                k(f'v_mfma_f32_16x16x32_bf16 v[{a}:{a+3}], v[{b}:{b+3}], v[{32+4*s}:{35+4*s}], v[{a}:{a+3}]')
    st()
    k('s_lshl_b32 s40, s68, 12')
    k('v_lshlrev_b32 v56, 4, v1')
    k(f'v_add_u32 v56, {RED}, v56')
    k('v_add_u32 v57, s40, v56')
    for q in range(4):
        k(f'ds_write_b128 v57, v[{16+4*q}:{19+4*q}] offset:{q*1024}')
    k('s_waitcnt lgkmcnt(0)')
    k('s_barrier')
    k('s_cmp_ge_u32 s68, 2')
    k(f's_cbranch_scc1 L_k4l{layer}_skiph')
    k('s_lshl_b32 s40, s68, 10')
    k('v_add_u32 v57, s40, v56')
    for w in range(4):
        k(f'ds_read_b128 v[{64+8*w}:{67+8*w}], v57 offset:{w*4096}')
        k(f'ds_read_b128 v[{68+8*w}:{71+8*w}], v57 offset:{w*4096 + 2048}')
    k('s_waitcnt lgkmcnt(0)')
    for e in range(8):
        k(f'v_add_f32 v{64+e}, v{64+e}, v{72+e}')
        k(f'v_add_f32 v{80+e}, v{80+e}, v{88+e}')
    for e in range(8):
        k(f'v_add_f32 v{64+e}, v{64+e}, v{80+e}')
    for e in range(0, 8, 2):
        k(f'v_cvt_pk_bf16_f32 v72, v{64+e}, v{65+e}')
        k(f'v_lshlrev_b32 v{64+e}, 16, v72')
        k(f'v_and_b32 v{65+e}, s72, v72')
    k('s_mov_b32 s40, 0xbfb8aa3b')
    for e in range(4):
        k(f'v_mul_f32 v{72+e}, s40, v{64+e}')
    for e in range(4):
        k(f'v_exp_f32 v{72+e}, v{72+e}')
    for e in range(4):
        k(f'v_add_f32 v{72+e}, 1.0, v{72+e}')
    for e in range(4):
        k(f'v_rcp_f32 v{72+e}, v{72+e}')
    for e in range(4):
        k(f'v_mul_f32 v{64+e}, v{64+e}, v{72+e}')
    for e in range(0, 4, 2):
        k(f'v_cvt_pk_bf16_f32 v72, v{64+e}, v{65+e}')
        k(f'v_lshlrev_b32 v{64+e}, 16, v72')
        k(f'v_and_b32 v{65+e}, s72, v72')
    for e in range(4):
        k(f'v_mul_f32 v{64+e}, v{64+e}, v{68+e}')
    k('v_cvt_pk_bf16_f32 v76, v64, v65')
    k('v_cvt_pk_bf16_f32 v77, v66, v67')
    k('v_and_b32 v58, 15, v1')
    k('v_lshlrev_b32 v58, 6, v58')
    k('v_lshl_add_u32 v58, v61, 3, v58')
    k('s_lshl_b32 s40, s68, 5')
    k('v_add_u32 v58, s40, v58')
    k(f'v_add_u32 v58, {RED}, v58')
    k(f'ds_write_b64 v58, v[76:77] offset:{HB - RED}')
    k.label(f'L_k4l{layer}_skiph')
    k('s_waitcnt lgkmcnt(0)')
    k('s_barrier')
    k('v_and_b32 v58, 15, v1')
    k('v_lshlrev_b32 v59, 6, v58')
    k('v_lshl_add_u32 v59, v61, 4, v59')
    k(f'v_add_u32 v59, {RED}, v59')
    k(f'ds_read_b128 v[32:35], v59 offset:{HB - RED}')
    k('v_bfe_u32 v60, v1, 2, 2')
    k('v_lshl_add_u32 v36, v61, 3, v60')
    k('v_lshlrev_b32 v36, 10, v36')
    k('v_and_b32 v37, 3, v1')
    k('v_lshl_add_u32 v36, v37, 3, v36')
    k(f'v_add_u32 v36, {DOFF}, v36')
    k('v_and_b32 v37, 1, v61')
    k('v_lshl_or_b32 v60, v37, 2, v60')
    k('s_lshl_b32 s40, s68, 8')
    k('v_add_u32 v36, s40, v36')
    for j in range(8):
        k(f'v_xor_b32 v37, {j}, v60')
        k(f'v_lshl_add_u32 v{40+j}, v37, 5, v36')
    for j in range(7):
        k(f'ds_read_b64_tr_b16 v[{64+4*j}:{65+4*j}], v{40+j}')
        k(f'ds_read_b64_tr_b16 v[{66+4*j}:{67+4*j}], v{40+j} offset:4096')
    k('s_waitcnt lgkmcnt(8)')
    k('ds_read_b64_tr_b16 v[92:93], v47')
    k('ds_read_b64_tr_b16 v[94:95], v47 offset:4096')
    srd(k, 36, 4, 5, 56 * 16384, PART_OFF)
    k('v_lshlrev_b32 v38, 11, v58')
    k('v_lshl_add_u32 v38, v61, 4, v38')
    k('s_lshl_b32 s40, s69, 14')
    k('s_lshl_b32 s41, s68, 9')
    k('s_add_u32 s40, s40, s41')
    k('v_add_u32 v38, s40, v38')
    k('s_waitcnt lgkmcnt(0)')
    for j in range(8):
        k(f'v_mfma_f32_16x16x32_bf16 v[{96+4*j}:{99+4*j}], v[{64+4*j}:{67+4*j}], v[32:35], 0')
    k('v_cmp_gt_u32 vcc, 8, v58')
    k('s_and_saveexec_b64 s[48:49], vcc')
    for j in range(8):
        k(f'buffer_store_dwordx4 v[{96+4*j}:{99+4*j}], v38, s[36:39], 0 offen offset:{j*64} sc1')
    k('s_mov_b64 exec, s[48:49]')
    st()
    k.label(f'L_k4l{layer}_signal')
    k('s_waitcnt vmcnt(0)')
    k('s_barrier')
    k('v_cmp_eq_u32 vcc, 0, v0')
    k('s_and_saveexec_b64 s[48:49], vcc')
    k(f's_cbranch_execz L_k4l{layer}_sigdone')
    k('v_mov_b32 v2, 1')
    k('s_lshl_b32 s40, s2, 7')
    k('v_mov_b32 v3, s40')
    k('buffer_store_dword v2, v3, s[96:99], 0 offen sc1')
    k.label(f'L_k4l{layer}_sigdone')
    k('s_mov_b64 exec, s[48:49]')
    st()
    st.flush(4, 5, 4 + layer - 1, 6, 7, 60)
    k(f's_branch L_k4l{layer}_done')
    k.label(f'L_k4l{layer}_ln')
    if layer == 1:
        srd(k, 36, 4, 5, XBYTES, X2_OFF)
    else:
        srd(k, 36, 70, 71, XBYTES)
    k(f's_sub_u32 s40, s2, {NFFN}')
    k('s_lshl_b32 s40, s40, 4')
    k('v_lshrrev_b32 v2, 5, v0')
    k('v_add_u32 v2, s40, v2')
    k('v_lshlrev_b32 v3, 4, v2')
    k('buffer_load_dwordx2 v[14:15], v3, s[24:27], 0 offen')
    k('v_and_b32 v4, 31, v0')
    k('v_lshlrev_b32 v3, 10, v2')
    k('v_lshl_add_u32 v3, v4, 4, v3')
    for s in range(2):
        k(f'buffer_load_dwordx4 v[{32+4*s}:{35+4*s}], v3, s[12:15], 0 offen offset:{s*512}')
    k('s_waitcnt vmcnt(2)')
    ln_scalars(k, 14, 15, 10, 11, 12, 13, 72, 73, 74)
    for s in range(2):
        k('s_waitcnt vmcnt(1)')
        for d in range(4):
            x = 32 + 4 * s + d
            normalize_dword(k, x, 10, 11, 12, 13, 72, 16)
            add_dwords(k, x, 16, 12, 13, 17, 18, 72, 48 + 4 * s + d)
        k(f'buffer_store_dwordx4 v[{48+4*s}:{51+4*s}], v3, s[36:39], 0 offen offset:{s*512} sc1')
    k(f's_branch L_k4l{layer}_signal')
    k.label(f'L_k4l{layer}_red')
    k('s_cmp_ge_u32 s68, 4')
    k(f's_cbranch_scc1 L_k4l{layer}_done')
    reducer(k, layer, st)
    k.label(f'L_k4l{layer}_done')
    k('s_endpgm')
    return k, HB + 1024 + 64


def k5(layer):
    k = Kern(f'k5l{layer}_kernel', nvgpr=64, accum_offset=64, nsgpr=100)
    st = Stamps(k, base=80)
    k('s_cmp_ge_u32 s2, 32')
    k(f's_cbranch_scc1 L_k5l{layer}_done')
    st()
    k('s_load_dwordx2 s[4:5], s[0:1], 80')
    k('s_load_dwordx2 s[70:71], s[0:1], 64')
    k('s_mov_b32 s72, 0xffff0000')
    k('s_mov_b32 s73, 0x3b000000')
    k('s_mov_b32 s74, 0x3727c5ac')
    k('s_lshr_b32 s68, s2, 2')
    k('s_and_b32 s69, s2, 3')
    k('v_and_b32 v1, 31, v0')
    k('v_lshrrev_b32 v2, 5, v0')
    k('v_mul_u32_u24 v3, 114688, v2')
    k('v_lshl_add_u32 v3, v1, 4, v3')
    k('s_lshl_b32 s40, s68, 11')
    k('s_lshl_b32 s41, s69, 9')
    k('s_add_u32 s40, s40, s41')
    k('v_add_u32 v3, s40, v3')
    k('s_waitcnt lgkmcnt(0)')
    srd(k, 36, 4, 5, 56 * 16384, PART_OFF)
    srd(k, 32, 4, 5, SM_SIZE, SM_OFF)
    k('s_lshl_b32 s41, s68, 2')
    k(f's_add_u32 s41, s41, {SEL_REL}')
    k('v_mov_b32 v4, 0')
    k('buffer_load_dword v26, v4, s[32:35], s41 offen')
    for i in range(7):
        k(f's_mov_b32 s40, {i * 16384}')
        k(f'buffer_load_dwordx4 v[{32+4*i}:{35+4*i}], v3, s[36:39], s40 offen')
    srd(k, 12, 4, 5, XBYTES, X1_OFF if layer == 1 else X3_OFF)
    srd(k, 24, 4, 5, 32768, ST_OFF + (layer - 1) * 32768)
    if layer == 1:
        srd(k, 44, 4, 5, XBYTES, X2_OFF)
    else:
        srd(k, 44, 70, 71, XBYTES)
    k('s_waitcnt vmcnt(7)')
    k('v_and_b32 v28, 0x7ff, v26')
    k('v_sub_u32 v28, 2047, v28')
    k('v_lshlrev_b32 v30, 4, v28')
    k('buffer_load_dwordx2 v[14:15], v30, s[24:27], 0 offen')
    k('v_lshlrev_b32 v31, 10, v28')
    k('v_lshl_add_u32 v31, v1, 3, v31')
    k('s_lshl_b32 s41, s69, 8')
    k('v_add_u32 v31, s41, v31')
    k('buffer_load_dwordx2 v[16:17], v31, s[12:15], 0 offen')
    k('s_waitcnt vmcnt(2)')
    for i in range(1, 7):
        for e in range(4):
            k(f'v_add_f32 v{32+e}, v{32+e}, v{32+4*i+e}')
    k('v_lshlrev_b32 v5, 4, v0')
    k('ds_write_b128 v5, v[32:35]')
    k('s_waitcnt lgkmcnt(0)')
    k('s_barrier')
    k('v_cmp_gt_u32 vcc, 32, v0')
    k('s_and_saveexec_b64 s[48:49], vcc')
    k(f's_cbranch_execz L_k5l{layer}_done')
    for g in range(8):
        k(f'ds_read_b128 v[{32+4*g}:{35+4*g}], v5 offset:{g*512}')
    k('s_waitcnt lgkmcnt(0)')
    for g in range(1, 8):
        for e in range(4):
            k(f'v_add_f32 v{32+e}, v{32+e}, v{32+4*g+e}')
    for e in range(0, 4, 2):
        k(f'v_cvt_pk_bf16_f32 v40, v{32+e}, v{33+e}')
        k(f'v_lshlrev_b32 v{32+e}, 16, v40')
        k(f'v_and_b32 v{33+e}, s72, v40')
    k('v_and_b32 v20, s72, v26')
    k('v_ashrrev_i32 v21, 31, v20')
    k('v_not_b32 v21, v21')
    k('v_or_b32 v21, 0x80000000, v21')
    k('v_xor_b32 v20, v20, v21')
    k('v_and_b32 v20, s72, v20')
    k('s_mov_b32 s40, 0xbfb8aa3b')
    k('v_mul_f32 v20, s40, v20')
    k('v_exp_f32 v20, v20')
    k('v_add_f32 v20, 1.0, v20')
    k('v_rcp_f32 v20, v20')
    k('v_cvt_pk_bf16_f32 v20, v20, v20')
    k('v_lshlrev_b32 v20, 16, v20')
    for e in range(4):
        k(f'v_mul_f32 v{32+e}, v{32+e}, v20')
    k('v_cvt_pk_bf16_f32 v44, v32, v33')
    k('v_cvt_pk_bf16_f32 v45, v34, v35')
    k('s_waitcnt vmcnt(0)')
    ln_scalars(k, 14, 15, 10, 11, 12, 13, 72, 73, 74)
    for d in range(2):
        normalize_dword(k, 16 + d, 10, 11, 12, 13, 72, 18)
        add_dwords(k, 18, 44 + d, 12, 13, 19, 22, 72, 18)
        add_dwords(k, 16 + d, 18, 12, 13, 19, 22, 72, 46 + d)
    k('buffer_store_dwordx2 v[46:47], v31, s[44:47], 0 offen')
    if DIAG == 2:
        st.flush(4, 5, 6 + layer - 1, 6, 7, 60)
    k.label(f'L_k5l{layer}_done')
    k('s_endpgm')
    return k, 4096


def build(path, extra_launch=0):
    hdr = open('interleave_layers__sliding_local_dilated__moe_arch_mod__prompt.s.ref').read().split('; Override')[0]
    ks = []
    launches = []
    for layer in (1, 2):
        for fn, grid, blk in ((k1, 256, 512), (k2, 256, 512), (k4, NFFN + NLN + 32, 512)):
            kk, lds = fn(layer)
            ks.append(kk)
            launches.append(f'; @launch kernel={kk.name} grid=({grid},1,1) block=({blk},1,1) lds={lds}')
    if extra_launch:
        e = Kern('nop_kernel', nvgpr=8, accum_offset=8, nsgpr=16)
        e('s_endpgm')
        ks.append(e)
        for i in range(extra_launch):
            launches.append('; @launch kernel=nop_kernel grid=(256,1,1) block=(256,1,1) lds=0')
    out = hdr + '\n'.join(launches) + '\n.amdgcn_target "amdgcn-amd-amdhsa--gfx950"\n.text\n'
    for kk in ks:
        out += kk.text()
    out += '.section .rodata,"a"\n'
    for kk in ks:
        out += kk.desc()
    open(path, 'w').write(out)


if __name__ == '__main__':
    path = sys.argv[1] if len(sys.argv) > 1 else 'interleave_layers__sliding_local_dilated__moe_arch_mod__prompt.s'
    if len(sys.argv) > 3:
        DIAG = int(sys.argv[3])
    build(path, int(sys.argv[2]) if len(sys.argv) > 2 else 0)
```

```python
import sys
sys.path.insert(0, 'gen')
from asmlib import Kern

MB = 1 << 20
O_OFF = 0
X1_OFF = 2 * MB
X2_OFF = 4 * MB
X3_OFF = 6 * MB
ST_OFF = 8 * MB
SM_OFF = 8 * MB + 65536
H_REL = 0
SEL_REL = 32768
SM_SIZE = 65536

XBYTES = 2048 * 512 * 2
NPF = 64


def srd(k, d, lo, hi, size, add=0):
    if add:
        k(f's_add_u32 s{d}, s{lo}, {add}')
        k(f's_addc_u32 s{d+1}, s{hi}, 0')
        k(f's_and_b32 s{d+1}, s{d+1}, 0xffff')
    else:
        k(f's_mov_b32 s{d}, s{lo}')
        k(f's_and_b32 s{d+1}, s{hi}, 0xffff')
    k(f's_mov_b32 s{d+2}, {size}')
    k(f's_mov_b32 s{d+3}, 0x00020000')


DIAG = False
DBG_OFF = 16 * MB


class Stamps:
    def __init__(self, k, base=64):
        self.k = k
        self.n = 0
        self.base = base

    def __call__(self):
        if DIAG == 2:
            if self.n == 0:
                self.rt()
            return
        if DIAG:
            b = self.base + 2 * self.n
            self.k(f's_memtime s[{b}:{b+1}]')
            self.n += 1

    def rt(self):
        if DIAG:
            b = self.base + 2 * self.n
            self.k(f's_memrealtime s[{b}:{b+1}]')
            self.n += 1

    def flush(self, ws_lo, ws_hi, slot, vt0, vt1, sd):
        if not DIAG:
            return
        k = self.k
        n_save = self.n
        if DIAG == 2:
            k('s_waitcnt vmcnt(0)')
            self.rt()
        k('s_waitcnt lgkmcnt(0)')
        srd(k, sd, ws_lo, ws_hi, 1 << 20, DBG_OFF + slot * (1 << 18))
        k(f'v_mov_b32 v{vt0}, 0')
        for i in range(self.n):
            k(f'v_writelane_b32 v{vt0}, s{self.base + 2*i}, {i}')
        k(f'v_lshrrev_b32 v{vt1}, 6, v0')
        k(f's_lshl_b32 s{self.base}, s2, 3')
        k(f'v_add_u32 v{vt1}, s{self.base}, v{vt1}')
        k(f'v_lshlrev_b32 v{vt1}, 6, v{vt1}')
        k(f'v_and_b32 v{vt0+1 if False else vt1+1}, 63, v0')
        k(f'v_lshl_add_u32 v{vt1}, v{vt1+1}, 2, v{vt1}')
        k(f'v_cmp_gt_u32 vcc, 16, v{vt1+1}')
        k('s_and_b64 exec, exec, vcc')
        k(f'buffer_store_dword v{vt0}, v{vt1}, s[{sd}:{sd+3}], 0 offen')
        self.n = n_save


def xrow_reduce(k, v, tmp):
    k(f'v_mov_b32 v{tmp}, v{v}')
    k(f'v_permlane16_swap_b32 v{v}, v{tmp}')
    k(f'v_add_f32 v{v}, v{v}, v{tmp}')
    k(f'v_mov_b32 v{tmp}, v{v}')
    k(f'v_permlane32_swap_b32 v{v}, v{tmp}')
    k(f'v_add_f32 v{v}, v{v}, v{tmp}')


def ln_scalars(k, s1, s2, m, rinv, t1, t2, s_mask, s_inv512, s_eps):
    k(f'v_mul_f32 v{t1}, s{s_inv512}, v{s1}')
    k(f'v_mul_f32 v{t2}, s{s_inv512}, v{s2}')
    k(f'v_fma_f32 v{t2}, -v{t1}, v{t1}, v{t2}')
    k(f'v_max_f32 v{t2}, 0, v{t2}')
    k(f'v_cvt_pk_bf16_f32 v{t1}, v{t1}, v{t2}')
    k(f'v_lshlrev_b32 v{m}, 16, v{t1}')
    k(f'v_and_b32 v{t2}, s{s_mask}, v{t1}')
    k(f'v_add_f32 v{t2}, s{s_eps}, v{t2}')
    k(f'v_cvt_pk_bf16_f32 v{t2}, v{t2}, v{t2}')
    k(f'v_lshlrev_b32 v{t2}, 16, v{t2}')
    k(f'v_sqrt_f32 v{t2}, v{t2}')
    k(f'v_cvt_pk_bf16_f32 v{t2}, v{t2}, v{t2}')
    k(f'v_lshlrev_b32 v{t2}, 16, v{t2}')
    k(f'v_rcp_f32 v{rinv}, v{t2}')


def k1(layer):
    k = Kern(f'k1l{layer}_kernel', nvgpr=200, accum_offset=200, nsgpr=100)
    st = Stamps(k)
    SLOT = 34816
    WOFF = 10240
    STAT = 0
    QKVA = 1024
    ROWB = 112
    ACC = lambda sg, t: 16 + (sg * 5 + t) * 4
    CS = lambda sg: 76 + 4 * sg
    XFB = lambda b, t: 88 + b * 24 + t * 4
    WFB = lambda b, sg: 136 + b * 12 + sg * 4
    ONES = 160
    k('s_cmp_ge_u32 s2, 256')
    k(f's_cbranch_scc1 L_k1l{layer}_done')
    st()
    k(f's_load_dwordx2 s[4:5], s[0:1], {0 if layer == 1 else 80}')
    k('s_load_dwordx2 s[6:7], s[0:1], 8')
    k('s_load_dwordx2 s[8:9], s[0:1], 80')
    k('s_and_b32 s28, s2, 7')
    k('s_lshr_b32 s29, s2, 3')
    k('s_lshr_b32 s30, s28, 1')
    k('s_lshl_b32 s30, s30, 3')
    k('s_lshr_b32 s31, s29, 2')
    k('s_add_u32 s30, s30, s31')
    k('s_and_b32 s28, s28, 1')
    k('s_lshl_b32 s28, s28, 2')
    k('s_and_b32 s29, s29, 3')
    k('s_add_u32 s29, s28, s29')
    k('s_lshl_b32 s31, s30, 6')
    k('v_and_b32 v1, 63, v0')
    k('v_lshrrev_b32 v2, 6, v0')
    k('v_readfirstlane_b32 s30, v2')
    k('v_lshrrev_b32 v10, 3, v1')
    k('v_and_b32 v11, 7, v1')
    k('v_lshrrev_b32 v12, 4, v1')
    k('s_cmp_lt_u32 s30, 4')
    k(f's_cbranch_scc1 L_k1l{layer}_comp')
    k('s_sub_u32 s30, s30, 4')
    k('s_lshl_b32 s34, s30, 4')
    k('s_add_u32 s34, s34, s31')
    k('v_add_u32 v13, s34, v10')
    k('v_lshlrev_b32 v13, 10, v13')
    k('v_xor_b32 v14, v11, v12')
    k('v_lshl_add_u32 v2, v14, 4, v13')
    k('v_xor_b32 v14, 4, v14')
    k('v_lshl_add_u32 v3, v14, 4, v13')
    k('v_add_u32 v3, 8192, v3')
    k('s_lshl_b32 s34, s30, 2')
    k('s_add_u32 s34, s34, s31')
    k('s_sub_u32 s34, s34, 16')
    k('v_add_u32 v13, s34, v10')
    k('v_lshlrev_b32 v13, 10, v13')
    k('s_lshl_b32 s34, s30, 1')
    k('v_add_u32 v14, s34, v12')
    k('v_and_b32 v14, 7, v14')
    k('v_xor_b32 v14, v11, v14')
    k('v_lshl_add_u32 v4, v14, 4, v13')
    k('v_bfe_u32 v13, v10, 1, 1')
    k('s_and_b32 s34, s30, 1')
    k('s_lshl_b32 s34, s34, 1')
    k('v_or_b32 v13, s34, v13')
    k('v_lshrrev_b32 v14, 1, v11')
    k('v_xor_b32 v13, v13, v14')
    k('v_mul_u32_u24 v5, 3072, v10')
    k('v_lshl_add_u32 v5, v13, 5, v5')
    k('v_and_b32 v14, 1, v11')
    k('v_lshl_add_u32 v5, v14, 4, v5')
    k('s_lshl_b32 s34, s29, 7')
    k('v_add_u32 v5, s34, v5')
    k('s_mul_i32 s32, s30, 24576')
    k('s_lshl_b32 s33, s30, 10')
    k('s_lshl_b32 s35, s30, 11')
    k('s_add_u32 s35, s35, 2048')
    k('s_lshl_b32 s36, s30, 9')
    k('s_waitcnt lgkmcnt(0)')
    srd(k, 12, 4, 5, XBYTES, 0 if layer == 1 else X2_OFF)
    srd(k, 16, 6, 7, 512 * 1536 * 2)
    k('s_mov_b64 s[56:57], 0xffffffff')

    def issue_chunk(c):
        sb = (c % 4) * SLOT
        k(f's_mov_b32 s37, {c * 128}')
        k(f's_add_u32 m0, s35, {sb}')
        k('buffer_load_dwordx4 v2, s[12:15], s37 offen lds')
        k(f's_add_u32 m0, s35, {sb + 1024}')
        k('buffer_load_dwordx4 v3, s[12:15], s37 offen lds')
        k(f's_add_u32 m0, s36, {sb}')
        k('s_mov_b64 exec, s[56:57]')
        k('buffer_load_dwordx4 v4, s[12:15], s37 offen lds')
        k('s_mov_b64 exec, -1')
        for sg in range(3):
            for i in range(2):
                k(f's_add_u32 s34, s32, {(c * 64 + 32 * i) * 3072 + sg * 1024}')
                k(f's_add_u32 m0, s33, {sb + WOFF + sg * 8192 + i * 4096}')
                k('buffer_load_dwordx4 v5, s[16:19], s34 offen lds')

    issue_chunk(0)
    issue_chunk(1)
    if layer == 1:
        srd(k, 24, 8, 9, 65536, ST_OFF)
    k('v_lshlrev_b32 v6, 5, v1')
    k('v_add_u32 v6, s35, v6')
    k('v_and_b32 v7, 31, v1')
    k('v_lshlrev_b32 v7, 4, v7')
    k('v_add_u32 v7, s36, v7')
    for v in range(120, 128):
        k(f'v_mov_b32 v{v}, 0')
    k('s_mov_b32 s52, 0xffff0000')
    k('s_mov_b32 s53, 0x3b000000')
    k('s_mov_b32 s54, 0x3727c5ac')
    for c in range(8):
        k(f's_waitcnt vmcnt({9 if c < 7 else 0})')
        k('s_barrier')
        sl = c % 4
        if sl == 2:
            k(f'v_add_u32 v6, {2 * SLOT}, v6')
            k(f'v_add_u32 v7, {2 * SLOT}, v7')
        if sl == 0 and c > 0:
            k(f'v_subrev_u32 v6, {2 * SLOT}, v6')
            k(f'v_subrev_u32 v7, {2 * SLOT}, v7')
        so = (sl & 1) * SLOT
        k(f'ds_read_b128 v[100:103], v6 offset:{so}')
        k(f'ds_read_b128 v[104:107], v6 offset:{so + 16}')
        k(f'ds_read_b128 v[108:111], v7 offset:{so}')
        if c + 2 <= 7:
            issue_chunk(c + 2)
        k('s_waitcnt lgkmcnt(0)')
        for d in range(12):
            acc = 120 if d < 8 else 124
            k(f'v_lshlrev_b32 v112, 16, v{100+d}')
            k(f'v_and_b32 v113, s52, v{100+d}')
            k(f'v_add_f32 v{acc}, v{acc}, v112')
            k(f'v_add_f32 v{acc+1}, v{acc+1}, v113')
            k(f'v_fma_f32 v{acc+2}, v112, v112, v{acc+2}')
            k(f'v_fma_f32 v{acc+3}, v113, v113, v{acc+3}')
    k('v_add_f32 v120, v120, v121')
    k('v_add_f32 v121, v122, v123')
    k('v_add_f32 v122, v124, v125')
    k('v_add_f32 v123, v126, v127')
    for v in range(120, 124):
        k(f'v_add_f32_dpp v{v}, v{v}, v{v} quad_perm:[1,0,3,2] row_mask:0xf bank_mask:0xf')
    for v in range(120, 124):
        k(f'v_add_f32_dpp v{v}, v{v}, v{v} quad_perm:[2,3,0,1] row_mask:0xf bank_mask:0xf')
    for v in range(122, 124):
        k(f'v_add_f32_dpp v{v}, v{v}, v{v} row_half_mirror row_mask:0xf bank_mask:0xf')
    ln_scalars(k, 120, 121, 124, 125, 112, 113, 52, 53, 54)
    ln_scalars(k, 122, 123, 126, 127, 114, 115, 52, 53, 54)
    k('v_lshrrev_b32 v112, 2, v1')
    k('v_lshlrev_b32 v112, 3, v112')
    k('s_lshl_b32 s34, s30, 7')
    k('v_add_u32 v112, s34, v112')
    k(f'ds_write_b64 v112, v[124:125] offset:{STAT}')
    k('v_bfe_u32 v112, v1, 3, 2')
    k('v_lshlrev_b32 v112, 3, v112')
    k('s_lshl_b32 s34, s30, 5')
    k('v_add_u32 v112, s34, v112')
    k(f'ds_write_b64 v112, v[126:127] offset:{STAT + 512}')
    if layer == 1:
        k('s_cmp_lg_u32 s30, 0')
        k(f's_cbranch_scc1 L_k1l{layer}_nz')
        k('v_mov_b32 v100, 0')
        k('v_mov_b32 v101, 0')
        k('v_mov_b32 v102, 0')
        k('v_mov_b32 v103, 0')
        k('s_lshl_b32 s34, s2, 8')
        k('v_lshlrev_b32 v104, 4, v1')
        k('v_add_u32 v104, s34, v104')
        k('v_cmp_gt_u32 vcc, 16, v1')
        k('s_and_saveexec_b64 s[58:59], vcc')
        k('buffer_store_dwordx4 v[100:103], v104, s[24:27], 0 offen')
        k('s_mov_b64 exec, s[58:59]')
        k.label(f'L_k1l{layer}_nz')
    srd(k, 20, 8, 9, XBYTES, O_OFF)
    k('s_waitcnt lgkmcnt(0)')
    k('s_barrier')
    if layer == 1:
        k('s_load_dwordx2 s[60:61], s[0:1], 16')
        k('s_load_dwordx4 s[64:67], s[0:1], 40')
        k('s_load_dwordx2 s[62:63], s[0:1], 56')
        k('s_and_b32 s84, s2, 7')
        k('s_lshr_b32 s85, s2, 3')
        k('v_lshrrev_b32 v20, 5, v1')
        k('v_mul_u32_u24 v20, 3584, v20')
        k('v_and_b32 v21, 31, v1')
        k('v_lshl_add_u32 v20, v21, 4, v20')
        k('v_lshlrev_b32 v21, 4, v1')
        k('s_mul_i32 s34, s84, 448')
        k('s_lshl_b32 s37, s85, 4')
        k('s_lshl_b32 s38, s30, 2')
        k('s_add_u32 s37, s37, s38')
        k('s_mul_i32 s37, s37, 3584')
        k('s_add_u32 s34, s34, s37')
        k('s_waitcnt lgkmcnt(0)')
        srd(k, 68, 64, 65, 512 * 1792 * 2)
        srd(k, 72, 66, 67, 512 * 1792 * 2)
        srd(k, 76, 62, 63, 1792 * 512 * 2)
        srd(k, 80, 60, 61, 512 * 512 * 2)
        k('s_lshl_b32 s37, s85, 4')
        k('s_add_u32 s37, s37, s38')
        k('s_lshl_b32 s37, s37, 10')
        for i in range(4):
            k(f'buffer_load_dwordx4 v[{154+4*i}:{157+4*i}], v21, s[80:83], s37 offen offset:{i*1024}')
        for i in range(2):
            k(f's_add_u32 s37, s34, {2 * i * 3584}')
            k(f'buffer_load_dwordx4 v[{130+8*i}:{133+8*i}], v20, s[68:71], s37 offen')
            k(f'buffer_load_dwordx4 v[{134+8*i}:{137+8*i}], v20, s[72:75], s37 offen')
        k('s_mul_i32 s34, s84, 224')
        k('s_mul_i32 s37, s85, 7')
        k('s_add_u32 s34, s34, s37')
        k('s_add_u32 s34, s34, s30')
        k('s_lshl_b32 s34, s34, 10')
        k('buffer_load_dwordx4 v[146:149], v21, s[76:79], s34 offen')
        k('s_add_u32 s34, s34, 4096')
        k('buffer_load_dwordx4 v[150:153], v21, s[76:79], s34 offen')
    k('s_add_u32 s30, s30, 4')
    k(f's_branch L_k1l{layer}_attn')
    k.label(f'L_k1l{layer}_comp')
    k('s_lshl_b32 s35, s30, 11')
    k('s_add_u32 s35, s35, 2048')
    k('s_waitcnt lgkmcnt(0)')
    srd(k, 20, 8, 9, XBYTES, O_OFF)
    st()
    k('v_and_b32 v10, 15, v1')
    k('v_lshrrev_b32 v13, 1, v10')
    k('v_xor_b32 v13, v13, v12')
    k('v_lshlrev_b32 v6, 7, v10')
    k('v_lshl_add_u32 v6, v13, 4, v6')
    k('v_xor_b32 v7, 64, v6')
    k('v_add_u32 v8, s35, v6')
    k('v_add_u32 v9, s35, v7')
    k('v_bfe_u32 v13, v1, 2, 2')
    k('v_lshl_add_u32 v14, v12, 3, v13')
    k('v_lshlrev_b32 v164, 7, v14')
    k('v_lshrrev_b32 v13, 1, v13')
    k('v_and_b32 v14, 1, v12')
    k('v_lshl_or_b32 v13, v14, 1, v13')
    k('v_xor_b32 v13, s30, v13')
    k('v_lshl_add_u32 v164, v13, 5, v164')
    k('v_and_b32 v14, 3, v1')
    k('v_lshl_add_u32 v164, v14, 3, v164')
    k(f'v_add_u32 v164, {WOFF}, v164')
    for (d, sreg) in ((165, 6), (166, 7), (167, 8), (168, 9), (169, 164)):
        k(f'v_add_u32 v{d}, {2 * SLOT}, v{sreg}')
    for v in range(16, 88):
        k(f'v_mov_b32 v{v}, 0')
    for v in range(ONES, ONES + 4):
        k(f'v_mov_b32 v{v}, 0x3f803f80')
    for v in range(170, 174):
        k(f'v_mov_b32 v{v}, 0')

    def fread(s):
        c, q, b = s // 2, s & 1, s & 1
        slot = c % 4
        hi = slot >= 2
        so = (slot & 1) * SLOT
        xb = (166 if q else 165) if hi else (7 if q else 6)
        sbase = (168 if q else 167) if hi else (9 if q else 8)
        wb = 169 if hi else 164
        for sg in range(3):
            o = so + sg * 8192 + q * 4096
            k(f'ds_read_b64_tr_b16 v[{WFB(b,sg)}:{WFB(b,sg)+1}], v{wb} offset:{o}')
            k(f'ds_read_b64_tr_b16 v[{WFB(b,sg)+2}:{WFB(b,sg)+3}], v{wb} offset:{o+512}')
        for t in range(4):
            k(f'ds_read_b128 v[{XFB(b,t)}:{XFB(b,t)+3}], v{xb} offset:{so + 2048 + t * 2048}')
        k(f'ds_read_b128 v[{XFB(b,4)}:{XFB(b,4)+3}], v{xb} offset:{so}')

    k('s_barrier')
    st()
    fread(0)
    for s in range(16):
        c, q, b = s // 2, s & 1, s & 1
        k('s_waitcnt lgkmcnt(0)')
        if q == 1 and c < 7:
            if c in (1, 3, 5): st()
            k('s_barrier')
            if c in (1, 3, 5): st()
        if s < 15:
            fread(s + 1)
        for sg in range(3):
            w = WFB(b, sg)
            for t in range(5):
                if sg == 0 and t == 4:
                    continue
                a = ACC(sg, t)
                k(f'v_mfma_f32_16x16x32_bf16 v[{a}:{a+3}], v[{w}:{w+3}], v[{XFB(b,t)}:{XFB(b,t)+3}], v[{a}:{a+3}]')
            a = CS(sg)
            k(f'v_mfma_f32_16x16x32_bf16 v[{a}:{a+3}], v[{w}:{w+3}], v[{ONES}:{ONES+3}], v[{a}:{a+3}]')
    st()
    k('s_mov_b32 s52, 0xffff0000')
    k('s_mov_b32 s53, 0x3b000000')
    k('s_mov_b32 s54, 0x3727c5ac')
    k('v_lshlrev_b32 v13, 3, v10')
    k('s_barrier')
    for t in range(5):
        k(f'ds_read_b64 v[{90+2*t}:{91+2*t}], v13 offset:{STAT + t * 128}')
    k(f'v_mul_u32_u24 v14, {ROWB}, v10')
    k('v_lshl_add_u32 v14, v12, 3, v14')
    k('s_mul_i32 s34, s30, 8960')
    k('v_add_u32 v14, s34, v14')
    k('s_waitcnt lgkmcnt(0)')
    for sg in range(3):
        for t in range(5):
            if sg == 0 and t == 4:
                continue
            a = ACC(sg, t)
            m, ri = (90 + 2 * t, 91 + 2 * t)
            for r in range(4):
                k(f'v_fma_f32 v{a+r}, -v{m}, v{CS(sg)+r}, v{a+r}')
            for r in range(4):
                k(f'v_mul_f32 v{a+r}, v{a+r}, v{ri}')
            k(f'v_cvt_pk_bf16_f32 v{a}, v{a}, v{a+1}')
            k(f'v_cvt_pk_bf16_f32 v{a+1}, v{a+2}, v{a+3}')
            rowoff = 0 if t == 4 else (16 + 16 * t) * ROWB
            k(f'ds_write_b64 v14, v[{a}:{a+1}] offset:{QKVA + rowoff + sg * 32}')
    st()
    k.label(f'L_k1l{layer}_attn')
    k('s_waitcnt lgkmcnt(0)')
    k('s_barrier')
    k('s_lshr_b32 s34, s30, 2')
    k('s_lshl_b32 s34, s34, 5')
    k('v_and_b32 v2, 31, v1')
    k('v_add_u32 v2, s34, v2')
    k('v_lshrrev_b32 v8, 5, v1')
    k('v_add_u32 v3, s31, v2')
    k('v_lshlrev_b32 v9, 3, v8')
    k('v_sub_u32 v7, v3, v9')
    k('v_sub_u32 v4, v2, v9')
    k('v_add_u32 v4, 10, v4')
    k(f'v_mul_u32_u24 v4, {ROWB}, v4')
    k('s_and_b32 s36, s30, 3')
    k('s_mul_i32 s34, s36, 8960')
    k('v_add_u32 v4, s34, v4')
    k('v_add_u32 v6, 16, v2')
    k(f'v_mul_u32_u24 v6, {ROWB}, v6')
    k('v_add_u32 v6, s34, v6')
    Q = 16
    KK = lambda i: 24 + 8 * i
    VV = lambda i: 56 + 8 * i
    k(f'ds_read_b128 v[{Q}:{Q+3}], v6 offset:{QKVA}')
    k(f'ds_read_b128 v[{Q+4}:{Q+7}], v6 offset:{QKVA + 16}')
    for i in range(4):
        o = QKVA + (6 - 2 * i) * ROWB + 32
        k(f'ds_read_b128 v[{KK(i)}:{KK(i)+3}], v4 offset:{o}')
        k(f'ds_read_b128 v[{KK(i)+4}:{KK(i)+7}], v4 offset:{o+16}')
    for i in range(2):
        o = QKVA + (6 - 2 * i) * ROWB + 64
        k(f'ds_read_b128 v[{VV(i)}:{VV(i)+3}], v4 offset:{o}')
        k(f'ds_read_b128 v[{VV(i)+4}:{VV(i)+7}], v4 offset:{o+16}')
    k('s_waitcnt lgkmcnt(4)')
    for i in range(2, 4):
        o = QKVA + (6 - 2 * i) * ROWB + 64
        k(f'ds_read_b128 v[{VV(i)}:{VV(i)+3}], v4 offset:{o}')
        k(f'ds_read_b128 v[{VV(i)+4}:{VV(i)+7}], v4 offset:{o+16}')
    L = 88
    P = 92
    for j in range(8):
        for i in range(4):
            src2 = '0' if j == 0 else f'v{L+i}'
            k(f'v_dot2_f32_bf16 v{L+i}, v{Q+j}, v{KK(i)+j}, {src2}')
    for i in range(0, 4, 2):
        k(f'v_cvt_pk_bf16_f32 v{P+i//2}, v{L+i}, v{L+i+1}')
    for i in range(0, 4, 2):
        k(f'v_lshlrev_b32 v{L+i}, 16, v{P+i//2}')
        k(f'v_and_b32 v{L+i+1}, s52, v{P+i//2}')
    k('v_mov_b32 v94, 0xcf6e6b28')
    for i in range(4):
        k(f'v_cmp_le_i32 vcc, {2*i}, v7')
        k(f'v_cndmask_b32 v{L+i}, v94, v{L+i}, vcc')
    k(f'v_max3_f32 v95, v{L}, v{L+1}, v{L+2}')
    k(f'v_max_f32 v95, v95, v{L+3}')
    k('v_mov_b32 v96, v95')
    k('v_permlane32_swap_b32 v95, v96')
    k('v_max_f32 v95, v95, v96')
    k('s_mov_b32 s34, 0x3eb8aa3b')
    for i in range(4):
        k(f'v_sub_f32 v{L+i}, v{L+i}, v95')
    for i in range(4):
        k(f'v_mul_f32 v{L+i}, s34, v{L+i}')
    for i in range(4):
        k(f'v_exp_f32 v{L+i}, v{L+i}')
    k(f'v_add_f32 v95, v{L}, v{L+1}')
    k(f'v_add_f32 v96, v{L+2}, v{L+3}')
    k('v_add_f32 v95, v95, v96')
    k('v_mov_b32 v96, v95')
    k('v_permlane32_swap_b32 v95, v96')
    k('v_add_f32 v95, v95, v96')
    k('v_rcp_f32 v95, v95')
    for i in range(4):
        k(f'v_mul_f32 v{L+i}, v{L+i}, v95')
    for i in range(0, 4, 2):
        k(f'v_cvt_pk_bf16_f32 v{P+i//2}, v{L+i}, v{L+i+1}')
    k('s_mov_b32 s38, 0x05040100')
    k('s_mov_b32 s37, 0x07060302')
    k('s_waitcnt lgkmcnt(0)')
    OO = 24
    for wp in range(2):
        a_, b_ = 2 * wp, 2 * wp + 1
        for j in range(8):
            k(f'v_perm_b32 v{40+2*j}, v{VV(b_)+j}, v{VV(a_)+j}, s38')
            k(f'v_perm_b32 v{41+2*j}, v{VV(b_)+j}, v{VV(a_)+j}, s37')
        for j in range(16):
            src2 = '0' if wp == 0 else f'v{OO+j}'
            k(f'v_dot2_f32_bf16 v{OO+j}, v{40+j}, v{P+wp}, {src2}')
    for d in range(8):
        k(f'v_permlane32_swap_b32 v{OO+d}, v{OO+8+d}')
    for d in range(8):
        k(f'v_add_f32 v{OO+d}, v{OO+d}, v{OO+8+d}')
    for j in range(4):
        k(f'v_cvt_pk_bf16_f32 v{56+j}, v{OO+2*j}, v{OO+2*j+1}')
    k('v_lshlrev_b32 v5, 10, v3')
    k('v_lshl_add_u32 v5, v8, 4, v5')
    k('s_lshl_b32 s34, s29, 7')
    k('s_lshl_b32 s36, s36, 5')
    k('s_add_u32 s34, s34, s36')
    k('v_add_u32 v5, s34, v5')
    k('buffer_store_dwordx4 v[56:59], v5, s[20:23], 0 offen')
    st()
    k('s_waitcnt vmcnt(0)' if DIAG else '')
    st()
    st.flush(8, 9, layer - 1, 6, 7, 60)
    k.label(f'L_k1l{layer}_done')
    k('s_endpgm')
    return k, 4 * SLOT


def k2(layer):
    k = Kern(f'k2l{layer}_kernel', nvgpr=128, accum_offset=128, nsgpr=100)
    st = Stamps(k)
    CH = 16384
    ACC = lambda j: 12 + 4 * j
    RES = lambda j: 44 + 2 * j
    WR = lambda j: 52 + 2 * j
    WF = lambda b, j: 64 + b * 20 + 4 * j
    OF = lambda b: 64 + b * 20 + 16
    k('s_cmp_ge_u32 s2, 256')
    k(f's_cbranch_scc1 L_k2l{layer}_done')
    st()
    k(f's_load_dwordx2 s[4:5], s[0:1], {0 if layer == 1 else 80}')
    k('s_load_dwordx2 s[6:7], s[0:1], 16')
    k('s_load_dwordx2 s[8:9], s[0:1], 80')
    k('s_load_dwordx2 s[10:11], s[0:1], 32')
    k('s_and_b32 s36, s2, 7')
    k('s_lshr_b32 s37, s2, 3')
    k('s_lshl_b32 s36, s36, 2')
    k('s_lshr_b32 s38, s37, 3')
    k('s_add_u32 s36, s36, s38')
    k('s_and_b32 s37, s37, 7')
    k('s_lshl_b32 s36, s36, 6')
    k('s_lshl_b32 s41, s37, 7')
    k('v_and_b32 v1, 63, v0')
    k('v_lshrrev_b32 v2, 6, v0')
    k('v_readfirstlane_b32 s39, v2')
    k('v_lshrrev_b32 v10, 3, v1')
    k('v_and_b32 v11, 7, v1')
    k('v_lshrrev_b32 v61, 4, v1')
    k('s_lshl_b32 s40, s39, 4')
    k('s_add_u32 s40, s40, s36')
    k('s_cmp_lt_u32 s39, 4')
    k(f's_cbranch_scc1 L_k2l{layer}_comp')
    k('s_sub_u32 s39, s39, 4')
    k('s_sub_u32 s40, s40, 64')
    k('v_add_u32 v4, s40, v10')
    k('v_lshlrev_b32 v4, 10, v4')
    k('v_xor_b32 v5, v11, v61')
    k('v_lshl_add_u32 v2, v5, 4, v4')
    k('v_xor_b32 v5, 4, v5')
    k('v_lshl_add_u32 v3, v5, 4, v4')
    k('v_add_u32 v3, 8192, v3')
    k('v_bfe_u32 v4, v10, 1, 1')
    k('s_and_b32 s42, s39, 1')
    k('s_lshl_b32 s42, s42, 1')
    k('v_or_b32 v4, s42, v4')
    k('v_lshrrev_b32 v5, 1, v11')
    k('v_xor_b32 v4, v4, v5')
    k('v_lshlrev_b32 v6, 10, v10')
    k('v_lshl_add_u32 v6, v4, 5, v6')
    k('v_and_b32 v5, 1, v11')
    k('v_lshl_add_u32 v6, v5, 4, v6')
    k('v_add_u32 v6, s41, v6')
    k('s_lshl_b32 s43, s39, 13')
    k('s_lshl_b32 s44, s39, 10')
    k('s_lshl_b32 s45, s39, 11')
    k('s_waitcnt lgkmcnt(0)')
    srd(k, 12, 8, 9, XBYTES, O_OFF)
    srd(k, 16, 6, 7, 512 * 512 * 2)

    def issue2(c):
        k(f's_mov_b32 s46, {c * 128}')
        k(f's_add_u32 m0, s45, {c * CH}')
        k('buffer_load_dwordx4 v2, s[12:15], s46 offen lds')
        k(f's_add_u32 m0, s45, {c * CH + 1024}')
        k('buffer_load_dwordx4 v3, s[12:15], s46 offen lds')
        for i in range(2):
            k(f's_add_u32 s47, s43, {(c * 64 + 32 * i) * 1024}')
            k(f's_add_u32 m0, s44, {c * CH + 8192 + i * 4096}')
            k('buffer_load_dwordx4 v6, s[16:19], s47 offen lds')
    LA = 3
    for c in range(LA):
        issue2(c)
    issued = LA
    for c in range(8):
        k(f's_waitcnt vmcnt({(issued - (c + 1)) * 4})')
        k('s_barrier')
        if issued < 8:
            issue2(issued)
            issued += 1
    k('s_endpgm')
    k.label(f'L_k2l{layer}_comp')
    k('s_lshl_b32 s45, s39, 11')
    k('s_waitcnt lgkmcnt(0)')
    st()
    srd(k, 20, 4, 5, XBYTES, 0 if layer == 1 else X2_OFF)
    srd(k, 24, 8, 9, XBYTES, X1_OFF if layer == 1 else X3_OFF)
    srd(k, 28, 8, 9, 32768, ST_OFF + (layer - 1) * 32768)
    srd(k, 32, 10, 11, 1024)
    k('v_and_b32 v60, 15, v1')
    k('v_add_u32 v62, s40, v60')
    k('v_lshlrev_b32 v9, 10, v62')
    k('v_lshl_add_u32 v9, v61, 3, v9')
    k('v_add_u32 v9, s41, v9')
    k('v_lshlrev_b32 v10, 3, v61')
    k('v_add_u32 v10, s41, v10')
    for j in range(4):
        k(f'buffer_load_dwordx2 v[{RES(j)}:{RES(j)+1}], v9, s[20:23], 0 offen offset:{j*32}')
    for j in range(4):
        k(f'buffer_load_dwordx2 v[{WR(j)}:{WR(j)+1}], v10, s[32:35], 0 offen offset:{j*32}')
    k('v_lshrrev_b32 v4, 1, v60')
    k('v_xor_b32 v4, v4, v61')
    k('v_lshlrev_b32 v2, 7, v60')
    k('v_lshl_add_u32 v2, v4, 4, v2')
    k('v_add_u32 v2, s45, v2')
    k('v_xor_b32 v3, 64, v2')
    k('v_bfe_u32 v8, v1, 2, 2')
    k('v_lshl_add_u32 v11, v61, 3, v8')
    k('v_lshlrev_b32 v11, 7, v11')
    k('v_and_b32 v5, 3, v1')
    k('v_lshl_add_u32 v11, v5, 3, v11')
    k('v_add_u32 v11, 8192, v11')
    k('v_lshrrev_b32 v8, 1, v8')
    k('v_and_b32 v5, 1, v61')
    k('v_lshl_or_b32 v8, v5, 1, v8')
    for j in range(4):
        k(f'v_xor_b32 v{4+j}, {j}, v8')
        k(f'v_lshl_add_u32 v{4+j}, v{4+j}, 5, v11')
    for i in range(6):
        k(f'v_add_u32 v{28+i}, 65536, v{2+i}')
    for v in range(12, 28):
        k(f'v_mov_b32 v{v}, 0')

    def fread(s):
        c, q, b = s // 2, s & 1, s & 1
        hi = c >= 4
        co = (c & 3) * CH
        base = 28 if hi else 2
        for j in range(4):
            k(f'ds_read_b64_tr_b16 v[{WF(b,j)}:{WF(b,j)+1}], v{base+2+j} offset:{co + q*4096}')
            k(f'ds_read_b64_tr_b16 v[{WF(b,j)+2}:{WF(b,j)+3}], v{base+2+j} offset:{co + q*4096 + 512}')
        k(f'ds_read_b128 v[{OF(b)}:{OF(b)+3}], v{base+q} offset:{co}')

    k('s_barrier')
    st()
    fread(0)
    for s in range(16):
        c, q, b = s // 2, s & 1, s & 1
        if q == 1 and c < 7:
            k('s_barrier')
        k('s_waitcnt lgkmcnt(0)')
        if s < 15:
            fread(s + 1)
        for j in range(4):
            k(f'v_mfma_f32_16x16x32_bf16 v[{ACC(j)}:{ACC(j)+3}], v[{WF(b,j)}:{WF(b,j)+3}], v[{OF(b)}:{OF(b)+3}], v[{ACC(j)}:{ACC(j)+3}]')
    st()
    k('s_mov_b32 s46, 0xffff0000')
    k('v_mov_b32 v63, 0x3f803f80')
    k('v_mov_b32 v108, 0')
    k('v_mov_b32 v109, 0')
    k('v_mov_b32 v110, 0')
    k('s_waitcnt vmcnt(0)')
    for j in range(4):
        for h in range(2):
            a = ACC(j) + 2 * h
            o = 112 + 2 * j + h
            k(f'v_cvt_pk_bf16_f32 v120, v{a}, v{a+1}')
            k('v_lshlrev_b32 v121, 16, v120')
            k('v_and_b32 v122, s46, v120')
            k(f'v_lshlrev_b32 v123, 16, v{RES(j)+h}')
            k(f'v_and_b32 v124, s46, v{RES(j)+h}')
            k('v_add_f32 v121, v121, v123')
            k('v_add_f32 v122, v122, v124')
            k(f'v_cvt_pk_bf16_f32 v{o}, v121, v122')
            k(f'v_dot2c_f32_bf16 v108, v{o}, v63')
            k(f'v_dot2c_f32_bf16 v109, v{o}, v{o}')
            k(f'v_dot2c_f32_bf16 v110, v{o}, v{WR(j)+h}')
        k(f'buffer_store_dwordx2 v[{112+2*j}:{113+2*j}], v9, s[24:27], 0 offen offset:{j*32}')
    for v in range(108, 111):
        xrow_reduce(k, v, 125 + v - 108)
    k('v_mov_b32 v111, 0')
    k('v_cmp_eq_u32 vcc, 1, v61')
    k('v_cndmask_b32 v108, v108, v109, vcc')
    k('v_cmp_eq_u32 vcc, 2, v61')
    k('v_cndmask_b32 v108, v108, v110, vcc')
    k('v_cmp_eq_u32 vcc, 3, v61')
    k('v_cndmask_b32 v108, v108, v111, vcc')
    k('v_lshlrev_b32 v120, 4, v62')
    k('v_lshl_add_u32 v120, v61, 2, v120')
    k('buffer_atomic_add_f32 v108, v120, s[28:31], 0 offen')
    st()
    k('s_waitcnt vmcnt(0)' if DIAG else '')
    st()
    st.flush(8, 9, 2 + layer - 1, 6, 7, 60)
    k.label(f'L_k2l{layer}_done')
    k('s_endpgm')
    return k, 131072


def normalize_dword(k, x, m, rinv, t0, t1, s_mask, out):
    k(f'v_lshlrev_b32 v{t0}, 16, v{x}')
    k(f'v_and_b32 v{t1}, s{s_mask}, v{x}')
    k(f'v_sub_f32 v{t0}, v{t0}, v{m}')
    k(f'v_sub_f32 v{t1}, v{t1}, v{m}')
    k(f'v_cvt_pk_bf16_f32 v{t0}, v{t0}, v{t1}')
    k(f'v_and_b32 v{t1}, s{s_mask}, v{t0}')
    k(f'v_lshlrev_b32 v{t0}, 16, v{t0}')
    k(f'v_mul_f32 v{t0}, v{t0}, v{rinv}')
    k(f'v_mul_f32 v{t1}, v{t1}, v{rinv}')
    k(f'v_cvt_pk_bf16_f32 v{out}, v{t0}, v{t1}')


def add_dwords(k, a, b, t0, t1, t2, t3, s_mask, out):
    k(f'v_lshlrev_b32 v{t0}, 16, v{a}')
    k(f'v_and_b32 v{t1}, s{s_mask}, v{a}')
    k(f'v_lshlrev_b32 v{t2}, 16, v{b}')
    k(f'v_and_b32 v{t3}, s{s_mask}, v{b}')
    k(f'v_add_f32 v{t0}, v{t0}, v{t2}')
    k(f'v_add_f32 v{t1}, v{t1}, v{t3}')
    k(f'v_cvt_pk_bf16_f32 v{out}, v{t0}, v{t1}')


def dpp_max_reduce(k, src, t):
    k(f'v_max_u32_dpp v{t}, v{src}, v{src} quad_perm:[1,0,3,2] row_mask:0xf bank_mask:0xf')
    k(f'v_max_u32_dpp v{t}, v{t}, v{t} quad_perm:[2,3,0,1] row_mask:0xf bank_mask:0xf')
    k(f'v_max_u32_dpp v{t}, v{t}, v{t} row_half_mirror row_mask:0xf bank_mask:0xf')
    k(f'v_max_u32_dpp v{t}, v{t}, v{t} row_mirror row_mask:0xf bank_mask:0xf')
    k(f'v_max_u32_dpp v{t}, v{t}, v{t} row_bcast:15 row_mask:0xa bank_mask:0xf')
    k(f'v_max_u32_dpp v{t}, v{t}, v{t} row_bcast:31 row_mask:0xc bank_mask:0xf')


NFFN = 56
NLN = 128
PART_OFF = 9 * MB


def k4(layer):
    k = Kern(f'k4l{layer}_kernel', nvgpr=128, accum_offset=128, nsgpr=100)
    st = Stamps(k, base=80)
    GOFF, UOFF, DOFF, RED = 0, 32768, 65536, 98304
    CAND = RED + 16384
    HB = CAND + 128
    CNT = HB + 1024
    k(f's_cmp_ge_u32 s2, {NFFN + NLN}')
    k(f's_cbranch_scc1 L_k4l{layer}_done')
    st()
    k('s_load_dwordx2 s[4:5], s[0:1], 80')
    k('s_load_dwordx2 s[6:7], s[0:1], 40')
    k('s_load_dwordx2 s[8:9], s[0:1], 48')
    k('s_load_dwordx2 s[10:11], s[0:1], 32')
    k('s_load_dwordx2 s[70:71], s[0:1], 64')
    k('s_load_dwordx2 s[66:67], s[0:1], 56')
    k('v_and_b32 v1, 63, v0')
    k('v_lshrrev_b32 v2, 6, v0')
    k('v_readfirstlane_b32 s68, v2')
    k('s_mov_b32 s72, 0xffff0000')
    k('s_mov_b32 s73, 0x3b000000')
    k('s_mov_b32 s74, 0x3727c5ac')
    k('v_lshlrev_b32 v3, 4, v0')
    k('s_waitcnt lgkmcnt(0)')
    srd(k, 12, 4, 5, XBYTES, X1_OFF if layer == 1 else X3_OFF)
    srd(k, 24, 4, 5, 32768, ST_OFF + (layer - 1) * 32768)
    k(f's_cmp_ge_u32 s2, {NFFN}')
    k(f's_cbranch_scc1 L_k4l{layer}_ln')
    k('s_and_b32 s69, s2, 7')
    k('s_mul_i32 s69, s69, 7')
    k('s_lshr_b32 s75, s2, 3')
    k('s_add_u32 s69, s69, s75')
    k('s_cmp_lt_u32 s68, 4')
    k(f's_cbranch_scc1 L_k4l{layer}_comp')
    k('s_sub_u32 s68, s68, 4')
    srd(k, 16, 6, 7, 512 * 1792 * 2)
    srd(k, 20, 8, 9, 512 * 1792 * 2)
    srd(k, 44, 66, 67, 1792 * 512 * 2)
    k('s_barrier')
    k('v_lshrrev_b32 v5, 2, v1')
    k('v_mul_u32_u24 v6, 3584, v5')
    k('v_lshrrev_b32 v7, 5, v1')
    k('v_lshlrev_b32 v7, 1, v7')
    k('v_and_b32 v8, 3, v1')
    k('v_xor_b32 v7, v7, v8')
    k('v_lshl_add_u32 v6, v7, 4, v6')
    k('s_lshl_b32 s75, s69, 6')
    k('v_add_u32 v6, s75, v6')
    k('s_mul_i32 s76, s68, 458752')
    k('s_lshl_b32 s77, s68, 13')
    for mat in range(2):
        for i in range(8):
            k(f's_add_u32 s40, s76, {16 * i * 3584}')
            k(f's_add_u32 m0, s77, {mat * 32768 + i * 1024}')
            k(f'buffer_load_dwordx4 v6, s[{16+4*mat}:{19+4*mat}], s40 offen lds')
    k('v_lshrrev_b32 v7, 1, v1')
    k('v_and_b32 v8, 1, v1')
    k('s_lshl_b32 s78, s69, 15')
    k('s_lshl_b32 s79, s68, 13')
    k('s_add_u32 s78, s78, s79')
    for i in range(8):
        k('s_and_b32 s40, s68, 1')
        k('s_lshl_b32 s40, s40, 2')
        k(f's_or_b32 s40, s40, {i & 3}')
        k('v_xor_b32 v9, s40, v7')
        k('v_lshlrev_b32 v9, 5, v9')
        k('v_lshl_add_u32 v9, v8, 4, v9')
        k(f's_add_u32 s41, s78, {i * 1024}')
        k(f's_add_u32 m0, s79, {DOFF + i * 1024}')
        k('buffer_load_dwordx4 v9, s[44:47], s41 offen lds')
    k('s_waitcnt vmcnt(0)')
    k('s_barrier')
    k('s_endpgm')
    k.label(f'L_k4l{layer}_comp')
    for i in range(8):
        k(f's_mov_b32 s40, {4096 * i}')
        k(f'buffer_load_dwordx4 v[{32+4*i}:{35+4*i}], v3, s[24:27], s40 offen')
    srd(k, 28, 10, 11, 1024)
    k('v_lshlrev_b32 v4, 4, v1')
    k('buffer_load_dwordx4 v[64:67], v4, s[28:31], 0 offen')
    srd(k, 32, 4, 5, SM_SIZE, SM_OFF)
    k('s_lshl_b32 s77, s68, 13')
    k(f'v_mov_b32 v5, {CNT}')
    k('v_mov_b32 v6, 0')
    k('ds_write_b32 v5, v6')
    k('s_waitcnt lgkmcnt(0)')
    k('s_barrier')
    st()
    k('v_mov_b32 v8, 0x3f803f80')
    k('v_mov_b32 v9, 0')
    k('s_waitcnt vmcnt(0)')
    st()
    for d in range(4):
        k(f'v_dot2c_f32_bf16 v9, v{64+d}, v8')
    k('v_add_f32_dpp v9, v9, v9 quad_perm:[1,0,3,2] row_mask:0xf bank_mask:0xf')
    k('v_add_f32_dpp v9, v9, v9 quad_perm:[2,3,0,1] row_mask:0xf bank_mask:0xf')
    k('v_add_f32_dpp v9, v9, v9 row_half_mirror row_mask:0xf bank_mask:0xf')
    k('v_add_f32_dpp v9, v9, v9 row_mirror row_mask:0xf bank_mask:0xf')
    xrow_reduce(k, 9, 10)
    for i in range(8):
        b = 32 + 4 * i
        ln_scalars(k, b, b + 1, 10, 11, 12, 13, 72, 73, 74)
        k(f'v_fma_f32 v12, -v10, v9, v{b+2}')
        k('v_mul_f32 v12, v12, v11')
        k('v_cvt_pk_bf16_f32 v12, v12, v12')
        k('v_lshlrev_b32 v12, 16, v12')
        k('v_ashrrev_i32 v13, 31, v12')
        k('v_or_b32 v13, 0x80000000, v13')
        k('v_xor_b32 v12, v12, v13')
        k(f'v_sub_u32 v13, {2047 - 256 * i}, v0')
        k(f'v_and_or_b32 v{16+i}, v12, s72, v13')
    regs = list(range(16, 24))
    spare = 24
    net = [(0, 1), (2, 3), (4, 5), (6, 7), (0, 2), (1, 3), (4, 6), (5, 7), (1, 2), (5, 6), (0, 4), (3, 7),
           (1, 5), (2, 6), (1, 4), (3, 6), (2, 4), (3, 5), (3, 4)]
    for (a, b) in net:
        k(f'v_max_u32 v{spare}, v{regs[a]}, v{regs[b]}')
        k(f'v_min_u32 v{regs[b]}, v{regs[a]}, v{regs[b]}')
        regs[a], spare = spare, regs[a]
    k('v_mov_b32 v26, 0')
    st()
    for n in range(8):
        dpp_max_reduce(k, regs[0], 25)
        k(f'v_readlane_b32 s{50+n}, v25, 63')
        k(f'v_writelane_b32 v26, s{50+n}, {n}')
        if n < 7:
            k(f'v_cmp_eq_u32 vcc, s{50+n}, v{regs[0]}')
            for i in range(7 - n):
                k(f'v_cndmask_b32 v{regs[i]}, v{regs[i]}, v{regs[i+1]}, vcc')
    k('s_lshl_b32 s40, s68, 5')
    k('v_lshlrev_b32 v27, 2, v1')
    k('v_add_u32 v27, s40, v27')
    k(f'v_add_u32 v27, {RED}, v27')
    k('v_cmp_gt_u32 vcc, 8, v1')
    k('s_and_saveexec_b64 s[48:49], vcc')
    k(f'ds_write_b32 v27, v26 offset:{CAND - RED}')
    k('s_mov_b64 exec, 1')
    k('v_mov_b32 v6, 1')
    k('ds_add_u32 v5, v6')
    k('s_mov_b64 exec, s[48:49]')
    k.label(f'L_k4l{layer}_poll')
    k('ds_read_b32 v6, v5')
    k('s_waitcnt lgkmcnt(0)')
    k('v_readfirstlane_b32 s40, v6')
    k('s_cmp_lt_u32 s40, 4')
    k(f's_cbranch_scc1 L_k4l{layer}_poll')
    k('v_and_b32 v27, 31, v1')
    k('v_lshlrev_b32 v27, 2, v27')
    k(f'v_add_u32 v27, {RED}, v27')
    k(f'ds_read_b32 v28, v27 offset:{CAND - RED}')
    k('v_mov_b32 v26, 0')
    k('s_waitcnt lgkmcnt(0)')
    st()
    for n in range(8):
        dpp_max_reduce(k, 28, 25)
        k(f'v_readlane_b32 s{58+n}, v25, 63')
        k(f'v_writelane_b32 v26, s{58+n}, {n}')
        if n < 7:
            k(f'v_cmp_eq_u32 vcc, s{58+n}, v28')
            k('v_cndmask_b32 v28, v28, 0, vcc')
    st()
    k('v_and_b32 v27, 7, v1')
    k('v_lshlrev_b32 v27, 2, v27')
    k('ds_bpermute_b32 v28, v27, v26')
    k('v_lshrrev_b32 v61, 4, v1')
    k('s_or_b32 s40, s2, s68')
    k('s_cmp_lg_u32 s40, 0')
    k(f's_cbranch_scc1 L_k4l{layer}_nokeys')
    k('v_lshlrev_b32 v27, 2, v1')
    k('v_cmp_gt_u32 vcc, 8, v1')
    k('s_and_saveexec_b64 s[48:49], vcc')
    k(f's_mov_b32 s40, {SEL_REL}')
    k('buffer_store_dword v26, v27, s[32:35], s40 offen')
    k('s_mov_b64 exec, s[48:49]')
    k.label(f'L_k4l{layer}_nokeys')
    k('s_waitcnt lgkmcnt(0)')
    k('v_and_b32 v28, 0x7ff, v28')
    k('v_sub_u32 v28, 2047, v28')
    k('v_lshlrev_b32 v29, 10, v28')
    k('v_lshl_add_u32 v29, v61, 4, v29')
    k('s_lshl_b32 s40, s68, 8')
    k('v_lshlrev_b32 v30, 4, v28')
    k('buffer_load_dwordx2 v[14:15], v30, s[24:27], 0 offen')
    for s in range(4):
        k(f'buffer_load_dwordx4 v[{32+4*s}:{35+4*s}], v29, s[12:15], s40 offen offset:{s*64}')
    k('v_bfe_u32 v62, v1, 2, 2')
    k('v_lshl_add_u32 v62, v61, 3, v62')
    k('v_lshlrev_b32 v62, 6, v62')
    k('v_and_b32 v63, 1, v61')
    k('v_lshl_add_u32 v62, v63, 5, v62')
    k('v_and_b32 v63, 3, v1')
    k('v_lshl_add_u32 v62, v63, 3, v62')
    k('v_add_u32 v62, s77, v62')
    k('v_xor_b32 v63, 32, v62')
    k('s_barrier')
    st()
    FR = lambda mat, tl, s: 64 + ((mat * 2 + tl) * 4 + s) * 4
    cnt = 0
    for s in range(4):
        for mat in range(2):
            for tl in range(2):
                b = FR(mat, tl, s)
                if cnt >= 12:
                    k('s_waitcnt lgkmcnt(10)')
                k(f'ds_read_b64_tr_b16 v[{b}:{b+1}], v{62+tl} offset:{mat*32768 + s*2048}')
                k(f'ds_read_b64_tr_b16 v[{b+2}:{b+3}], v{62+tl} offset:{mat*32768 + s*2048 + 256}')
                cnt += 2
    k('s_waitcnt vmcnt(4)')
    ln_scalars(k, 14, 15, 10, 11, 12, 13, 72, 73, 74)
    k('s_waitcnt vmcnt(0)')
    for d in range(16):
        normalize_dword(k, 32 + d, 10, 11, 12, 13, 72, 32 + d)
    for v in range(48, 64):
        if v not in (61,):
            pass
    AC = lambda mat, tl: 16 + (mat * 2 + tl) * 4
    for v in range(16, 32):
        k(f'v_mov_b32 v{v}, 0')
    k('s_waitcnt lgkmcnt(0)')
    for s in range(4):
        for mat in range(2):
            for tl in range(2):
                b = FR(mat, tl, s)
                a = AC(mat, tl)
                k(f'v_mfma_f32_16x16x32_bf16 v[{a}:{a+3}], v[{b}:{b+3}], v[{32+4*s}:{35+4*s}], v[{a}:{a+3}]')
    st()
    k('s_lshl_b32 s40, s68, 12')
    k('v_lshlrev_b32 v56, 4, v1')
    k(f'v_add_u32 v56, {RED}, v56')
    k('v_add_u32 v57, s40, v56')
    for q in range(4):
        k(f'ds_write_b128 v57, v[{16+4*q}:{19+4*q}] offset:{q*1024}')
    k('s_waitcnt lgkmcnt(0)')
    k('s_barrier')
    k('s_cmp_ge_u32 s68, 2')
    k(f's_cbranch_scc1 L_k4l{layer}_skiph')
    k('s_lshl_b32 s40, s68, 10')
    k('v_add_u32 v57, s40, v56')
    for w in range(4):
        k(f'ds_read_b128 v[{64+8*w}:{67+8*w}], v57 offset:{w*4096}')
        k(f'ds_read_b128 v[{68+8*w}:{71+8*w}], v57 offset:{w*4096 + 2048}')
    k('s_waitcnt lgkmcnt(0)')
    for e in range(8):
        k(f'v_add_f32 v{64+e}, v{64+e}, v{72+e}')
        k(f'v_add_f32 v{80+e}, v{80+e}, v{88+e}')
    for e in range(8):
        k(f'v_add_f32 v{64+e}, v{64+e}, v{80+e}')
    for e in range(0, 8, 2):
        k(f'v_cvt_pk_bf16_f32 v72, v{64+e}, v{65+e}')
        k(f'v_lshlrev_b32 v{64+e}, 16, v72')
        k(f'v_and_b32 v{65+e}, s72, v72')
    k('s_mov_b32 s40, 0xbfb8aa3b')
    for e in range(4):
        k(f'v_mul_f32 v{72+e}, s40, v{64+e}')
    for e in range(4):
        k(f'v_exp_f32 v{72+e}, v{72+e}')
    for e in range(4):
        k(f'v_add_f32 v{72+e}, 1.0, v{72+e}')
    for e in range(4):
        k(f'v_rcp_f32 v{72+e}, v{72+e}')
    for e in range(4):
        k(f'v_mul_f32 v{64+e}, v{64+e}, v{72+e}')
    for e in range(0, 4, 2):
        k(f'v_cvt_pk_bf16_f32 v72, v{64+e}, v{65+e}')
        k(f'v_lshlrev_b32 v{64+e}, 16, v72')
        k(f'v_and_b32 v{65+e}, s72, v72')
    for e in range(4):
        k(f'v_mul_f32 v{64+e}, v{64+e}, v{68+e}')
    k('v_cvt_pk_bf16_f32 v76, v64, v65')
    k('v_cvt_pk_bf16_f32 v77, v66, v67')
    k('v_and_b32 v58, 15, v1')
    k('v_lshlrev_b32 v58, 6, v58')
    k('v_lshl_add_u32 v58, v61, 3, v58')
    k('s_lshl_b32 s40, s68, 5')
    k('v_add_u32 v58, s40, v58')
    k(f'v_add_u32 v58, {RED}, v58')
    k(f'ds_write_b64 v58, v[76:77] offset:{HB - RED}')
    k.label(f'L_k4l{layer}_skiph')
    k('s_waitcnt lgkmcnt(0)')
    k('s_barrier')
    k('v_and_b32 v58, 15, v1')
    k('v_lshlrev_b32 v59, 6, v58')
    k('v_lshl_add_u32 v59, v61, 4, v59')
    k(f'v_add_u32 v59, {RED}, v59')
    k(f'ds_read_b128 v[32:35], v59 offset:{HB - RED}')
    k('v_bfe_u32 v60, v1, 2, 2')
    k('v_lshl_add_u32 v36, v61, 3, v60')
    k('v_lshlrev_b32 v36, 10, v36')
    k('v_and_b32 v37, 3, v1')
    k('v_lshl_add_u32 v36, v37, 3, v36')
    k(f'v_add_u32 v36, {DOFF}, v36')
    k('v_and_b32 v37, 1, v61')
    k('v_lshl_or_b32 v60, v37, 2, v60')
    k('s_lshl_b32 s40, s68, 8')
    k('v_add_u32 v36, s40, v36')
    for j in range(8):
        k(f'v_xor_b32 v37, {j}, v60')
        k(f'v_lshl_add_u32 v{40+j}, v37, 5, v36')
    for j in range(7):
        k(f'ds_read_b64_tr_b16 v[{64+4*j}:{65+4*j}], v{40+j}')
        k(f'ds_read_b64_tr_b16 v[{66+4*j}:{67+4*j}], v{40+j} offset:4096')
    k('s_waitcnt lgkmcnt(8)')
    k('ds_read_b64_tr_b16 v[92:93], v47')
    k('ds_read_b64_tr_b16 v[94:95], v47 offset:4096')
    srd(k, 36, 4, 5, 56 * 16384, PART_OFF)
    k('v_lshlrev_b32 v38, 11, v58')
    k('v_lshl_add_u32 v38, v61, 4, v38')
    k('s_lshl_b32 s40, s69, 14')
    k('s_lshl_b32 s41, s68, 9')
    k('s_add_u32 s40, s40, s41')
    k('v_add_u32 v38, s40, v38')
    k('s_waitcnt lgkmcnt(0)')
    for j in range(8):
        k(f'v_mfma_f32_16x16x32_bf16 v[{96+4*j}:{99+4*j}], v[{64+4*j}:{67+4*j}], v[32:35], 0')
    k('v_cmp_gt_u32 vcc, 8, v58')
    k('s_and_saveexec_b64 s[48:49], vcc')
    for j in range(8):
        k(f'buffer_store_dwordx4 v[{96+4*j}:{99+4*j}], v38, s[36:39], 0 offen offset:{j*64}')
    k('s_mov_b64 exec, s[48:49]')
    st()
    k('s_waitcnt vmcnt(0)' if DIAG else '')
    st()
    st.flush(4, 5, 4 + layer - 1, 6, 7, 60)
    k(f's_branch L_k4l{layer}_done')
    k.label(f'L_k4l{layer}_ln')
    if layer == 1:
        srd(k, 36, 4, 5, XBYTES, X2_OFF)
    else:
        srd(k, 36, 70, 71, XBYTES)
    k(f's_sub_u32 s40, s2, {NFFN}')
    k('s_lshl_b32 s40, s40, 4')
    k('v_lshrrev_b32 v2, 5, v0')
    k('v_add_u32 v2, s40, v2')
    k('v_lshlrev_b32 v3, 4, v2')
    k('buffer_load_dwordx2 v[14:15], v3, s[24:27], 0 offen')
    k('v_and_b32 v4, 31, v0')
    k('v_lshlrev_b32 v3, 10, v2')
    k('v_lshl_add_u32 v3, v4, 4, v3')
    for s in range(2):
        k(f'buffer_load_dwordx4 v[{32+4*s}:{35+4*s}], v3, s[12:15], 0 offen offset:{s*512}')
    k('s_waitcnt vmcnt(2)')
    ln_scalars(k, 14, 15, 10, 11, 12, 13, 72, 73, 74)
    for s in range(2):
        k('s_waitcnt vmcnt(1)')
        for d in range(4):
            x = 32 + 4 * s + d
            normalize_dword(k, x, 10, 11, 12, 13, 72, 16)
            add_dwords(k, x, 16, 12, 13, 17, 18, 72, 48 + 4 * s + d)
        k(f'buffer_store_dwordx4 v[{48+4*s}:{51+4*s}], v3, s[36:39], 0 offen offset:{s*512} sc1')
    if DIAG == 2:
        st.flush(4, 5, 4 + layer - 1, 6, 7, 60)
    k.label(f'L_k4l{layer}_done')
    k('s_endpgm')
    return k, HB + 1024 + 64


def k5(layer):
    k = Kern(f'k5l{layer}_kernel', nvgpr=64, accum_offset=64, nsgpr=100)
    st = Stamps(k, base=80)
    k('s_cmp_ge_u32 s2, 32')
    k(f's_cbranch_scc1 L_k5l{layer}_done')
    st()
    k('s_load_dwordx2 s[4:5], s[0:1], 80')
    k('s_load_dwordx2 s[70:71], s[0:1], 64')
    k('s_mov_b32 s72, 0xffff0000')
    k('s_mov_b32 s73, 0x3b000000')
    k('s_mov_b32 s74, 0x3727c5ac')
    k('s_lshr_b32 s68, s2, 2')
    k('s_and_b32 s69, s2, 3')
    k('v_and_b32 v1, 31, v0')
    k('v_lshrrev_b32 v2, 5, v0')
    k('v_mul_u32_u24 v3, 114688, v2')
    k('v_lshl_add_u32 v3, v1, 4, v3')
    k('s_lshl_b32 s40, s68, 11')
    k('s_lshl_b32 s41, s69, 9')
    k('s_add_u32 s40, s40, s41')
    k('v_add_u32 v3, s40, v3')
    k('s_waitcnt lgkmcnt(0)')
    srd(k, 36, 4, 5, 56 * 16384, PART_OFF)
    srd(k, 32, 4, 5, SM_SIZE, SM_OFF)
    k('s_lshl_b32 s41, s68, 2')
    k(f's_add_u32 s41, s41, {SEL_REL}')
    k('v_mov_b32 v4, 0')
    k('buffer_load_dword v26, v4, s[32:35], s41 offen')
    for i in range(7):
        k(f's_mov_b32 s40, {i * 16384}')
        k(f'buffer_load_dwordx4 v[{32+4*i}:{35+4*i}], v3, s[36:39], s40 offen')
    srd(k, 12, 4, 5, XBYTES, X1_OFF if layer == 1 else X3_OFF)
    srd(k, 24, 4, 5, 32768, ST_OFF + (layer - 1) * 32768)
    if layer == 1:
        srd(k, 44, 4, 5, XBYTES, X2_OFF)
    else:
        srd(k, 44, 70, 71, XBYTES)
    k('s_waitcnt vmcnt(7)')
    k('v_and_b32 v28, 0x7ff, v26')
    k('v_sub_u32 v28, 2047, v28')
    k('v_lshlrev_b32 v30, 4, v28')
    k('buffer_load_dwordx2 v[14:15], v30, s[24:27], 0 offen')
    k('v_lshlrev_b32 v31, 10, v28')
    k('v_lshl_add_u32 v31, v1, 3, v31')
    k('s_lshl_b32 s41, s69, 8')
    k('v_add_u32 v31, s41, v31')
    k('buffer_load_dwordx2 v[16:17], v31, s[12:15], 0 offen')
    k('s_waitcnt vmcnt(2)')
    for i in range(1, 7):
        for e in range(4):
            k(f'v_add_f32 v{32+e}, v{32+e}, v{32+4*i+e}')
    k('v_lshlrev_b32 v5, 4, v0')
    k('ds_write_b128 v5, v[32:35]')
    k('s_waitcnt lgkmcnt(0)')
    k('s_barrier')
    k('v_cmp_gt_u32 vcc, 32, v0')
    k('s_and_saveexec_b64 s[48:49], vcc')
    k(f's_cbranch_execz L_k5l{layer}_done')
    for g in range(8):
        k(f'ds_read_b128 v[{32+4*g}:{35+4*g}], v5 offset:{g*512}')
    k('s_waitcnt lgkmcnt(0)')
    for g in range(1, 8):
        for e in range(4):
            k(f'v_add_f32 v{32+e}, v{32+e}, v{32+4*g+e}')
    for e in range(0, 4, 2):
        k(f'v_cvt_pk_bf16_f32 v40, v{32+e}, v{33+e}')
        k(f'v_lshlrev_b32 v{32+e}, 16, v40')
        k(f'v_and_b32 v{33+e}, s72, v40')
    k('v_and_b32 v20, s72, v26')
    k('v_ashrrev_i32 v21, 31, v20')
    k('v_not_b32 v21, v21')
    k('v_or_b32 v21, 0x80000000, v21')
    k('v_xor_b32 v20, v20, v21')
    k('v_and_b32 v20, s72, v20')
    k('s_mov_b32 s40, 0xbfb8aa3b')
    k('v_mul_f32 v20, s40, v20')
    k('v_exp_f32 v20, v20')
    k('v_add_f32 v20, 1.0, v20')
    k('v_rcp_f32 v20, v20')
    k('v_cvt_pk_bf16_f32 v20, v20, v20')
    k('v_lshlrev_b32 v20, 16, v20')
    for e in range(4):
        k(f'v_mul_f32 v{32+e}, v{32+e}, v20')
    k('v_cvt_pk_bf16_f32 v44, v32, v33')
    k('v_cvt_pk_bf16_f32 v45, v34, v35')
    k('s_waitcnt vmcnt(0)')
    ln_scalars(k, 14, 15, 10, 11, 12, 13, 72, 73, 74)
    for d in range(2):
        normalize_dword(k, 16 + d, 10, 11, 12, 13, 72, 18)
        add_dwords(k, 18, 44 + d, 12, 13, 19, 22, 72, 18)
        add_dwords(k, 16 + d, 18, 12, 13, 19, 22, 72, 46 + d)
    k('buffer_store_dwordx2 v[46:47], v31, s[44:47], 0 offen')
    if DIAG == 2:
        st.flush(4, 5, 6 + layer - 1, 6, 7, 60)
    k.label(f'L_k5l{layer}_done')
    k('s_endpgm')
    return k, 4096


def build(path, extra_launch=0):
    hdr = open('interleave_layers__sliding_local_dilated__moe_arch_mod__prompt.s.ref').read().split('; Override')[0]
    ks = []
    launches = []
    for layer in (1, 2):
        for fn, grid, blk in ((k1, 256, 512), (k2, 256, 512), (k4, NFFN + NLN, 512), (k5, 32, 256)):
            kk, lds = fn(layer)
            ks.append(kk)
            launches.append(f'; @launch kernel={kk.name} grid=({grid},1,1) block=({blk},1,1) lds={lds}')
    if extra_launch:
        e = Kern('nop_kernel', nvgpr=8, accum_offset=8, nsgpr=16)
        e('s_endpgm')
        ks.append(e)
        for i in range(extra_launch):
            launches.append('; @launch kernel=nop_kernel grid=(256,1,1) block=(256,1,1) lds=0')
    out = hdr + '\n'.join(launches) + '\n.amdgcn_target "amdgcn-amd-amdhsa--gfx950"\n.text\n'
    for kk in ks:
        out += kk.text()
    out += '.section .rodata,"a"\n'
    for kk in ks:
        out += kk.desc()
    open(path, 'w').write(out)


if __name__ == '__main__':
    path = sys.argv[1] if len(sys.argv) > 1 else 'interleave_layers__sliding_local_dilated__moe_arch_mod__prompt.s'
    if len(sys.argv) > 3:
        DIAG = int(sys.argv[3])
    build(path, int(sys.argv[2]) if len(sys.argv) > 2 else 0)
```

```python
import sys
sys.path.insert(0, 'gen')
from asmlib import Kern

MB = 1 << 20
O_OFF = 0
X1_OFF = 2 * MB
X2_OFF = 4 * MB
X3_OFF = 6 * MB
ST_OFF = 8 * MB
SM_OFF = 8 * MB + 65536
H_REL = 0
SEL_REL = 32768
SM_SIZE = 65536

XBYTES = 2048 * 512 * 2
NPF = 64


def srd(k, d, lo, hi, size, add=0):
    if add:
        k(f's_add_u32 s{d}, s{lo}, {add}')
        k(f's_addc_u32 s{d+1}, s{hi}, 0')
        k(f's_and_b32 s{d+1}, s{d+1}, 0xffff')
    else:
        k(f's_mov_b32 s{d}, s{lo}')
        k(f's_and_b32 s{d+1}, s{hi}, 0xffff')
    k(f's_mov_b32 s{d+2}, {size}')
    k(f's_mov_b32 s{d+3}, 0x00020000')


DIAG = False
DBG_OFF = 16 * MB


class Stamps:
    def __init__(self, k, base=64):
        self.k = k
        self.n = 0
        self.base = base

    def __call__(self):
        if DIAG == 2:
            if self.n == 0:
                self.rt()
            return
        if DIAG:
            b = self.base + 2 * self.n
            self.k(f's_memtime s[{b}:{b+1}]')
            self.n += 1

    def rt(self):
        if DIAG:
            b = self.base + 2 * self.n
            self.k(f's_memrealtime s[{b}:{b+1}]')
            self.n += 1

    def flush(self, ws_lo, ws_hi, slot, vt0, vt1, sd):
        if not DIAG:
            return
        k = self.k
        n_save = self.n
        if DIAG == 2:
            k('s_waitcnt vmcnt(0)')
            self.rt()
        k('s_waitcnt lgkmcnt(0)')
        srd(k, sd, ws_lo, ws_hi, 1 << 20, DBG_OFF + slot * (1 << 18))
        k(f'v_mov_b32 v{vt0}, 0')
        for i in range(self.n):
            k(f'v_writelane_b32 v{vt0}, s{self.base + 2*i}, {i}')
        k(f'v_lshrrev_b32 v{vt1}, 6, v0')
        k(f's_lshl_b32 s{self.base}, s2, 3')
        k(f'v_add_u32 v{vt1}, s{self.base}, v{vt1}')
        k(f'v_lshlrev_b32 v{vt1}, 6, v{vt1}')
        k(f'v_and_b32 v{vt0+1 if False else vt1+1}, 63, v0')
        k(f'v_lshl_add_u32 v{vt1}, v{vt1+1}, 2, v{vt1}')
        k(f'v_cmp_gt_u32 vcc, 16, v{vt1+1}')
        k('s_and_b64 exec, exec, vcc')
        k(f'buffer_store_dword v{vt0}, v{vt1}, s[{sd}:{sd+3}], 0 offen')
        self.n = n_save


def xrow_reduce(k, v, tmp):
    k(f'v_mov_b32 v{tmp}, v{v}')
    k(f'v_permlane16_swap_b32 v{v}, v{tmp}')
    k(f'v_add_f32 v{v}, v{v}, v{tmp}')
    k(f'v_mov_b32 v{tmp}, v{v}')
    k(f'v_permlane32_swap_b32 v{v}, v{tmp}')
    k(f'v_add_f32 v{v}, v{v}, v{tmp}')


def ln_scalars(k, s1, s2, m, rinv, t1, t2, s_mask, s_inv512, s_eps):
    k(f'v_mul_f32 v{t1}, s{s_inv512}, v{s1}')
    k(f'v_mul_f32 v{t2}, s{s_inv512}, v{s2}')
    k(f'v_fma_f32 v{t2}, -v{t1}, v{t1}, v{t2}')
    k(f'v_max_f32 v{t2}, 0, v{t2}')
    k(f'v_cvt_pk_bf16_f32 v{t1}, v{t1}, v{t2}')
    k(f'v_lshlrev_b32 v{m}, 16, v{t1}')
    k(f'v_and_b32 v{t2}, s{s_mask}, v{t1}')
    k(f'v_add_f32 v{t2}, s{s_eps}, v{t2}')
    k(f'v_cvt_pk_bf16_f32 v{t2}, v{t2}, v{t2}')
    k(f'v_lshlrev_b32 v{t2}, 16, v{t2}')
    k(f'v_sqrt_f32 v{t2}, v{t2}')
    k(f'v_cvt_pk_bf16_f32 v{t2}, v{t2}, v{t2}')
    k(f'v_lshlrev_b32 v{t2}, 16, v{t2}')
    k(f'v_rcp_f32 v{rinv}, v{t2}')


def k1(layer):
    k = Kern(f'k1l{layer}_kernel', nvgpr=200, accum_offset=200, nsgpr=100)
    st = Stamps(k)
    SLOT = 34816
    WOFF = 10240
    STAT = 0
    QKVA = 1024
    ROWB = 112
    ACC = lambda sg, t: 16 + (sg * 5 + t) * 4
    CS = lambda sg: 76 + 4 * sg
    XFB = lambda b, t: 88 + b * 24 + t * 4
    WFB = lambda b, sg: 136 + b * 12 + sg * 4
    ONES = 160
    k('s_cmp_ge_u32 s2, 256')
    k(f's_cbranch_scc1 L_k1l{layer}_done')
    st()
    k(f's_load_dwordx2 s[4:5], s[0:1], {0 if layer == 1 else 80}')
    k('s_load_dwordx2 s[6:7], s[0:1], 8')
    k('s_load_dwordx2 s[8:9], s[0:1], 80')
    k('s_and_b32 s28, s2, 7')
    k('s_lshr_b32 s29, s2, 3')
    k('s_lshr_b32 s30, s28, 1')
    k('s_lshl_b32 s30, s30, 3')
    k('s_lshr_b32 s31, s29, 2')
    k('s_add_u32 s30, s30, s31')
    k('s_and_b32 s28, s28, 1')
    k('s_lshl_b32 s28, s28, 2')
    k('s_and_b32 s29, s29, 3')
    k('s_add_u32 s29, s28, s29')
    k('s_lshl_b32 s31, s30, 6')
    k('v_and_b32 v1, 63, v0')
    k('v_lshrrev_b32 v2, 6, v0')
    k('v_readfirstlane_b32 s30, v2')
    k('v_lshrrev_b32 v10, 3, v1')
    k('v_and_b32 v11, 7, v1')
    k('v_lshrrev_b32 v12, 4, v1')
    k('s_cmp_lt_u32 s30, 4')
    k(f's_cbranch_scc1 L_k1l{layer}_comp')
    k('s_sub_u32 s30, s30, 4')
    k('s_lshl_b32 s34, s30, 4')
    k('s_add_u32 s34, s34, s31')
    k('v_add_u32 v13, s34, v10')
    k('v_lshlrev_b32 v13, 10, v13')
    k('v_xor_b32 v14, v11, v12')
    k('v_lshl_add_u32 v2, v14, 4, v13')
    k('v_xor_b32 v14, 4, v14')
    k('v_lshl_add_u32 v3, v14, 4, v13')
    k('v_add_u32 v3, 8192, v3')
    k('s_lshl_b32 s34, s30, 2')
    k('s_add_u32 s34, s34, s31')
    k('s_sub_u32 s34, s34, 16')
    k('v_add_u32 v13, s34, v10')
    k('v_lshlrev_b32 v13, 10, v13')
    k('s_lshl_b32 s34, s30, 1')
    k('v_add_u32 v14, s34, v12')
    k('v_and_b32 v14, 7, v14')
    k('v_xor_b32 v14, v11, v14')
    k('v_lshl_add_u32 v4, v14, 4, v13')
    k('v_bfe_u32 v13, v10, 1, 1')
    k('s_and_b32 s34, s30, 1')
    k('s_lshl_b32 s34, s34, 1')
    k('v_or_b32 v13, s34, v13')
    k('v_lshrrev_b32 v14, 1, v11')
    k('v_xor_b32 v13, v13, v14')
    k('v_mul_u32_u24 v5, 3072, v10')
    k('v_lshl_add_u32 v5, v13, 5, v5')
    k('v_and_b32 v14, 1, v11')
    k('v_lshl_add_u32 v5, v14, 4, v5')
    k('s_lshl_b32 s34, s29, 7')
    k('v_add_u32 v5, s34, v5')
    k('s_mul_i32 s32, s30, 24576')
    k('s_lshl_b32 s33, s30, 10')
    k('s_lshl_b32 s35, s30, 11')
    k('s_add_u32 s35, s35, 2048')
    k('s_lshl_b32 s36, s30, 9')
    k('s_waitcnt lgkmcnt(0)')
    srd(k, 12, 4, 5, XBYTES, 0 if layer == 1 else X2_OFF)
    srd(k, 16, 6, 7, 512 * 1536 * 2)
    k('s_mov_b64 s[56:57], 0xffffffff')

    def issue_chunk(c):
        sb = (c % 4) * SLOT
        k(f's_mov_b32 s37, {c * 128}')
        k(f's_add_u32 m0, s35, {sb}')
        k('buffer_load_dwordx4 v2, s[12:15], s37 offen lds')
        k(f's_add_u32 m0, s35, {sb + 1024}')
        k('buffer_load_dwordx4 v3, s[12:15], s37 offen lds')
        k(f's_add_u32 m0, s36, {sb}')
        k('s_mov_b64 exec, s[56:57]')
        k('buffer_load_dwordx4 v4, s[12:15], s37 offen lds')
        k('s_mov_b64 exec, -1')
        for sg in range(3):
            for i in range(2):
                k(f's_add_u32 s34, s32, {(c * 64 + 32 * i) * 3072 + sg * 1024}')
                k(f's_add_u32 m0, s33, {sb + WOFF + sg * 8192 + i * 4096}')
                k('buffer_load_dwordx4 v5, s[16:19], s34 offen lds')

    issue_chunk(0)
    issue_chunk(1)
    if layer == 1:
        srd(k, 24, 8, 9, 65536, ST_OFF)
    k('v_lshlrev_b32 v6, 5, v1')
    k('v_add_u32 v6, s35, v6')
    k('v_and_b32 v7, 31, v1')
    k('v_lshlrev_b32 v7, 4, v7')
    k('v_add_u32 v7, s36, v7')
    for v in range(120, 128):
        k(f'v_mov_b32 v{v}, 0')
    k('s_mov_b32 s52, 0xffff0000')
    k('s_mov_b32 s53, 0x3b000000')
    k('s_mov_b32 s54, 0x3727c5ac')
    for c in range(8):
        k(f's_waitcnt vmcnt({9 if c < 7 else 0})')
        k('s_barrier')
        sl = c % 4
        if sl == 2:
            k(f'v_add_u32 v6, {2 * SLOT}, v6')
            k(f'v_add_u32 v7, {2 * SLOT}, v7')
        if sl == 0 and c > 0:
            k(f'v_subrev_u32 v6, {2 * SLOT}, v6')
            k(f'v_subrev_u32 v7, {2 * SLOT}, v7')
        so = (sl & 1) * SLOT
        k(f'ds_read_b128 v[100:103], v6 offset:{so}')
        k(f'ds_read_b128 v[104:107], v6 offset:{so + 16}')
        k(f'ds_read_b128 v[108:111], v7 offset:{so}')
        if c + 2 <= 7:
            issue_chunk(c + 2)
        k('s_waitcnt lgkmcnt(0)')
        for d in range(12):
            acc = 120 if d < 8 else 124
            k(f'v_lshlrev_b32 v112, 16, v{100+d}')
            k(f'v_and_b32 v113, s52, v{100+d}')
            k(f'v_add_f32 v{acc}, v{acc}, v112')
            k(f'v_add_f32 v{acc+1}, v{acc+1}, v113')
            k(f'v_fma_f32 v{acc+2}, v112, v112, v{acc+2}')
            k(f'v_fma_f32 v{acc+3}, v113, v113, v{acc+3}')
    k('v_add_f32 v120, v120, v121')
    k('v_add_f32 v121, v122, v123')
    k('v_add_f32 v122, v124, v125')
    k('v_add_f32 v123, v126, v127')
    for v in range(120, 124):
        k(f'v_add_f32_dpp v{v}, v{v}, v{v} quad_perm:[1,0,3,2] row_mask:0xf bank_mask:0xf')
    for v in range(120, 124):
        k(f'v_add_f32_dpp v{v}, v{v}, v{v} quad_perm:[2,3,0,1] row_mask:0xf bank_mask:0xf')
    for v in range(122, 124):
        k(f'v_add_f32_dpp v{v}, v{v}, v{v} row_half_mirror row_mask:0xf bank_mask:0xf')
    ln_scalars(k, 120, 121, 124, 125, 112, 113, 52, 53, 54)
    ln_scalars(k, 122, 123, 126, 127, 114, 115, 52, 53, 54)
    k('v_lshrrev_b32 v112, 2, v1')
    k('v_lshlrev_b32 v112, 3, v112')
    k('s_lshl_b32 s34, s30, 7')
    k('v_add_u32 v112, s34, v112')
    k(f'ds_write_b64 v112, v[124:125] offset:{STAT}')
    k('v_bfe_u32 v112, v1, 3, 2')
    k('v_lshlrev_b32 v112, 3, v112')
    k('s_lshl_b32 s34, s30, 5')
    k('v_add_u32 v112, s34, v112')
    k(f'ds_write_b64 v112, v[126:127] offset:{STAT + 512}')
    if layer == 1:
        k('s_cmp_lg_u32 s30, 0')
        k(f's_cbranch_scc1 L_k1l{layer}_nz')
        k('v_mov_b32 v100, 0')
        k('v_mov_b32 v101, 0')
        k('v_mov_b32 v102, 0')
        k('v_mov_b32 v103, 0')
        k('s_lshl_b32 s34, s2, 8')
        k('v_lshlrev_b32 v104, 4, v1')
        k('v_add_u32 v104, s34, v104')
        k('v_cmp_gt_u32 vcc, 16, v1')
        k('s_and_saveexec_b64 s[58:59], vcc')
        k('buffer_store_dwordx4 v[100:103], v104, s[24:27], 0 offen')
        k('s_mov_b64 exec, s[58:59]')
        k.label(f'L_k1l{layer}_nz')
    srd(k, 20, 8, 9, XBYTES, O_OFF)
    k('s_waitcnt lgkmcnt(0)')
    k('s_barrier')
    if layer == 1:
        k('s_load_dwordx2 s[60:61], s[0:1], 16')
        k('s_load_dwordx4 s[64:67], s[0:1], 40')
        k('s_load_dwordx2 s[62:63], s[0:1], 56')
        k('s_and_b32 s84, s2, 7')
        k('s_lshr_b32 s85, s2, 3')
        k('v_lshrrev_b32 v20, 5, v1')
        k('v_mul_u32_u24 v20, 3584, v20')
        k('v_and_b32 v21, 31, v1')
        k('v_lshl_add_u32 v20, v21, 4, v20')
        k('v_lshlrev_b32 v21, 4, v1')
        k('s_mul_i32 s34, s84, 448')
        k('s_lshl_b32 s37, s85, 4')
        k('s_lshl_b32 s38, s30, 2')
        k('s_add_u32 s37, s37, s38')
        k('s_mul_i32 s37, s37, 3584')
        k('s_add_u32 s34, s34, s37')
        k('s_waitcnt lgkmcnt(0)')
        srd(k, 68, 64, 65, 512 * 1792 * 2)
        srd(k, 72, 66, 67, 512 * 1792 * 2)
        srd(k, 76, 62, 63, 1792 * 512 * 2)
        srd(k, 80, 60, 61, 512 * 512 * 2)
        k('s_lshl_b32 s37, s85, 4')
        k('s_add_u32 s37, s37, s38')
        k('s_lshl_b32 s37, s37, 10')
        for i in range(4):
            k(f'buffer_load_dwordx4 v[{154+4*i}:{157+4*i}], v21, s[80:83], s37 offen offset:{i*1024}')
        for i in range(2):
            k(f's_add_u32 s37, s34, {2 * i * 3584}')
            k(f'buffer_load_dwordx4 v[{130+8*i}:{133+8*i}], v20, s[68:71], s37 offen')
            k(f'buffer_load_dwordx4 v[{134+8*i}:{137+8*i}], v20, s[72:75], s37 offen')
        k('s_mul_i32 s34, s84, 224')
        k('s_mul_i32 s37, s85, 7')
        k('s_add_u32 s34, s34, s37')
        k('s_add_u32 s34, s34, s30')
        k('s_lshl_b32 s34, s34, 10')
        k('buffer_load_dwordx4 v[146:149], v21, s[76:79], s34 offen')
        k('s_add_u32 s34, s34, 4096')
        k('buffer_load_dwordx4 v[150:153], v21, s[76:79], s34 offen')
    k('s_add_u32 s30, s30, 4')
    k(f's_branch L_k1l{layer}_attn')
    k.label(f'L_k1l{layer}_comp')
    k('s_lshl_b32 s35, s30, 11')
    k('s_add_u32 s35, s35, 2048')
    k('s_lshr_b32 s37, s2, 5')
    k('s_bfe_u32 s38, s2, 0x20003')
    k('s_lshl_b32 s34, s37, 6')
    k('v_add_u32 v190, s34, v1')
    k('v_mul_u32_u24 v190, 3072, v190')
    k('s_lshl_b32 s34, s29, 7')
    k('s_lshl_b32 s36, s30, 10')
    k('s_add_u32 s34, s34, s36')
    k('v_add_u32 v190, s34, v190')
    k('v_add_u32 v191, s31, v1')
    k('v_lshlrev_b32 v191, 10, v191')
    k('s_lshl_b32 s38, s38, 8')
    k('v_add_u32 v191, s38, v191')
    k('v_lshrrev_b32 v192, 1, v1')
    k('s_sub_u32 s36, s31, 16')
    k('v_add_u32 v192, s36, v192')
    k('v_lshlrev_b32 v192, 10, v192')
    k('v_and_b32 v193, 1, v1')
    k('v_lshl_add_u32 v192, v193, 7, v192')
    k('v_add_u32 v192, s38, v192')
    k('s_waitcnt lgkmcnt(0)')
    srd(k, 12, 4, 5, XBYTES, 0 if layer == 1 else X2_OFF)
    srd(k, 16, 6, 7, 512 * 1536 * 2)
    k('s_cmp_eq_u32 s30, 3')
    k(f's_cbranch_scc1 L_k1l{layer}_wx')
    k('buffer_load_dword v194, v190, s[16:19], 0 offen')
    k(f's_branch L_k1l{layer}_wdone')
    k.label(f'L_k1l{layer}_wx')
    k('buffer_load_dword v194, v191, s[12:15], 0 offen')
    k('buffer_load_dword v195, v191, s[12:15], 0 offen offset:128')
    k('buffer_load_dword v196, v192, s[12:15], 0 offen')
    k.label(f'L_k1l{layer}_wdone')
    srd(k, 20, 8, 9, XBYTES, O_OFF)
    st()
    k('v_and_b32 v10, 15, v1')
    k('v_lshrrev_b32 v13, 1, v10')
    k('v_xor_b32 v13, v13, v12')
    k('v_lshlrev_b32 v6, 7, v10')
    k('v_lshl_add_u32 v6, v13, 4, v6')
    k('v_xor_b32 v7, 64, v6')
    k('v_add_u32 v8, s35, v6')
    k('v_add_u32 v9, s35, v7')
    k('v_bfe_u32 v13, v1, 2, 2')
    k('v_lshl_add_u32 v14, v12, 3, v13')
    k('v_lshlrev_b32 v164, 7, v14')
    k('v_lshrrev_b32 v13, 1, v13')
    k('v_and_b32 v14, 1, v12')
    k('v_lshl_or_b32 v13, v14, 1, v13')
    k('v_xor_b32 v13, s30, v13')
    k('v_lshl_add_u32 v164, v13, 5, v164')
    k('v_and_b32 v14, 3, v1')
    k('v_lshl_add_u32 v164, v14, 3, v164')
    k(f'v_add_u32 v164, {WOFF}, v164')
    for (d, sreg) in ((165, 6), (166, 7), (167, 8), (168, 9), (169, 164)):
        k(f'v_add_u32 v{d}, {2 * SLOT}, v{sreg}')
    for v in range(16, 88):
        k(f'v_mov_b32 v{v}, 0')
    for v in range(ONES, ONES + 4):
        k(f'v_mov_b32 v{v}, 0x3f803f80')
    for v in range(170, 174):
        k(f'v_mov_b32 v{v}, 0')

    def fread(s):
        c, q, b = s // 2, s & 1, s & 1
        slot = c % 4
        hi = slot >= 2
        so = (slot & 1) * SLOT
        xb = (166 if q else 165) if hi else (7 if q else 6)
        sbase = (168 if q else 167) if hi else (9 if q else 8)
        wb = 169 if hi else 164
        for sg in range(3):
            o = so + sg * 8192 + q * 4096
            k(f'ds_read_b64_tr_b16 v[{WFB(b,sg)}:{WFB(b,sg)+1}], v{wb} offset:{o}')
            k(f'ds_read_b64_tr_b16 v[{WFB(b,sg)+2}:{WFB(b,sg)+3}], v{wb} offset:{o+512}')
        for t in range(4):
            k(f'ds_read_b128 v[{XFB(b,t)}:{XFB(b,t)+3}], v{xb} offset:{so + 2048 + t * 2048}')
        k(f'ds_read_b128 v[{XFB(b,4)}:{XFB(b,4)+3}], v{xb} offset:{so}')

    k('s_barrier')
    st()
    fread(0)
    for s in range(16):
        c, q, b = s // 2, s & 1, s & 1
        k('s_waitcnt lgkmcnt(0)')
        if q == 1 and c < 7:
            if c in (1, 3, 5): st()
            k('s_barrier')
            if c in (1, 3, 5): st()
        if s < 15:
            fread(s + 1)
        for sg in range(3):
            w = WFB(b, sg)
            for t in range(5):
                if sg == 0 and t == 4:
                    continue
                a = ACC(sg, t)
                k(f'v_mfma_f32_16x16x32_bf16 v[{a}:{a+3}], v[{w}:{w+3}], v[{XFB(b,t)}:{XFB(b,t)+3}], v[{a}:{a+3}]')
            a = CS(sg)
            k(f'v_mfma_f32_16x16x32_bf16 v[{a}:{a+3}], v[{w}:{w+3}], v[{ONES}:{ONES+3}], v[{a}:{a+3}]')
    st()
    k('s_mov_b32 s52, 0xffff0000')
    k('s_mov_b32 s53, 0x3b000000')
    k('s_mov_b32 s54, 0x3727c5ac')
    k('v_lshlrev_b32 v13, 3, v10')
    k('s_barrier')
    for t in range(5):
        k(f'ds_read_b64 v[{90+2*t}:{91+2*t}], v13 offset:{STAT + t * 128}')
    k(f'v_mul_u32_u24 v14, {ROWB}, v10')
    k('v_lshl_add_u32 v14, v12, 3, v14')
    k('s_mul_i32 s34, s30, 8960')
    k('v_add_u32 v14, s34, v14')
    k('s_waitcnt lgkmcnt(0)')
    for sg in range(3):
        for t in range(5):
            if sg == 0 and t == 4:
                continue
            a = ACC(sg, t)
            m, ri = (90 + 2 * t, 91 + 2 * t)
            for r in range(4):
                k(f'v_fma_f32 v{a+r}, -v{m}, v{CS(sg)+r}, v{a+r}')
            for r in range(4):
                k(f'v_mul_f32 v{a+r}, v{a+r}, v{ri}')
            k(f'v_cvt_pk_bf16_f32 v{a}, v{a}, v{a+1}')
            k(f'v_cvt_pk_bf16_f32 v{a+1}, v{a+2}, v{a+3}')
            rowoff = 0 if t == 4 else (16 + 16 * t) * ROWB
            k(f'ds_write_b64 v14, v[{a}:{a+1}] offset:{QKVA + rowoff + sg * 32}')
    st()
    k.label(f'L_k1l{layer}_attn')
    k('s_waitcnt lgkmcnt(0)')
    k('s_barrier')
    k('s_lshr_b32 s34, s30, 2')
    k('s_lshl_b32 s34, s34, 5')
    k('v_and_b32 v2, 31, v1')
    k('v_add_u32 v2, s34, v2')
    k('v_lshrrev_b32 v8, 5, v1')
    k('v_add_u32 v3, s31, v2')
    k('v_lshlrev_b32 v9, 3, v8')
    k('v_sub_u32 v7, v3, v9')
    k('v_sub_u32 v4, v2, v9')
    k('v_add_u32 v4, 10, v4')
    k(f'v_mul_u32_u24 v4, {ROWB}, v4')
    k('s_and_b32 s36, s30, 3')
    k('s_mul_i32 s34, s36, 8960')
    k('v_add_u32 v4, s34, v4')
    k('v_add_u32 v6, 16, v2')
    k(f'v_mul_u32_u24 v6, {ROWB}, v6')
    k('v_add_u32 v6, s34, v6')
    Q = 16
    KK = lambda i: 24 + 8 * i
    VV = lambda i: 56 + 8 * i
    k(f'ds_read_b128 v[{Q}:{Q+3}], v6 offset:{QKVA}')
    k(f'ds_read_b128 v[{Q+4}:{Q+7}], v6 offset:{QKVA + 16}')
    for i in range(4):
        o = QKVA + (6 - 2 * i) * ROWB + 32
        k(f'ds_read_b128 v[{KK(i)}:{KK(i)+3}], v4 offset:{o}')
        k(f'ds_read_b128 v[{KK(i)+4}:{KK(i)+7}], v4 offset:{o+16}')
    for i in range(2):
        o = QKVA + (6 - 2 * i) * ROWB + 64
        k(f'ds_read_b128 v[{VV(i)}:{VV(i)+3}], v4 offset:{o}')
        k(f'ds_read_b128 v[{VV(i)+4}:{VV(i)+7}], v4 offset:{o+16}')
    k('s_waitcnt lgkmcnt(4)')
    for i in range(2, 4):
        o = QKVA + (6 - 2 * i) * ROWB + 64
        k(f'ds_read_b128 v[{VV(i)}:{VV(i)+3}], v4 offset:{o}')
        k(f'ds_read_b128 v[{VV(i)+4}:{VV(i)+7}], v4 offset:{o+16}')
    L = 88
    P = 92
    for j in range(8):
        for i in range(4):
            src2 = '0' if j == 0 else f'v{L+i}'
            k(f'v_dot2_f32_bf16 v{L+i}, v{Q+j}, v{KK(i)+j}, {src2}')
    for i in range(0, 4, 2):
        k(f'v_cvt_pk_bf16_f32 v{P+i//2}, v{L+i}, v{L+i+1}')
    for i in range(0, 4, 2):
        k(f'v_lshlrev_b32 v{L+i}, 16, v{P+i//2}')
        k(f'v_and_b32 v{L+i+1}, s52, v{P+i//2}')
    k('v_mov_b32 v94, 0xcf6e6b28')
    for i in range(4):
        k(f'v_cmp_le_i32 vcc, {2*i}, v7')
        k(f'v_cndmask_b32 v{L+i}, v94, v{L+i}, vcc')
    k(f'v_max3_f32 v95, v{L}, v{L+1}, v{L+2}')
    k(f'v_max_f32 v95, v95, v{L+3}')
    k('v_mov_b32 v96, v95')
    k('v_permlane32_swap_b32 v95, v96')
    k('v_max_f32 v95, v95, v96')
    k('s_mov_b32 s34, 0x3eb8aa3b')
    for i in range(4):
        k(f'v_sub_f32 v{L+i}, v{L+i}, v95')
    for i in range(4):
        k(f'v_mul_f32 v{L+i}, s34, v{L+i}')
    for i in range(4):
        k(f'v_exp_f32 v{L+i}, v{L+i}')
    k(f'v_add_f32 v95, v{L}, v{L+1}')
    k(f'v_add_f32 v96, v{L+2}, v{L+3}')
    k('v_add_f32 v95, v95, v96')
    k('v_mov_b32 v96, v95')
    k('v_permlane32_swap_b32 v95, v96')
    k('v_add_f32 v95, v95, v96')
    k('v_rcp_f32 v95, v95')
    for i in range(4):
        k(f'v_mul_f32 v{L+i}, v{L+i}, v95')
    for i in range(0, 4, 2):
        k(f'v_cvt_pk_bf16_f32 v{P+i//2}, v{L+i}, v{L+i+1}')
    k('s_mov_b32 s38, 0x05040100')
    k('s_mov_b32 s37, 0x07060302')
    k('s_waitcnt lgkmcnt(0)')
    OO = 24
    for wp in range(2):
        a_, b_ = 2 * wp, 2 * wp + 1
        for j in range(8):
            k(f'v_perm_b32 v{40+2*j}, v{VV(b_)+j}, v{VV(a_)+j}, s38')
            k(f'v_perm_b32 v{41+2*j}, v{VV(b_)+j}, v{VV(a_)+j}, s37')
        for j in range(16):
            src2 = '0' if wp == 0 else f'v{OO+j}'
            k(f'v_dot2_f32_bf16 v{OO+j}, v{40+j}, v{P+wp}, {src2}')
    for d in range(8):
        k(f'v_permlane32_swap_b32 v{OO+d}, v{OO+8+d}')
    for d in range(8):
        k(f'v_add_f32 v{OO+d}, v{OO+d}, v{OO+8+d}')
    for j in range(4):
        k(f'v_cvt_pk_bf16_f32 v{56+j}, v{OO+2*j}, v{OO+2*j+1}')
    k('v_lshlrev_b32 v5, 10, v3')
    k('v_lshl_add_u32 v5, v8, 4, v5')
    k('s_lshl_b32 s34, s29, 7')
    k('s_lshl_b32 s36, s36, 5')
    k('s_add_u32 s34, s34, s36')
    k('v_add_u32 v5, s34, v5')
    k('buffer_store_dwordx4 v[56:59], v5, s[20:23], 0 offen')
    st()
    k('s_waitcnt vmcnt(0)' if DIAG else '')
    st()
    st.flush(8, 9, layer - 1, 6, 7, 60)
    k.label(f'L_k1l{layer}_done')
    k('s_endpgm')
    return k, 4 * SLOT


def k2(layer):
    k = Kern(f'k2l{layer}_kernel', nvgpr=128, accum_offset=128, nsgpr=100)
    st = Stamps(k)
    CH = 16384
    ACC = lambda j: 12 + 4 * j
    RES = lambda j: 44 + 2 * j
    WR = lambda j: 52 + 2 * j
    WF = lambda b, j: 64 + b * 20 + 4 * j
    OF = lambda b: 64 + b * 20 + 16
    k('s_cmp_ge_u32 s2, 256')
    k(f's_cbranch_scc1 L_k2l{layer}_done')
    st()
    k(f's_load_dwordx2 s[4:5], s[0:1], {0 if layer == 1 else 80}')
    k('s_load_dwordx2 s[6:7], s[0:1], 16')
    k('s_load_dwordx2 s[8:9], s[0:1], 80')
    k('s_load_dwordx2 s[10:11], s[0:1], 32')
    k('s_and_b32 s36, s2, 7')
    k('s_lshr_b32 s37, s2, 3')
    k('s_lshl_b32 s36, s36, 2')
    k('s_lshr_b32 s38, s37, 3')
    k('s_add_u32 s36, s36, s38')
    k('s_and_b32 s37, s37, 7')
    k('s_lshl_b32 s36, s36, 6')
    k('s_lshl_b32 s41, s37, 7')
    k('v_and_b32 v1, 63, v0')
    k('v_lshrrev_b32 v2, 6, v0')
    k('v_readfirstlane_b32 s39, v2')
    k('v_lshrrev_b32 v10, 3, v1')
    k('v_and_b32 v11, 7, v1')
    k('v_lshrrev_b32 v61, 4, v1')
    k('s_lshl_b32 s40, s39, 4')
    k('s_add_u32 s40, s40, s36')
    k('s_cmp_lt_u32 s39, 4')
    k(f's_cbranch_scc1 L_k2l{layer}_comp')
    k('s_sub_u32 s39, s39, 4')
    k('s_sub_u32 s40, s40, 64')
    k('v_add_u32 v4, s40, v10')
    k('v_lshlrev_b32 v4, 10, v4')
    k('v_xor_b32 v5, v11, v61')
    k('v_lshl_add_u32 v2, v5, 4, v4')
    k('v_xor_b32 v5, 4, v5')
    k('v_lshl_add_u32 v3, v5, 4, v4')
    k('v_add_u32 v3, 8192, v3')
    k('v_bfe_u32 v4, v10, 1, 1')
    k('s_and_b32 s42, s39, 1')
    k('s_lshl_b32 s42, s42, 1')
    k('v_or_b32 v4, s42, v4')
    k('v_lshrrev_b32 v5, 1, v11')
    k('v_xor_b32 v4, v4, v5')
    k('v_lshlrev_b32 v6, 10, v10')
    k('v_lshl_add_u32 v6, v4, 5, v6')
    k('v_and_b32 v5, 1, v11')
    k('v_lshl_add_u32 v6, v5, 4, v6')
    k('v_add_u32 v6, s41, v6')
    k('s_lshl_b32 s43, s39, 13')
    k('s_lshl_b32 s44, s39, 10')
    k('s_lshl_b32 s45, s39, 11')
    k('s_waitcnt lgkmcnt(0)')
    srd(k, 12, 8, 9, XBYTES, O_OFF)
    srd(k, 16, 6, 7, 512 * 512 * 2)

    def issue2(c):
        k(f's_mov_b32 s46, {c * 128}')
        k(f's_add_u32 m0, s45, {c * CH}')
        k('buffer_load_dwordx4 v2, s[12:15], s46 offen lds')
        k(f's_add_u32 m0, s45, {c * CH + 1024}')
        k('buffer_load_dwordx4 v3, s[12:15], s46 offen lds')
        for i in range(2):
            k(f's_add_u32 s47, s43, {(c * 64 + 32 * i) * 1024}')
            k(f's_add_u32 m0, s44, {c * CH + 8192 + i * 4096}')
            k('buffer_load_dwordx4 v6, s[16:19], s47 offen lds')
    LA = 3
    for c in range(LA):
        issue2(c)
    issued = LA
    for c in range(8):
        k(f's_waitcnt vmcnt({(issued - (c + 1)) * 4})')
        k('s_barrier')
        if issued < 8:
            issue2(issued)
            issued += 1
    k('s_endpgm')
    k.label(f'L_k2l{layer}_comp')
    k('s_lshl_b32 s45, s39, 11')
    k('v_add_u32 v104, s36, v1')
    k('v_lshlrev_b32 v104, 10, v104')
    k('v_add_u32 v104, s41, v104')
    k('s_lshr_b32 s47, s2, 6')
    k('s_lshl_b32 s47, s47, 7')
    k('s_sub_u32 s48, s39, 1')
    k('s_lshl_b32 s48, s48, 6')
    k('s_add_u32 s47, s47, s48')
    k('v_add_u32 v105, s47, v1')
    k('v_lshlrev_b32 v105, 10, v105')
    k('v_add_u32 v105, s41, v105')
    k('s_waitcnt lgkmcnt(0)')
    srd(k, 12, 8, 9, XBYTES, O_OFF)
    srd(k, 16, 6, 7, 512 * 512 * 2)
    k('s_cmp_eq_u32 s39, 3')
    k(f's_cbranch_scc1 L_k2l{layer}_wdone')
    k('s_cmp_eq_u32 s39, 0')
    k(f's_cbranch_scc1 L_k2l{layer}_wo')
    k('buffer_load_dword v106, v105, s[16:19], 0 offen')
    k(f's_branch L_k2l{layer}_wdone')
    k.label(f'L_k2l{layer}_wo')
    k('buffer_load_dword v106, v104, s[12:15], 0 offen')
    k.label(f'L_k2l{layer}_wdone')
    st()
    srd(k, 20, 4, 5, XBYTES, 0 if layer == 1 else X2_OFF)
    srd(k, 24, 8, 9, XBYTES, X1_OFF if layer == 1 else X3_OFF)
    srd(k, 28, 8, 9, 32768, ST_OFF + (layer - 1) * 32768)
    srd(k, 32, 10, 11, 1024)
    k('v_and_b32 v60, 15, v1')
    k('v_add_u32 v62, s40, v60')
    k('v_lshlrev_b32 v9, 10, v62')
    k('v_lshl_add_u32 v9, v61, 3, v9')
    k('v_add_u32 v9, s41, v9')
    k('v_lshlrev_b32 v10, 3, v61')
    k('v_add_u32 v10, s41, v10')
    for j in range(4):
        k(f'buffer_load_dwordx2 v[{RES(j)}:{RES(j)+1}], v9, s[20:23], 0 offen offset:{j*32}')
    for j in range(4):
        k(f'buffer_load_dwordx2 v[{WR(j)}:{WR(j)+1}], v10, s[32:35], 0 offen offset:{j*32}')
    k('v_lshrrev_b32 v4, 1, v60')
    k('v_xor_b32 v4, v4, v61')
    k('v_lshlrev_b32 v2, 7, v60')
    k('v_lshl_add_u32 v2, v4, 4, v2')
    k('v_add_u32 v2, s45, v2')
    k('v_xor_b32 v3, 64, v2')
    k('v_bfe_u32 v8, v1, 2, 2')
    k('v_lshl_add_u32 v11, v61, 3, v8')
    k('v_lshlrev_b32 v11, 7, v11')
    k('v_and_b32 v5, 3, v1')
    k('v_lshl_add_u32 v11, v5, 3, v11')
    k('v_add_u32 v11, 8192, v11')
    k('v_lshrrev_b32 v8, 1, v8')
    k('v_and_b32 v5, 1, v61')
    k('v_lshl_or_b32 v8, v5, 1, v8')
    for j in range(4):
        k(f'v_xor_b32 v{4+j}, {j}, v8')
        k(f'v_lshl_add_u32 v{4+j}, v{4+j}, 5, v11')
    for i in range(6):
        k(f'v_add_u32 v{28+i}, 65536, v{2+i}')
    for v in range(12, 28):
        k(f'v_mov_b32 v{v}, 0')

    def fread(s):
        c, q, b = s // 2, s & 1, s & 1
        hi = c >= 4
        co = (c & 3) * CH
        base = 28 if hi else 2
        for j in range(4):
            k(f'ds_read_b64_tr_b16 v[{WF(b,j)}:{WF(b,j)+1}], v{base+2+j} offset:{co + q*4096}')
            k(f'ds_read_b64_tr_b16 v[{WF(b,j)+2}:{WF(b,j)+3}], v{base+2+j} offset:{co + q*4096 + 512}')
        k(f'ds_read_b128 v[{OF(b)}:{OF(b)+3}], v{base+q} offset:{co}')

    k('s_barrier')
    st()
    fread(0)
    for s in range(16):
        c, q, b = s // 2, s & 1, s & 1
        if q == 1 and c < 7:
            k('s_barrier')
        k('s_waitcnt lgkmcnt(0)')
        if s < 15:
            fread(s + 1)
        for j in range(4):
            k(f'v_mfma_f32_16x16x32_bf16 v[{ACC(j)}:{ACC(j)+3}], v[{WF(b,j)}:{WF(b,j)+3}], v[{OF(b)}:{OF(b)+3}], v[{ACC(j)}:{ACC(j)+3}]')
    st()
    k('s_mov_b32 s46, 0xffff0000')
    k('v_mov_b32 v63, 0x3f803f80')
    k('v_mov_b32 v108, 0')
    k('v_mov_b32 v109, 0')
    k('v_mov_b32 v110, 0')
    k('s_waitcnt vmcnt(0)')
    for j in range(4):
        for h in range(2):
            a = ACC(j) + 2 * h
            o = 112 + 2 * j + h
            k(f'v_cvt_pk_bf16_f32 v120, v{a}, v{a+1}')
            k('v_lshlrev_b32 v121, 16, v120')
            k('v_and_b32 v122, s46, v120')
            k(f'v_lshlrev_b32 v123, 16, v{RES(j)+h}')
            k(f'v_and_b32 v124, s46, v{RES(j)+h}')
            k('v_add_f32 v121, v121, v123')
            k('v_add_f32 v122, v122, v124')
            k(f'v_cvt_pk_bf16_f32 v{o}, v121, v122')
            k(f'v_dot2c_f32_bf16 v108, v{o}, v63')
            k(f'v_dot2c_f32_bf16 v109, v{o}, v{o}')
            k(f'v_dot2c_f32_bf16 v110, v{o}, v{WR(j)+h}')
        k(f'buffer_store_dwordx2 v[{112+2*j}:{113+2*j}], v9, s[24:27], 0 offen offset:{j*32}')
    for v in range(108, 111):
        xrow_reduce(k, v, 125 + v - 108)
    k('v_mov_b32 v111, 0')
    k('v_cmp_eq_u32 vcc, 1, v61')
    k('v_cndmask_b32 v108, v108, v109, vcc')
    k('v_cmp_eq_u32 vcc, 2, v61')
    k('v_cndmask_b32 v108, v108, v110, vcc')
    k('v_cmp_eq_u32 vcc, 3, v61')
    k('v_cndmask_b32 v108, v108, v111, vcc')
    k('v_lshlrev_b32 v120, 4, v62')
    k('v_lshl_add_u32 v120, v61, 2, v120')
    k('buffer_atomic_add_f32 v108, v120, s[28:31], 0 offen')
    st()
    k('s_waitcnt vmcnt(0)' if DIAG else '')
    st()
    st.flush(8, 9, 2 + layer - 1, 6, 7, 60)
    k.label(f'L_k2l{layer}_done')
    k('s_endpgm')
    return k, 131072


def normalize_dword(k, x, m, rinv, t0, t1, s_mask, out):
    k(f'v_lshlrev_b32 v{t0}, 16, v{x}')
    k(f'v_and_b32 v{t1}, s{s_mask}, v{x}')
    k(f'v_sub_f32 v{t0}, v{t0}, v{m}')
    k(f'v_sub_f32 v{t1}, v{t1}, v{m}')
    k(f'v_cvt_pk_bf16_f32 v{t0}, v{t0}, v{t1}')
    k(f'v_and_b32 v{t1}, s{s_mask}, v{t0}')
    k(f'v_lshlrev_b32 v{t0}, 16, v{t0}')
    k(f'v_mul_f32 v{t0}, v{t0}, v{rinv}')
    k(f'v_mul_f32 v{t1}, v{t1}, v{rinv}')
    k(f'v_cvt_pk_bf16_f32 v{out}, v{t0}, v{t1}')


def add_dwords(k, a, b, t0, t1, t2, t3, s_mask, out):
    k(f'v_lshlrev_b32 v{t0}, 16, v{a}')
    k(f'v_and_b32 v{t1}, s{s_mask}, v{a}')
    k(f'v_lshlrev_b32 v{t2}, 16, v{b}')
    k(f'v_and_b32 v{t3}, s{s_mask}, v{b}')
    k(f'v_add_f32 v{t0}, v{t0}, v{t2}')
    k(f'v_add_f32 v{t1}, v{t1}, v{t3}')
    k(f'v_cvt_pk_bf16_f32 v{out}, v{t0}, v{t1}')


def dpp_max_reduce(k, src, t):
    k(f'v_max_u32_dpp v{t}, v{src}, v{src} quad_perm:[1,0,3,2] row_mask:0xf bank_mask:0xf')
    k(f'v_max_u32_dpp v{t}, v{t}, v{t} quad_perm:[2,3,0,1] row_mask:0xf bank_mask:0xf')
    k(f'v_max_u32_dpp v{t}, v{t}, v{t} row_half_mirror row_mask:0xf bank_mask:0xf')
    k(f'v_max_u32_dpp v{t}, v{t}, v{t} row_mirror row_mask:0xf bank_mask:0xf')
    k(f'v_max_u32_dpp v{t}, v{t}, v{t} row_bcast:15 row_mask:0xa bank_mask:0xf')
    k(f'v_max_u32_dpp v{t}, v{t}, v{t} row_bcast:31 row_mask:0xc bank_mask:0xf')


NFFN = 56
NLN = 128
PART_OFF = 9 * MB


def k4(layer):
    k = Kern(f'k4l{layer}_kernel', nvgpr=128, accum_offset=128, nsgpr=100)
    st = Stamps(k, base=80)
    GOFF, UOFF, DOFF, RED = 0, 32768, 65536, 98304
    CAND = RED + 16384
    HB = CAND + 128
    CNT = HB + 1024
    k(f's_cmp_ge_u32 s2, {NFFN + NLN}')
    k(f's_cbranch_scc1 L_k4l{layer}_done')
    st()
    k('s_load_dwordx2 s[4:5], s[0:1], 80')
    k('s_load_dwordx2 s[6:7], s[0:1], 40')
    k('s_load_dwordx2 s[8:9], s[0:1], 48')
    k('s_load_dwordx2 s[10:11], s[0:1], 32')
    k('s_load_dwordx2 s[70:71], s[0:1], 64')
    k('s_load_dwordx2 s[66:67], s[0:1], 56')
    k('v_and_b32 v1, 63, v0')
    k('v_lshrrev_b32 v2, 6, v0')
    k('v_readfirstlane_b32 s68, v2')
    k('s_mov_b32 s72, 0xffff0000')
    k('s_mov_b32 s73, 0x3b000000')
    k('s_mov_b32 s74, 0x3727c5ac')
    k('v_lshlrev_b32 v3, 4, v0')
    k('s_waitcnt lgkmcnt(0)')
    srd(k, 12, 4, 5, XBYTES, X1_OFF if layer == 1 else X3_OFF)
    srd(k, 24, 4, 5, 32768, ST_OFF + (layer - 1) * 32768)
    k(f's_cmp_ge_u32 s2, {NFFN}')
    k(f's_cbranch_scc1 L_k4l{layer}_ln')
    k('s_and_b32 s69, s2, 7')
    k('s_mul_i32 s69, s69, 7')
    k('s_lshr_b32 s75, s2, 3')
    k('s_add_u32 s69, s69, s75')
    k('s_cmp_lt_u32 s68, 4')
    k(f's_cbranch_scc1 L_k4l{layer}_comp')
    k('s_sub_u32 s68, s68, 4')
    srd(k, 16, 6, 7, 512 * 1792 * 2)
    srd(k, 20, 8, 9, 512 * 1792 * 2)
    srd(k, 44, 66, 67, 1792 * 512 * 2)
    k('s_barrier')
    k('v_lshrrev_b32 v5, 2, v1')
    k('v_mul_u32_u24 v6, 3584, v5')
    k('v_lshrrev_b32 v7, 5, v1')
    k('v_lshlrev_b32 v7, 1, v7')
    k('v_and_b32 v8, 3, v1')
    k('v_xor_b32 v7, v7, v8')
    k('v_lshl_add_u32 v6, v7, 4, v6')
    k('s_lshl_b32 s75, s69, 6')
    k('v_add_u32 v6, s75, v6')
    k('s_mul_i32 s76, s68, 458752')
    k('s_lshl_b32 s77, s68, 13')
    for mat in range(2):
        for i in range(8):
            k(f's_add_u32 s40, s76, {16 * i * 3584}')
            k(f's_add_u32 m0, s77, {mat * 32768 + i * 1024}')
            k(f'buffer_load_dwordx4 v6, s[{16+4*mat}:{19+4*mat}], s40 offen lds')
    k('v_lshrrev_b32 v7, 1, v1')
    k('v_and_b32 v8, 1, v1')
    k('s_lshl_b32 s78, s69, 15')
    k('s_lshl_b32 s79, s68, 13')
    k('s_add_u32 s78, s78, s79')
    for i in range(8):
        k('s_and_b32 s40, s68, 1')
        k('s_lshl_b32 s40, s40, 2')
        k(f's_or_b32 s40, s40, {i & 3}')
        k('v_xor_b32 v9, s40, v7')
        k('v_lshlrev_b32 v9, 5, v9')
        k('v_lshl_add_u32 v9, v8, 4, v9')
        k(f's_add_u32 s41, s78, {i * 1024}')
        k(f's_add_u32 m0, s79, {DOFF + i * 1024}')
        k('buffer_load_dwordx4 v9, s[44:47], s41 offen lds')
    k('s_waitcnt vmcnt(0)')
    k('s_barrier')
    k('s_endpgm')
    k.label(f'L_k4l{layer}_comp')
    for i in range(8):
        k(f's_mov_b32 s40, {4096 * i}')
        k(f'buffer_load_dwordx4 v[{32+4*i}:{35+4*i}], v3, s[24:27], s40 offen')
    srd(k, 28, 10, 11, 1024)
    k('v_lshlrev_b32 v4, 4, v1')
    k('buffer_load_dwordx4 v[64:67], v4, s[28:31], 0 offen')
    srd(k, 32, 4, 5, SM_SIZE, SM_OFF)
    k('s_lshl_b32 s77, s68, 13')
    k(f'v_mov_b32 v5, {CNT}')
    k('v_mov_b32 v6, 0')
    k('ds_write_b32 v5, v6')
    k('s_waitcnt lgkmcnt(0)')
    k('s_barrier')
    st()
    k('v_mov_b32 v8, 0x3f803f80')
    k('v_mov_b32 v9, 0')
    k('s_waitcnt vmcnt(0)')
    st()
    for d in range(4):
        k(f'v_dot2c_f32_bf16 v9, v{64+d}, v8')
    k('v_add_f32_dpp v9, v9, v9 quad_perm:[1,0,3,2] row_mask:0xf bank_mask:0xf')
    k('v_add_f32_dpp v9, v9, v9 quad_perm:[2,3,0,1] row_mask:0xf bank_mask:0xf')
    k('v_add_f32_dpp v9, v9, v9 row_half_mirror row_mask:0xf bank_mask:0xf')
    k('v_add_f32_dpp v9, v9, v9 row_mirror row_mask:0xf bank_mask:0xf')
    xrow_reduce(k, 9, 10)
    for i in range(8):
        b = 32 + 4 * i
        ln_scalars(k, b, b + 1, 10, 11, 12, 13, 72, 73, 74)
        k(f'v_fma_f32 v12, -v10, v9, v{b+2}')
        k('v_mul_f32 v12, v12, v11')
        k('v_cvt_pk_bf16_f32 v12, v12, v12')
        k('v_lshlrev_b32 v12, 16, v12')
        k('v_ashrrev_i32 v13, 31, v12')
        k('v_or_b32 v13, 0x80000000, v13')
        k('v_xor_b32 v12, v12, v13')
        k(f'v_sub_u32 v13, {2047 - 256 * i}, v0')
        k(f'v_and_or_b32 v{16+i}, v12, s72, v13')
    regs = list(range(16, 24))
    spare = 24
    net = [(0, 1), (2, 3), (4, 5), (6, 7), (0, 2), (1, 3), (4, 6), (5, 7), (1, 2), (5, 6), (0, 4), (3, 7),
           (1, 5), (2, 6), (1, 4), (3, 6), (2, 4), (3, 5), (3, 4)]
    for (a, b) in net:
        k(f'v_max_u32 v{spare}, v{regs[a]}, v{regs[b]}')
        k(f'v_min_u32 v{regs[b]}, v{regs[a]}, v{regs[b]}')
        regs[a], spare = spare, regs[a]
    k('v_mov_b32 v26, 0')
    st()
    for n in range(8):
        dpp_max_reduce(k, regs[0], 25)
        k(f'v_readlane_b32 s{50+n}, v25, 63')
        k(f'v_writelane_b32 v26, s{50+n}, {n}')
        if n < 7:
            k(f'v_cmp_eq_u32 vcc, s{50+n}, v{regs[0]}')
            for i in range(7 - n):
                k(f'v_cndmask_b32 v{regs[i]}, v{regs[i]}, v{regs[i+1]}, vcc')
    k('s_lshl_b32 s40, s68, 5')
    k('v_lshlrev_b32 v27, 2, v1')
    k('v_add_u32 v27, s40, v27')
    k(f'v_add_u32 v27, {RED}, v27')
    k('v_cmp_gt_u32 vcc, 8, v1')
    k('s_and_saveexec_b64 s[48:49], vcc')
    k(f'ds_write_b32 v27, v26 offset:{CAND - RED}')
    k('s_mov_b64 exec, 1')
    k('v_mov_b32 v6, 1')
    k('ds_add_u32 v5, v6')
    k('s_mov_b64 exec, s[48:49]')
    k.label(f'L_k4l{layer}_poll')
    k('ds_read_b32 v6, v5')
    k('s_waitcnt lgkmcnt(0)')
    k('v_readfirstlane_b32 s40, v6')
    k('s_cmp_lt_u32 s40, 4')
    k(f's_cbranch_scc1 L_k4l{layer}_poll')
    k('v_and_b32 v27, 31, v1')
    k('v_lshlrev_b32 v27, 2, v27')
    k(f'v_add_u32 v27, {RED}, v27')
    k(f'ds_read_b32 v28, v27 offset:{CAND - RED}')
    k('v_mov_b32 v26, 0')
    k('s_waitcnt lgkmcnt(0)')
    st()
    for n in range(8):
        dpp_max_reduce(k, 28, 25)
        k(f'v_readlane_b32 s{58+n}, v25, 63')
        k(f'v_writelane_b32 v26, s{58+n}, {n}')
        if n < 7:
            k(f'v_cmp_eq_u32 vcc, s{58+n}, v28')
            k('v_cndmask_b32 v28, v28, 0, vcc')
    st()
    k('v_and_b32 v27, 7, v1')
    k('v_lshlrev_b32 v27, 2, v27')
    k('ds_bpermute_b32 v28, v27, v26')
    k('v_lshrrev_b32 v61, 4, v1')
    k('s_or_b32 s40, s2, s68')
    k('s_cmp_lg_u32 s40, 0')
    k(f's_cbranch_scc1 L_k4l{layer}_nokeys')
    k('v_lshlrev_b32 v27, 2, v1')
    k('v_cmp_gt_u32 vcc, 8, v1')
    k('s_and_saveexec_b64 s[48:49], vcc')
    k(f's_mov_b32 s40, {SEL_REL}')
    k('buffer_store_dword v26, v27, s[32:35], s40 offen')
    k('s_mov_b64 exec, s[48:49]')
    k.label(f'L_k4l{layer}_nokeys')
    k('s_waitcnt lgkmcnt(0)')
    k('v_and_b32 v28, 0x7ff, v28')
    k('v_sub_u32 v28, 2047, v28')
    k('v_lshlrev_b32 v29, 10, v28')
    k('v_lshl_add_u32 v29, v61, 4, v29')
    k('s_lshl_b32 s40, s68, 8')
    k('v_lshlrev_b32 v30, 4, v28')
    k('buffer_load_dwordx2 v[14:15], v30, s[24:27], 0 offen')
    for s in range(4):
        k(f'buffer_load_dwordx4 v[{32+4*s}:{35+4*s}], v29, s[12:15], s40 offen offset:{s*64}')
    k('v_bfe_u32 v62, v1, 2, 2')
    k('v_lshl_add_u32 v62, v61, 3, v62')
    k('v_lshlrev_b32 v62, 6, v62')
    k('v_and_b32 v63, 1, v61')
    k('v_lshl_add_u32 v62, v63, 5, v62')
    k('v_and_b32 v63, 3, v1')
    k('v_lshl_add_u32 v62, v63, 3, v62')
    k('v_add_u32 v62, s77, v62')
    k('v_xor_b32 v63, 32, v62')
    k('s_barrier')
    st()
    FR = lambda mat, tl, s: 64 + ((mat * 2 + tl) * 4 + s) * 4
    cnt = 0
    for s in range(4):
        for mat in range(2):
            for tl in range(2):
                b = FR(mat, tl, s)
                if cnt >= 12:
                    k('s_waitcnt lgkmcnt(10)')
                k(f'ds_read_b64_tr_b16 v[{b}:{b+1}], v{62+tl} offset:{mat*32768 + s*2048}')
                k(f'ds_read_b64_tr_b16 v[{b+2}:{b+3}], v{62+tl} offset:{mat*32768 + s*2048 + 256}')
                cnt += 2
    k('s_waitcnt vmcnt(4)')
    ln_scalars(k, 14, 15, 10, 11, 12, 13, 72, 73, 74)
    k('s_waitcnt vmcnt(0)')
    for d in range(16):
        normalize_dword(k, 32 + d, 10, 11, 12, 13, 72, 32 + d)
    for v in range(48, 64):
        if v not in (61,):
            pass
    AC = lambda mat, tl: 16 + (mat * 2 + tl) * 4
    for v in range(16, 32):
        k(f'v_mov_b32 v{v}, 0')
    k('s_waitcnt lgkmcnt(0)')
    for s in range(4):
        for mat in range(2):
            for tl in range(2):
                b = FR(mat, tl, s)
                a = AC(mat, tl)
                k(f'v_mfma_f32_16x16x32_bf16 v[{a}:{a+3}], v[{b}:{b+3}], v[{32+4*s}:{35+4*s}], v[{a}:{a+3}]')
    st()
    k('s_lshl_b32 s40, s68, 12')
    k('v_lshlrev_b32 v56, 4, v1')
    k(f'v_add_u32 v56, {RED}, v56')
    k('v_add_u32 v57, s40, v56')
    for q in range(4):
        k(f'ds_write_b128 v57, v[{16+4*q}:{19+4*q}] offset:{q*1024}')
    k('s_waitcnt lgkmcnt(0)')
    k('s_barrier')
    k('s_cmp_ge_u32 s68, 2')
    k(f's_cbranch_scc1 L_k4l{layer}_skiph')
    k('s_lshl_b32 s40, s68, 10')
    k('v_add_u32 v57, s40, v56')
    for w in range(4):
        k(f'ds_read_b128 v[{64+8*w}:{67+8*w}], v57 offset:{w*4096}')
        k(f'ds_read_b128 v[{68+8*w}:{71+8*w}], v57 offset:{w*4096 + 2048}')
    k('s_waitcnt lgkmcnt(0)')
    for e in range(8):
        k(f'v_add_f32 v{64+e}, v{64+e}, v{72+e}')
        k(f'v_add_f32 v{80+e}, v{80+e}, v{88+e}')
    for e in range(8):
        k(f'v_add_f32 v{64+e}, v{64+e}, v{80+e}')
    for e in range(0, 8, 2):
        k(f'v_cvt_pk_bf16_f32 v72, v{64+e}, v{65+e}')
        k(f'v_lshlrev_b32 v{64+e}, 16, v72')
        k(f'v_and_b32 v{65+e}, s72, v72')
    k('s_mov_b32 s40, 0xbfb8aa3b')
    for e in range(4):
        k(f'v_mul_f32 v{72+e}, s40, v{64+e}')
    for e in range(4):
        k(f'v_exp_f32 v{72+e}, v{72+e}')
    for e in range(4):
        k(f'v_add_f32 v{72+e}, 1.0, v{72+e}')
    for e in range(4):
        k(f'v_rcp_f32 v{72+e}, v{72+e}')
    for e in range(4):
        k(f'v_mul_f32 v{64+e}, v{64+e}, v{72+e}')
    for e in range(0, 4, 2):
        k(f'v_cvt_pk_bf16_f32 v72, v{64+e}, v{65+e}')
        k(f'v_lshlrev_b32 v{64+e}, 16, v72')
        k(f'v_and_b32 v{65+e}, s72, v72')
    for e in range(4):
        k(f'v_mul_f32 v{64+e}, v{64+e}, v{68+e}')
    k('v_cvt_pk_bf16_f32 v76, v64, v65')
    k('v_cvt_pk_bf16_f32 v77, v66, v67')
    k('v_and_b32 v58, 15, v1')
    k('v_lshlrev_b32 v58, 6, v58')
    k('v_lshl_add_u32 v58, v61, 3, v58')
    k('s_lshl_b32 s40, s68, 5')
    k('v_add_u32 v58, s40, v58')
    k(f'v_add_u32 v58, {RED}, v58')
    k(f'ds_write_b64 v58, v[76:77] offset:{HB - RED}')
    k.label(f'L_k4l{layer}_skiph')
    k('s_waitcnt lgkmcnt(0)')
    k('s_barrier')
    k('v_and_b32 v58, 15, v1')
    k('v_lshlrev_b32 v59, 6, v58')
    k('v_lshl_add_u32 v59, v61, 4, v59')
    k(f'v_add_u32 v59, {RED}, v59')
    k(f'ds_read_b128 v[32:35], v59 offset:{HB - RED}')
    k('v_bfe_u32 v60, v1, 2, 2')
    k('v_lshl_add_u32 v36, v61, 3, v60')
    k('v_lshlrev_b32 v36, 10, v36')
    k('v_and_b32 v37, 3, v1')
    k('v_lshl_add_u32 v36, v37, 3, v36')
    k(f'v_add_u32 v36, {DOFF}, v36')
    k('v_and_b32 v37, 1, v61')
    k('v_lshl_or_b32 v60, v37, 2, v60')
    k('s_lshl_b32 s40, s68, 8')
    k('v_add_u32 v36, s40, v36')
    for j in range(8):
        k(f'v_xor_b32 v37, {j}, v60')
        k(f'v_lshl_add_u32 v{40+j}, v37, 5, v36')
    for j in range(7):
        k(f'ds_read_b64_tr_b16 v[{64+4*j}:{65+4*j}], v{40+j}')
        k(f'ds_read_b64_tr_b16 v[{66+4*j}:{67+4*j}], v{40+j} offset:4096')
    k('s_waitcnt lgkmcnt(8)')
    k('ds_read_b64_tr_b16 v[92:93], v47')
    k('ds_read_b64_tr_b16 v[94:95], v47 offset:4096')
    srd(k, 36, 4, 5, 56 * 16384, PART_OFF)
    k('v_lshlrev_b32 v38, 11, v58')
    k('v_lshl_add_u32 v38, v61, 4, v38')
    k('s_lshl_b32 s40, s69, 14')
    k('s_lshl_b32 s41, s68, 9')
    k('s_add_u32 s40, s40, s41')
    k('v_add_u32 v38, s40, v38')
    k('s_waitcnt lgkmcnt(0)')
    for j in range(8):
        k(f'v_mfma_f32_16x16x32_bf16 v[{96+4*j}:{99+4*j}], v[{64+4*j}:{67+4*j}], v[32:35], 0')
    k('v_cmp_gt_u32 vcc, 8, v58')
    k('s_and_saveexec_b64 s[48:49], vcc')
    for j in range(8):
        k(f'buffer_store_dwordx4 v[{96+4*j}:{99+4*j}], v38, s[36:39], 0 offen offset:{j*64}')
    k('s_mov_b64 exec, s[48:49]')
    st()
    k('s_waitcnt vmcnt(0)' if DIAG else '')
    st()
    st.flush(4, 5, 4 + layer - 1, 6, 7, 60)
    k(f's_branch L_k4l{layer}_done')
    k.label(f'L_k4l{layer}_ln')
    if layer == 1:
        srd(k, 36, 4, 5, XBYTES, X2_OFF)
    else:
        srd(k, 36, 70, 71, XBYTES)
    k(f's_sub_u32 s40, s2, {NFFN}')
    k('s_lshl_b32 s40, s40, 4')
    k('v_lshrrev_b32 v2, 5, v0')
    k('v_add_u32 v2, s40, v2')
    k('v_lshlrev_b32 v3, 4, v2')
    k('buffer_load_dwordx2 v[14:15], v3, s[24:27], 0 offen')
    k('v_and_b32 v4, 31, v0')
    k('v_lshlrev_b32 v3, 10, v2')
    k('v_lshl_add_u32 v3, v4, 4, v3')
    for s in range(2):
        k(f'buffer_load_dwordx4 v[{32+4*s}:{35+4*s}], v3, s[12:15], 0 offen offset:{s*512}')
    k('s_waitcnt vmcnt(2)')
    ln_scalars(k, 14, 15, 10, 11, 12, 13, 72, 73, 74)
    for s in range(2):
        k('s_waitcnt vmcnt(1)')
        for d in range(4):
            x = 32 + 4 * s + d
            normalize_dword(k, x, 10, 11, 12, 13, 72, 16)
            add_dwords(k, x, 16, 12, 13, 17, 18, 72, 48 + 4 * s + d)
        k(f'buffer_store_dwordx4 v[{48+4*s}:{51+4*s}], v3, s[36:39], 0 offen offset:{s*512} sc1')
    if DIAG == 2:
        st.flush(4, 5, 4 + layer - 1, 6, 7, 60)
    k.label(f'L_k4l{layer}_done')
    k('s_endpgm')
    return k, HB + 1024 + 64


def k5(layer):
    k = Kern(f'k5l{layer}_kernel', nvgpr=64, accum_offset=64, nsgpr=100)
    st = Stamps(k, base=80)
    k('s_cmp_ge_u32 s2, 32')
    k(f's_cbranch_scc1 L_k5l{layer}_done')
    st()
    k('s_load_dwordx2 s[4:5], s[0:1], 80')
    k('s_load_dwordx2 s[70:71], s[0:1], 64')
    k('s_mov_b32 s72, 0xffff0000')
    k('s_mov_b32 s73, 0x3b000000')
    k('s_mov_b32 s74, 0x3727c5ac')
    k('s_lshr_b32 s68, s2, 2')
    k('s_and_b32 s69, s2, 3')
    k('v_and_b32 v1, 31, v0')
    k('v_lshrrev_b32 v2, 5, v0')
    k('v_mul_u32_u24 v3, 114688, v2')
    k('v_lshl_add_u32 v3, v1, 4, v3')
    k('s_lshl_b32 s40, s68, 11')
    k('s_lshl_b32 s41, s69, 9')
    k('s_add_u32 s40, s40, s41')
    k('v_add_u32 v3, s40, v3')
    k('s_waitcnt lgkmcnt(0)')
    srd(k, 36, 4, 5, 56 * 16384, PART_OFF)
    srd(k, 32, 4, 5, SM_SIZE, SM_OFF)
    k('s_lshl_b32 s41, s68, 2')
    k(f's_add_u32 s41, s41, {SEL_REL}')
    k('v_mov_b32 v4, 0')
    k('buffer_load_dword v26, v4, s[32:35], s41 offen')
    for i in range(7):
        k(f's_mov_b32 s40, {i * 16384}')
        k(f'buffer_load_dwordx4 v[{32+4*i}:{35+4*i}], v3, s[36:39], s40 offen')
    srd(k, 12, 4, 5, XBYTES, X1_OFF if layer == 1 else X3_OFF)
    srd(k, 24, 4, 5, 32768, ST_OFF + (layer - 1) * 32768)
    if layer == 1:
        srd(k, 44, 4, 5, XBYTES, X2_OFF)
    else:
        srd(k, 44, 70, 71, XBYTES)
    k('s_waitcnt vmcnt(7)')
    k('v_and_b32 v28, 0x7ff, v26')
    k('v_sub_u32 v28, 2047, v28')
    k('v_lshlrev_b32 v30, 4, v28')
    k('buffer_load_dwordx2 v[14:15], v30, s[24:27], 0 offen')
    k('v_lshlrev_b32 v31, 10, v28')
    k('v_lshl_add_u32 v31, v1, 3, v31')
    k('s_lshl_b32 s41, s69, 8')
    k('v_add_u32 v31, s41, v31')
    k('buffer_load_dwordx2 v[16:17], v31, s[12:15], 0 offen')
    k('s_waitcnt vmcnt(2)')
    for i in range(1, 7):
        for e in range(4):
            k(f'v_add_f32 v{32+e}, v{32+e}, v{32+4*i+e}')
    k('v_lshlrev_b32 v5, 4, v0')
    k('ds_write_b128 v5, v[32:35]')
    k('s_waitcnt lgkmcnt(0)')
    k('s_barrier')
    k('v_cmp_gt_u32 vcc, 32, v0')
    k('s_and_saveexec_b64 s[48:49], vcc')
    k(f's_cbranch_execz L_k5l{layer}_done')
    for g in range(8):
        k(f'ds_read_b128 v[{32+4*g}:{35+4*g}], v5 offset:{g*512}')
    k('s_waitcnt lgkmcnt(0)')
    for g in range(1, 8):
        for e in range(4):
            k(f'v_add_f32 v{32+e}, v{32+e}, v{32+4*g+e}')
    for e in range(0, 4, 2):
        k(f'v_cvt_pk_bf16_f32 v40, v{32+e}, v{33+e}')
        k(f'v_lshlrev_b32 v{32+e}, 16, v40')
        k(f'v_and_b32 v{33+e}, s72, v40')
    k('v_and_b32 v20, s72, v26')
    k('v_ashrrev_i32 v21, 31, v20')
    k('v_not_b32 v21, v21')
    k('v_or_b32 v21, 0x80000000, v21')
    k('v_xor_b32 v20, v20, v21')
    k('v_and_b32 v20, s72, v20')
    k('s_mov_b32 s40, 0xbfb8aa3b')
    k('v_mul_f32 v20, s40, v20')
    k('v_exp_f32 v20, v20')
    k('v_add_f32 v20, 1.0, v20')
    k('v_rcp_f32 v20, v20')
    k('v_cvt_pk_bf16_f32 v20, v20, v20')
    k('v_lshlrev_b32 v20, 16, v20')
    for e in range(4):
        k(f'v_mul_f32 v{32+e}, v{32+e}, v20')
    k('v_cvt_pk_bf16_f32 v44, v32, v33')
    k('v_cvt_pk_bf16_f32 v45, v34, v35')
    k('s_waitcnt vmcnt(0)')
    ln_scalars(k, 14, 15, 10, 11, 12, 13, 72, 73, 74)
    for d in range(2):
        normalize_dword(k, 16 + d, 10, 11, 12, 13, 72, 18)
        add_dwords(k, 18, 44 + d, 12, 13, 19, 22, 72, 18)
        add_dwords(k, 16 + d, 18, 12, 13, 19, 22, 72, 46 + d)
    k('buffer_store_dwordx2 v[46:47], v31, s[44:47], 0 offen')
    if DIAG == 2:
        st.flush(4, 5, 6 + layer - 1, 6, 7, 60)
    k.label(f'L_k5l{layer}_done')
    k('s_endpgm')
    return k, 4096


def build(path, extra_launch=0):
    hdr = open('interleave_layers__sliding_local_dilated__moe_arch_mod__prompt.s.ref').read().split('; Override')[0]
    ks = []
    launches = []
    for layer in (1, 2):
        for fn, grid, blk in ((k1, 256, 512), (k2, 256, 512), (k4, NFFN + NLN, 512), (k5, 32, 256)):
            kk, lds = fn(layer)
            ks.append(kk)
            launches.append(f'; @launch kernel={kk.name} grid=({grid},1,1) block=({blk},1,1) lds={lds}')
    if extra_launch:
        e = Kern('nop_kernel', nvgpr=8, accum_offset=8, nsgpr=16)
        e('s_endpgm')
        ks.append(e)
        for i in range(extra_launch):
            launches.append('; @launch kernel=nop_kernel grid=(256,1,1) block=(256,1,1) lds=0')
    out = hdr + '\n'.join(launches) + '\n.amdgcn_target "amdgcn-amd-amdhsa--gfx950"\n.text\n'
    for kk in ks:
        out += kk.text()
    out += '.section .rodata,"a"\n'
    for kk in ks:
        out += kk.desc()
    open(path, 'w').write(out)


if __name__ == '__main__':
    path = sys.argv[1] if len(sys.argv) > 1 else 'interleave_layers__sliding_local_dilated__moe_arch_mod__prompt.s'
    if len(sys.argv) > 3:
        DIAG = int(sys.argv[3])
    build(path, int(sys.argv[2]) if len(sys.argv) > 2 else 0)
```

```python
import sys
sys.path.insert(0, 'gen')
from asmlib import Kern

MB = 1 << 20
O_OFF = 0
X1_OFF = 2 * MB
X2_OFF = 4 * MB
X3_OFF = 6 * MB
ST_OFF = 8 * MB
SM_OFF = 8 * MB + 65536
H_REL = 0
SEL_REL = 32768
SM_SIZE = 65536

XBYTES = 2048 * 512 * 2
NPF = 64


def srd(k, d, lo, hi, size, add=0):
    if add:
        k(f's_add_u32 s{d}, s{lo}, {add}')
        k(f's_addc_u32 s{d+1}, s{hi}, 0')
        k(f's_and_b32 s{d+1}, s{d+1}, 0xffff')
    else:
        k(f's_mov_b32 s{d}, s{lo}')
        k(f's_and_b32 s{d+1}, s{hi}, 0xffff')
    k(f's_mov_b32 s{d+2}, {size}')
    k(f's_mov_b32 s{d+3}, 0x00020000')


DIAG = False
DBG_OFF = 16 * MB


class Stamps:
    def __init__(self, k, base=64):
        self.k = k
        self.n = 0
        self.base = base

    def __call__(self):
        if DIAG == 2:
            if self.n == 0:
                self.rt()
            return
        if DIAG:
            b = self.base + 2 * self.n
            self.k(f's_memtime s[{b}:{b+1}]')
            self.n += 1

    def rt(self):
        if DIAG:
            b = self.base + 2 * self.n
            self.k(f's_memrealtime s[{b}:{b+1}]')
            self.n += 1

    def flush(self, ws_lo, ws_hi, slot, vt0, vt1, sd):
        if not DIAG:
            return
        k = self.k
        n_save = self.n
        if DIAG == 2:
            k('s_waitcnt vmcnt(0)')
            self.rt()
        k('s_waitcnt lgkmcnt(0)')
        srd(k, sd, ws_lo, ws_hi, 1 << 20, DBG_OFF + slot * (1 << 18))
        k(f'v_mov_b32 v{vt0}, 0')
        for i in range(self.n):
            k(f'v_writelane_b32 v{vt0}, s{self.base + 2*i}, {i}')
        k(f'v_lshrrev_b32 v{vt1}, 6, v0')
        k(f's_lshl_b32 s{self.base}, s2, 3')
        k(f'v_add_u32 v{vt1}, s{self.base}, v{vt1}')
        k(f'v_lshlrev_b32 v{vt1}, 6, v{vt1}')
        k(f'v_and_b32 v{vt0+1 if False else vt1+1}, 63, v0')
        k(f'v_lshl_add_u32 v{vt1}, v{vt1+1}, 2, v{vt1}')
        k(f'v_cmp_gt_u32 vcc, 16, v{vt1+1}')
        k('s_and_b64 exec, exec, vcc')
        k(f'buffer_store_dword v{vt0}, v{vt1}, s[{sd}:{sd+3}], 0 offen')
        self.n = n_save


def xrow_reduce(k, v, tmp):
    k(f'v_mov_b32 v{tmp}, v{v}')
    k(f'v_permlane16_swap_b32 v{v}, v{tmp}')
    k(f'v_add_f32 v{v}, v{v}, v{tmp}')
    k(f'v_mov_b32 v{tmp}, v{v}')
    k(f'v_permlane32_swap_b32 v{v}, v{tmp}')
    k(f'v_add_f32 v{v}, v{v}, v{tmp}')


def ln_scalars(k, s1, s2, m, rinv, t1, t2, s_mask, s_inv512, s_eps):
    k(f'v_mul_f32 v{t1}, s{s_inv512}, v{s1}')
    k(f'v_mul_f32 v{t2}, s{s_inv512}, v{s2}')
    k(f'v_fma_f32 v{t2}, -v{t1}, v{t1}, v{t2}')
    k(f'v_max_f32 v{t2}, 0, v{t2}')
    k(f'v_cvt_pk_bf16_f32 v{t1}, v{t1}, v{t2}')
    k(f'v_lshlrev_b32 v{m}, 16, v{t1}')
    k(f'v_and_b32 v{t2}, s{s_mask}, v{t1}')
    k(f'v_add_f32 v{t2}, s{s_eps}, v{t2}')
    k(f'v_cvt_pk_bf16_f32 v{t2}, v{t2}, v{t2}')
    k(f'v_lshlrev_b32 v{t2}, 16, v{t2}')
    k(f'v_sqrt_f32 v{t2}, v{t2}')
    k(f'v_cvt_pk_bf16_f32 v{t2}, v{t2}, v{t2}')
    k(f'v_lshlrev_b32 v{t2}, 16, v{t2}')
    k(f'v_rcp_f32 v{rinv}, v{t2}')


def k1(layer):
    k = Kern(f'k1l{layer}_kernel', nvgpr=200, accum_offset=200, nsgpr=100)
    st = Stamps(k)
    SLOT = 34816
    WOFF = 10240
    STAT = 0
    QKVA = 1024
    ROWB = 112
    ACC = lambda sg, t: 16 + (sg * 5 + t) * 4
    CS = lambda sg: 76 + 4 * sg
    XFB = lambda b, t: 88 + b * 24 + t * 4
    WFB = lambda b, sg: 136 + b * 12 + sg * 4
    ONES = 160
    k('s_cmp_ge_u32 s2, 256')
    k(f's_cbranch_scc1 L_k1l{layer}_done')
    st()
    k(f's_load_dwordx2 s[4:5], s[0:1], {0 if layer == 1 else 80}')
    k('s_load_dwordx2 s[6:7], s[0:1], 8')
    k('s_load_dwordx2 s[8:9], s[0:1], 80')
    k('s_and_b32 s28, s2, 7')
    k('s_lshr_b32 s29, s2, 3')
    k('s_lshr_b32 s30, s28, 1')
    k('s_lshl_b32 s30, s30, 3')
    k('s_lshr_b32 s31, s29, 2')
    k('s_add_u32 s30, s30, s31')
    k('s_and_b32 s28, s28, 1')
    k('s_lshl_b32 s28, s28, 2')
    k('s_and_b32 s29, s29, 3')
    k('s_add_u32 s29, s28, s29')
    k('s_lshl_b32 s31, s30, 6')
    k('v_and_b32 v1, 63, v0')
    k('v_lshrrev_b32 v2, 6, v0')
    k('v_readfirstlane_b32 s30, v2')
    k('v_lshrrev_b32 v10, 3, v1')
    k('v_and_b32 v11, 7, v1')
    k('v_lshrrev_b32 v12, 4, v1')
    k('s_cmp_lt_u32 s30, 4')
    k(f's_cbranch_scc1 L_k1l{layer}_comp')
    k('s_sub_u32 s30, s30, 4')
    k('s_lshl_b32 s34, s30, 4')
    k('s_add_u32 s34, s34, s31')
    k('v_add_u32 v13, s34, v10')
    k('v_lshlrev_b32 v13, 10, v13')
    k('v_xor_b32 v14, v11, v12')
    k('v_lshl_add_u32 v2, v14, 4, v13')
    k('v_xor_b32 v14, 4, v14')
    k('v_lshl_add_u32 v3, v14, 4, v13')
    k('v_add_u32 v3, 8192, v3')
    k('s_lshl_b32 s34, s30, 2')
    k('s_add_u32 s34, s34, s31')
    k('s_sub_u32 s34, s34, 16')
    k('v_add_u32 v13, s34, v10')
    k('v_lshlrev_b32 v13, 10, v13')
    k('s_lshl_b32 s34, s30, 1')
    k('v_add_u32 v14, s34, v12')
    k('v_and_b32 v14, 7, v14')
    k('v_xor_b32 v14, v11, v14')
    k('v_lshl_add_u32 v4, v14, 4, v13')
    k('v_bfe_u32 v13, v10, 1, 1')
    k('s_and_b32 s34, s30, 1')
    k('s_lshl_b32 s34, s34, 1')
    k('v_or_b32 v13, s34, v13')
    k('v_lshrrev_b32 v14, 1, v11')
    k('v_xor_b32 v13, v13, v14')
    k('v_mul_u32_u24 v5, 3072, v10')
    k('v_lshl_add_u32 v5, v13, 5, v5')
    k('v_and_b32 v14, 1, v11')
    k('v_lshl_add_u32 v5, v14, 4, v5')
    k('s_lshl_b32 s34, s29, 7')
    k('v_add_u32 v5, s34, v5')
    k('s_mul_i32 s32, s30, 24576')
    k('s_lshl_b32 s33, s30, 10')
    k('s_lshl_b32 s35, s30, 11')
    k('s_add_u32 s35, s35, 2048')
    k('s_lshl_b32 s36, s30, 9')
    k('s_waitcnt lgkmcnt(0)')
    srd(k, 12, 4, 5, XBYTES, 0 if layer == 1 else X2_OFF)
    srd(k, 16, 6, 7, 512 * 1536 * 2)
    k('s_mov_b64 s[56:57], 0xffffffff')

    def issue_chunk(c):
        sb = (c % 4) * SLOT
        k(f's_mov_b32 s37, {c * 128}')
        k(f's_add_u32 m0, s35, {sb}')
        k('buffer_load_dwordx4 v2, s[12:15], s37 offen lds')
        k(f's_add_u32 m0, s35, {sb + 1024}')
        k('buffer_load_dwordx4 v3, s[12:15], s37 offen lds')
        k(f's_add_u32 m0, s36, {sb}')
        k('s_mov_b64 exec, s[56:57]')
        k('buffer_load_dwordx4 v4, s[12:15], s37 offen lds')
        k('s_mov_b64 exec, -1')
        for sg in range(3):
            for i in range(2):
                k(f's_add_u32 s34, s32, {(c * 64 + 32 * i) * 3072 + sg * 1024}')
                k(f's_add_u32 m0, s33, {sb + WOFF + sg * 8192 + i * 4096}')
                k('buffer_load_dwordx4 v5, s[16:19], s34 offen lds')

    issue_chunk(0)
    issue_chunk(1)
    if layer == 1:
        srd(k, 24, 8, 9, 65536, ST_OFF)
    k('v_lshlrev_b32 v6, 5, v1')
    k('v_add_u32 v6, s35, v6')
    k('v_and_b32 v7, 31, v1')
    k('v_lshlrev_b32 v7, 4, v7')
    k('v_add_u32 v7, s36, v7')
    for v in range(120, 128):
        k(f'v_mov_b32 v{v}, 0')
    k('s_mov_b32 s52, 0xffff0000')
    k('s_mov_b32 s53, 0x3b000000')
    k('s_mov_b32 s54, 0x3727c5ac')
    for c in range(8):
        k(f's_waitcnt vmcnt({9 if c < 7 else 0})')
        k('s_barrier')
        sl = c % 4
        if sl == 2:
            k(f'v_add_u32 v6, {2 * SLOT}, v6')
            k(f'v_add_u32 v7, {2 * SLOT}, v7')
        if sl == 0 and c > 0:
            k(f'v_subrev_u32 v6, {2 * SLOT}, v6')
            k(f'v_subrev_u32 v7, {2 * SLOT}, v7')
        so = (sl & 1) * SLOT
        k(f'ds_read_b128 v[100:103], v6 offset:{so}')
        k(f'ds_read_b128 v[104:107], v6 offset:{so + 16}')
        k(f'ds_read_b128 v[108:111], v7 offset:{so}')
        if c + 2 <= 7:
            issue_chunk(c + 2)
        k('s_waitcnt lgkmcnt(0)')
        for d in range(12):
            acc = 120 if d < 8 else 124
            k(f'v_lshlrev_b32 v112, 16, v{100+d}')
            k(f'v_and_b32 v113, s52, v{100+d}')
            k(f'v_add_f32 v{acc}, v{acc}, v112')
            k(f'v_add_f32 v{acc+1}, v{acc+1}, v113')
            k(f'v_fma_f32 v{acc+2}, v112, v112, v{acc+2}')
            k(f'v_fma_f32 v{acc+3}, v113, v113, v{acc+3}')
    k('v_add_f32 v120, v120, v121')
    k('v_add_f32 v121, v122, v123')
    k('v_add_f32 v122, v124, v125')
    k('v_add_f32 v123, v126, v127')
    for v in range(120, 124):
        k(f'v_add_f32_dpp v{v}, v{v}, v{v} quad_perm:[1,0,3,2] row_mask:0xf bank_mask:0xf')
    for v in range(120, 124):
        k(f'v_add_f32_dpp v{v}, v{v}, v{v} quad_perm:[2,3,0,1] row_mask:0xf bank_mask:0xf')
    for v in range(122, 124):
        k(f'v_add_f32_dpp v{v}, v{v}, v{v} row_half_mirror row_mask:0xf bank_mask:0xf')
    ln_scalars(k, 120, 121, 124, 125, 112, 113, 52, 53, 54)
    ln_scalars(k, 122, 123, 126, 127, 114, 115, 52, 53, 54)
    k('v_lshrrev_b32 v112, 2, v1')
    k('v_lshlrev_b32 v112, 3, v112')
    k('s_lshl_b32 s34, s30, 7')
    k('v_add_u32 v112, s34, v112')
    k(f'ds_write_b64 v112, v[124:125] offset:{STAT}')
    k('v_bfe_u32 v112, v1, 3, 2')
    k('v_lshlrev_b32 v112, 3, v112')
    k('s_lshl_b32 s34, s30, 5')
    k('v_add_u32 v112, s34, v112')
    k(f'ds_write_b64 v112, v[126:127] offset:{STAT + 512}')
    if layer == 1:
        k('s_cmp_lg_u32 s30, 0')
        k(f's_cbranch_scc1 L_k1l{layer}_nz')
        k('v_mov_b32 v100, 0')
        k('v_mov_b32 v101, 0')
        k('v_mov_b32 v102, 0')
        k('v_mov_b32 v103, 0')
        k('s_lshl_b32 s34, s2, 8')
        k('v_lshlrev_b32 v104, 4, v1')
        k('v_add_u32 v104, s34, v104')
        k('v_cmp_gt_u32 vcc, 16, v1')
        k('s_and_saveexec_b64 s[58:59], vcc')
        k('buffer_store_dwordx4 v[100:103], v104, s[24:27], 0 offen')
        k('s_mov_b64 exec, s[58:59]')
        k.label(f'L_k1l{layer}_nz')
    srd(k, 20, 8, 9, XBYTES, O_OFF)
    k('s_waitcnt lgkmcnt(0)')
    k('s_barrier')
    if layer == 1:
        k('s_load_dwordx2 s[60:61], s[0:1], 16')
        k('s_load_dwordx4 s[64:67], s[0:1], 40')
        k('s_load_dwordx2 s[62:63], s[0:1], 56')
        k('s_and_b32 s84, s2, 7')
        k('s_lshr_b32 s85, s2, 3')
        k('v_lshrrev_b32 v20, 5, v1')
        k('v_mul_u32_u24 v20, 3584, v20')
        k('v_and_b32 v21, 31, v1')
        k('v_lshl_add_u32 v20, v21, 4, v20')
        k('v_lshlrev_b32 v21, 4, v1')
        k('s_mul_i32 s34, s84, 448')
        k('s_lshl_b32 s37, s85, 4')
        k('s_lshl_b32 s38, s30, 2')
        k('s_add_u32 s37, s37, s38')
        k('s_mul_i32 s37, s37, 3584')
        k('s_add_u32 s34, s34, s37')
        k('s_waitcnt lgkmcnt(0)')
        srd(k, 68, 64, 65, 512 * 1792 * 2)
        srd(k, 72, 66, 67, 512 * 1792 * 2)
        srd(k, 76, 62, 63, 1792 * 512 * 2)
        srd(k, 80, 60, 61, 512 * 512 * 2)
        k('s_lshl_b32 s37, s85, 4')
        k('s_add_u32 s37, s37, s38')
        k('s_lshl_b32 s37, s37, 10')
        for i in range(4):
            k(f'buffer_load_dwordx4 v[{154+4*i}:{157+4*i}], v21, s[80:83], s37 offen offset:{i*1024}')
        for i in range(2):
            k(f's_add_u32 s37, s34, {2 * i * 3584}')
            k(f'buffer_load_dwordx4 v[{130+8*i}:{133+8*i}], v20, s[68:71], s37 offen')
            k(f'buffer_load_dwordx4 v[{134+8*i}:{137+8*i}], v20, s[72:75], s37 offen')
        k('s_mul_i32 s34, s84, 224')
        k('s_mul_i32 s37, s85, 7')
        k('s_add_u32 s34, s34, s37')
        k('s_add_u32 s34, s34, s30')
        k('s_lshl_b32 s34, s34, 10')
        k('buffer_load_dwordx4 v[146:149], v21, s[76:79], s34 offen')
        k('s_add_u32 s34, s34, 4096')
        k('buffer_load_dwordx4 v[150:153], v21, s[76:79], s34 offen')
    k('s_add_u32 s30, s30, 4')
    k(f's_branch L_k1l{layer}_attn')
    k.label(f'L_k1l{layer}_comp')
    k('s_lshl_b32 s35, s30, 11')
    k('s_add_u32 s35, s35, 2048')
    k('s_waitcnt lgkmcnt(0)')
    srd(k, 20, 8, 9, XBYTES, O_OFF)
    st()
    k('v_and_b32 v10, 15, v1')
    k('v_lshrrev_b32 v13, 1, v10')
    k('v_xor_b32 v13, v13, v12')
    k('v_lshlrev_b32 v6, 7, v10')
    k('v_lshl_add_u32 v6, v13, 4, v6')
    k('v_xor_b32 v7, 64, v6')
    k('v_add_u32 v8, s35, v6')
    k('v_add_u32 v9, s35, v7')
    k('v_bfe_u32 v13, v1, 2, 2')
    k('v_lshl_add_u32 v14, v12, 3, v13')
    k('v_lshlrev_b32 v164, 7, v14')
    k('v_lshrrev_b32 v13, 1, v13')
    k('v_and_b32 v14, 1, v12')
    k('v_lshl_or_b32 v13, v14, 1, v13')
    k('v_xor_b32 v13, s30, v13')
    k('v_lshl_add_u32 v164, v13, 5, v164')
    k('v_and_b32 v14, 3, v1')
    k('v_lshl_add_u32 v164, v14, 3, v164')
    k(f'v_add_u32 v164, {WOFF}, v164')
    for (d, sreg) in ((165, 6), (166, 7), (167, 8), (168, 9), (169, 164)):
        k(f'v_add_u32 v{d}, {2 * SLOT}, v{sreg}')
    for v in range(16, 88):
        k(f'v_mov_b32 v{v}, 0')
    for v in range(ONES, ONES + 4):
        k(f'v_mov_b32 v{v}, 0x3f803f80')
    for v in range(170, 174):
        k(f'v_mov_b32 v{v}, 0')

    def fread(s):
        c, q, b = s // 2, s & 1, s & 1
        slot = c % 4
        hi = slot >= 2
        so = (slot & 1) * SLOT
        xb = (166 if q else 165) if hi else (7 if q else 6)
        sbase = (168 if q else 167) if hi else (9 if q else 8)
        wb = 169 if hi else 164
        for sg in range(3):
            o = so + sg * 8192 + q * 4096
            k(f'ds_read_b64_tr_b16 v[{WFB(b,sg)}:{WFB(b,sg)+1}], v{wb} offset:{o}')
            k(f'ds_read_b64_tr_b16 v[{WFB(b,sg)+2}:{WFB(b,sg)+3}], v{wb} offset:{o+512}')
        for t in range(4):
            k(f'ds_read_b128 v[{XFB(b,t)}:{XFB(b,t)+3}], v{xb} offset:{so + 2048 + t * 2048}')
        k(f'ds_read_b128 v[{XFB(b,4)}:{XFB(b,4)+3}], v{xb} offset:{so}')

    k('s_barrier')
    st()
    fread(0)
    for s in range(16):
        c, q, b = s // 2, s & 1, s & 1
        k('s_waitcnt lgkmcnt(0)')
        if q == 1 and c < 7:
            if c in (1, 3, 5): st()
            k('s_barrier')
            if c in (1, 3, 5): st()
        if s < 15:
            fread(s + 1)
        for sg in range(3):
            w = WFB(b, sg)
            for t in range(5):
                if sg == 0 and t == 4:
                    continue
                a = ACC(sg, t)
                k(f'v_mfma_f32_16x16x32_bf16 v[{a}:{a+3}], v[{w}:{w+3}], v[{XFB(b,t)}:{XFB(b,t)+3}], v[{a}:{a+3}]')
            a = CS(sg)
            k(f'v_mfma_f32_16x16x32_bf16 v[{a}:{a+3}], v[{w}:{w+3}], v[{ONES}:{ONES+3}], v[{a}:{a+3}]')
    st()
    k('s_mov_b32 s52, 0xffff0000')
    k('s_mov_b32 s53, 0x3b000000')
    k('s_mov_b32 s54, 0x3727c5ac')
    k('v_lshlrev_b32 v13, 3, v10')
    k('s_barrier')
    for t in range(5):
        k(f'ds_read_b64 v[{90+2*t}:{91+2*t}], v13 offset:{STAT + t * 128}')
    k(f'v_mul_u32_u24 v14, {ROWB}, v10')
    k('v_lshl_add_u32 v14, v12, 3, v14')
    k('s_mul_i32 s34, s30, 8960')
    k('v_add_u32 v14, s34, v14')
    k('s_waitcnt lgkmcnt(0)')
    for sg in range(3):
        for t in range(5):
            if sg == 0 and t == 4:
                continue
            a = ACC(sg, t)
            m, ri = (90 + 2 * t, 91 + 2 * t)
            for r in (0, 2):
                k(f'v_pk_fma_f32 v[{a+r}:{a+r+1}], v[{m}:{m+1}], v[{CS(sg)+r}:{CS(sg)+r+1}], v[{a+r}:{a+r+1}] op_sel_hi:[0,1,1] neg_lo:[1,0,0] neg_hi:[1,0,0]')
            for r in (0, 2):
                k(f'v_pk_mul_f32 v[{a+r}:{a+r+1}], v[{a+r}:{a+r+1}], v[{m}:{m+1}] op_sel:[0,1] op_sel_hi:[1,1]')
            k(f'v_cvt_pk_bf16_f32 v{a}, v{a}, v{a+1}')
            k(f'v_cvt_pk_bf16_f32 v{a+1}, v{a+2}, v{a+3}')
            rowoff = 0 if t == 4 else (16 + 16 * t) * ROWB
            k(f'ds_write_b64 v14, v[{a}:{a+1}] offset:{QKVA + rowoff + sg * 32}')
    st()
    k.label(f'L_k1l{layer}_attn')
    k('s_waitcnt lgkmcnt(0)')
    k('s_barrier')
    k('s_lshr_b32 s34, s30, 2')
    k('s_lshl_b32 s34, s34, 5')
    k('v_and_b32 v2, 31, v1')
    k('v_add_u32 v2, s34, v2')
    k('v_lshrrev_b32 v8, 5, v1')
    k('v_add_u32 v3, s31, v2')
    k('v_lshlrev_b32 v9, 3, v8')
    k('v_sub_u32 v7, v3, v9')
    k('v_sub_u32 v4, v2, v9')
    k('v_add_u32 v4, 10, v4')
    k(f'v_mul_u32_u24 v4, {ROWB}, v4')
    k('s_and_b32 s36, s30, 3')
    k('s_mul_i32 s34, s36, 8960')
    k('v_add_u32 v4, s34, v4')
    k('v_add_u32 v6, 16, v2')
    k(f'v_mul_u32_u24 v6, {ROWB}, v6')
    k('v_add_u32 v6, s34, v6')
    Q = 16
    KK = lambda i: 24 + 8 * i
    VV = lambda i: 56 + 8 * i
    k(f'ds_read_b128 v[{Q}:{Q+3}], v6 offset:{QKVA}')
    k(f'ds_read_b128 v[{Q+4}:{Q+7}], v6 offset:{QKVA + 16}')
    for i in range(4):
        o = QKVA + (6 - 2 * i) * ROWB + 32
        k(f'ds_read_b128 v[{KK(i)}:{KK(i)+3}], v4 offset:{o}')
        k(f'ds_read_b128 v[{KK(i)+4}:{KK(i)+7}], v4 offset:{o+16}')
    for i in range(2):
        o = QKVA + (6 - 2 * i) * ROWB + 64
        k(f'ds_read_b128 v[{VV(i)}:{VV(i)+3}], v4 offset:{o}')
        k(f'ds_read_b128 v[{VV(i)+4}:{VV(i)+7}], v4 offset:{o+16}')
    k('s_waitcnt lgkmcnt(4)')
    for i in range(2, 4):
        o = QKVA + (6 - 2 * i) * ROWB + 64
        k(f'ds_read_b128 v[{VV(i)}:{VV(i)+3}], v4 offset:{o}')
        k(f'ds_read_b128 v[{VV(i)+4}:{VV(i)+7}], v4 offset:{o+16}')
    L = 88
    P = 92
    for j in range(8):
        for i in range(4):
            src2 = '0' if j == 0 else f'v{L+i}'
            k(f'v_dot2_f32_bf16 v{L+i}, v{Q+j}, v{KK(i)+j}, {src2}')
    for i in range(0, 4, 2):
        k(f'v_cvt_pk_bf16_f32 v{P+i//2}, v{L+i}, v{L+i+1}')
    for i in range(0, 4, 2):
        k(f'v_lshlrev_b32 v{L+i}, 16, v{P+i//2}')
        k(f'v_and_b32 v{L+i+1}, s52, v{P+i//2}')
    k('v_mov_b32 v94, 0xcf6e6b28')
    for i in range(4):
        k(f'v_cmp_le_i32 vcc, {2*i}, v7')
        k(f'v_cndmask_b32 v{L+i}, v94, v{L+i}, vcc')
    k(f'v_max3_f32 v95, v{L}, v{L+1}, v{L+2}')
    k(f'v_max_f32 v95, v95, v{L+3}')
    k('v_mov_b32 v96, v95')
    k('v_permlane32_swap_b32 v95, v96')
    k('v_max_f32 v95, v95, v96')
    k('s_mov_b32 s34, 0x3eb8aa3b')
    for i in range(4):
        k(f'v_sub_f32 v{L+i}, v{L+i}, v95')
    for i in range(4):
        k(f'v_mul_f32 v{L+i}, s34, v{L+i}')
    for i in range(4):
        k(f'v_exp_f32 v{L+i}, v{L+i}')
    k(f'v_add_f32 v95, v{L}, v{L+1}')
    k(f'v_add_f32 v96, v{L+2}, v{L+3}')
    k('v_add_f32 v95, v95, v96')
    k('v_mov_b32 v96, v95')
    k('v_permlane32_swap_b32 v95, v96')
    k('v_add_f32 v95, v95, v96')
    k('v_rcp_f32 v95, v95')
    for i in range(4):
        k(f'v_mul_f32 v{L+i}, v{L+i}, v95')
    for i in range(0, 4, 2):
        k(f'v_cvt_pk_bf16_f32 v{P+i//2}, v{L+i}, v{L+i+1}')
    k('s_mov_b32 s38, 0x05040100')
    k('s_mov_b32 s37, 0x07060302')
    k('s_waitcnt lgkmcnt(0)')
    OO = 24
    for wp in range(2):
        a_, b_ = 2 * wp, 2 * wp + 1
        for j in range(8):
            k(f'v_perm_b32 v{40+2*j}, v{VV(b_)+j}, v{VV(a_)+j}, s38')
            k(f'v_perm_b32 v{41+2*j}, v{VV(b_)+j}, v{VV(a_)+j}, s37')
        for j in range(16):
            src2 = '0' if wp == 0 else f'v{OO+j}'
            k(f'v_dot2_f32_bf16 v{OO+j}, v{40+j}, v{P+wp}, {src2}')
    for d in range(8):
        k(f'v_permlane32_swap_b32 v{OO+d}, v{OO+8+d}')
    for d in range(8):
        k(f'v_add_f32 v{OO+d}, v{OO+d}, v{OO+8+d}')
    for j in range(4):
        k(f'v_cvt_pk_bf16_f32 v{56+j}, v{OO+2*j}, v{OO+2*j+1}')
    k('v_lshlrev_b32 v5, 10, v3')
    k('v_lshl_add_u32 v5, v8, 4, v5')
    k('s_lshl_b32 s34, s29, 7')
    k('s_lshl_b32 s36, s36, 5')
    k('s_add_u32 s34, s34, s36')
    k('v_add_u32 v5, s34, v5')
    k('buffer_store_dwordx4 v[56:59], v5, s[20:23], 0 offen')
    st()
    k('s_waitcnt vmcnt(0)' if DIAG else '')
    st()
    st.flush(8, 9, layer - 1, 6, 7, 60)
    k.label(f'L_k1l{layer}_done')
    k('s_endpgm')
    return k, 4 * SLOT


def k2(layer):
    k = Kern(f'k2l{layer}_kernel', nvgpr=128, accum_offset=128, nsgpr=100)
    st = Stamps(k)
    CH = 16384
    ACC = lambda j: 12 + 4 * j
    RES = lambda j: 44 + 2 * j
    WR = lambda j: 52 + 2 * j
    WF = lambda b, j: 64 + b * 20 + 4 * j
    OF = lambda b: 64 + b * 20 + 16
    k('s_cmp_ge_u32 s2, 256')
    k(f's_cbranch_scc1 L_k2l{layer}_done')
    st()
    k(f's_load_dwordx2 s[4:5], s[0:1], {0 if layer == 1 else 80}')
    k('s_load_dwordx2 s[6:7], s[0:1], 16')
    k('s_load_dwordx2 s[8:9], s[0:1], 80')
    k('s_load_dwordx2 s[10:11], s[0:1], 32')
    k('s_and_b32 s36, s2, 7')
    k('s_lshr_b32 s37, s2, 3')
    k('s_lshl_b32 s36, s36, 2')
    k('s_lshr_b32 s38, s37, 3')
    k('s_add_u32 s36, s36, s38')
    k('s_and_b32 s37, s37, 7')
    k('s_lshl_b32 s36, s36, 6')
    k('s_lshl_b32 s41, s37, 7')
    k('v_and_b32 v1, 63, v0')
    k('v_lshrrev_b32 v2, 6, v0')
    k('v_readfirstlane_b32 s39, v2')
    k('v_lshrrev_b32 v10, 3, v1')
    k('v_and_b32 v11, 7, v1')
    k('v_lshrrev_b32 v61, 4, v1')
    k('s_lshl_b32 s40, s39, 4')
    k('s_add_u32 s40, s40, s36')
    k('s_cmp_lt_u32 s39, 4')
    k(f's_cbranch_scc1 L_k2l{layer}_comp')
    k('s_sub_u32 s39, s39, 4')
    k('s_sub_u32 s40, s40, 64')
    k('v_add_u32 v4, s40, v10')
    k('v_lshlrev_b32 v4, 10, v4')
    k('v_xor_b32 v5, v11, v61')
    k('v_lshl_add_u32 v2, v5, 4, v4')
    k('v_xor_b32 v5, 4, v5')
    k('v_lshl_add_u32 v3, v5, 4, v4')
    k('v_add_u32 v3, 8192, v3')
    k('v_bfe_u32 v4, v10, 1, 1')
    k('s_and_b32 s42, s39, 1')
    k('s_lshl_b32 s42, s42, 1')
    k('v_or_b32 v4, s42, v4')
    k('v_lshrrev_b32 v5, 1, v11')
    k('v_xor_b32 v4, v4, v5')
    k('v_lshlrev_b32 v6, 10, v10')
    k('v_lshl_add_u32 v6, v4, 5, v6')
    k('v_and_b32 v5, 1, v11')
    k('v_lshl_add_u32 v6, v5, 4, v6')
    k('v_add_u32 v6, s41, v6')
    k('s_lshl_b32 s43, s39, 13')
    k('s_lshl_b32 s44, s39, 10')
    k('s_lshl_b32 s45, s39, 11')
    k('s_waitcnt lgkmcnt(0)')
    srd(k, 12, 8, 9, XBYTES, O_OFF)
    srd(k, 16, 6, 7, 512 * 512 * 2)

    def issue2(c):
        k(f's_mov_b32 s46, {c * 128}')
        k(f's_add_u32 m0, s45, {c * CH}')
        k('buffer_load_dwordx4 v2, s[12:15], s46 offen lds')
        k(f's_add_u32 m0, s45, {c * CH + 1024}')
        k('buffer_load_dwordx4 v3, s[12:15], s46 offen lds')
        for i in range(2):
            k(f's_add_u32 s47, s43, {(c * 64 + 32 * i) * 1024}')
            k(f's_add_u32 m0, s44, {c * CH + 8192 + i * 4096}')
            k('buffer_load_dwordx4 v6, s[16:19], s47 offen lds')
    LA = 3
    for c in range(LA):
        issue2(c)
    issued = LA
    for c in range(8):
        k(f's_waitcnt vmcnt({(issued - (c + 1)) * 4})')
        k('s_barrier')
        if issued < 8:
            issue2(issued)
            issued += 1
    k('s_endpgm')
    k.label(f'L_k2l{layer}_comp')
    k('s_lshl_b32 s45, s39, 11')
    k('s_waitcnt lgkmcnt(0)')
    st()
    srd(k, 20, 4, 5, XBYTES, 0 if layer == 1 else X2_OFF)
    srd(k, 24, 8, 9, XBYTES, X1_OFF if layer == 1 else X3_OFF)
    srd(k, 28, 8, 9, 32768, ST_OFF + (layer - 1) * 32768)
    srd(k, 32, 10, 11, 1024)
    k('v_and_b32 v60, 15, v1')
    k('v_add_u32 v62, s40, v60')
    k('v_lshlrev_b32 v9, 10, v62')
    k('v_lshl_add_u32 v9, v61, 3, v9')
    k('v_add_u32 v9, s41, v9')
    k('v_lshlrev_b32 v10, 3, v61')
    k('v_add_u32 v10, s41, v10')
    for j in range(4):
        k(f'buffer_load_dwordx2 v[{RES(j)}:{RES(j)+1}], v9, s[20:23], 0 offen offset:{j*32}')
    for j in range(4):
        k(f'buffer_load_dwordx2 v[{WR(j)}:{WR(j)+1}], v10, s[32:35], 0 offen offset:{j*32}')
    k('v_lshrrev_b32 v4, 1, v60')
    k('v_xor_b32 v4, v4, v61')
    k('v_lshlrev_b32 v2, 7, v60')
    k('v_lshl_add_u32 v2, v4, 4, v2')
    k('v_add_u32 v2, s45, v2')
    k('v_xor_b32 v3, 64, v2')
    k('v_bfe_u32 v8, v1, 2, 2')
    k('v_lshl_add_u32 v11, v61, 3, v8')
    k('v_lshlrev_b32 v11, 7, v11')
    k('v_and_b32 v5, 3, v1')
    k('v_lshl_add_u32 v11, v5, 3, v11')
    k('v_add_u32 v11, 8192, v11')
    k('v_lshrrev_b32 v8, 1, v8')
    k('v_and_b32 v5, 1, v61')
    k('v_lshl_or_b32 v8, v5, 1, v8')
    for j in range(4):
        k(f'v_xor_b32 v{4+j}, {j}, v8')
        k(f'v_lshl_add_u32 v{4+j}, v{4+j}, 5, v11')
    for i in range(6):
        k(f'v_add_u32 v{28+i}, 65536, v{2+i}')
    for v in range(12, 28):
        k(f'v_mov_b32 v{v}, 0')

    def fread(s):
        c, q, b = s // 2, s & 1, s & 1
        hi = c >= 4
        co = (c & 3) * CH
        base = 28 if hi else 2
        for j in range(4):
            k(f'ds_read_b64_tr_b16 v[{WF(b,j)}:{WF(b,j)+1}], v{base+2+j} offset:{co + q*4096}')
            k(f'ds_read_b64_tr_b16 v[{WF(b,j)+2}:{WF(b,j)+3}], v{base+2+j} offset:{co + q*4096 + 512}')
        k(f'ds_read_b128 v[{OF(b)}:{OF(b)+3}], v{base+q} offset:{co}')

    k('s_barrier')
    st()
    fread(0)
    for s in range(16):
        c, q, b = s // 2, s & 1, s & 1
        if q == 1 and c < 7:
            k('s_barrier')
        k('s_waitcnt lgkmcnt(0)')
        if s < 15:
            fread(s + 1)
        for j in range(4):
            k(f'v_mfma_f32_16x16x32_bf16 v[{ACC(j)}:{ACC(j)+3}], v[{WF(b,j)}:{WF(b,j)+3}], v[{OF(b)}:{OF(b)+3}], v[{ACC(j)}:{ACC(j)+3}]')
    st()
    k('s_mov_b32 s46, 0xffff0000')
    k('v_mov_b32 v63, 0x3f803f80')
    k('v_mov_b32 v108, 0')
    k('v_mov_b32 v109, 0')
    k('v_mov_b32 v110, 0')
    k('s_waitcnt vmcnt(0)')
    for j in range(4):
        for h in range(2):
            a = ACC(j) + 2 * h
            o = 112 + 2 * j + h
            k(f'v_cvt_pk_bf16_f32 v120, v{a}, v{a+1}')
            k('v_lshlrev_b32 v121, 16, v120')
            k('v_and_b32 v122, s46, v120')
            k(f'v_lshlrev_b32 v123, 16, v{RES(j)+h}')
            k(f'v_and_b32 v124, s46, v{RES(j)+h}')
            k('v_add_f32 v121, v121, v123')
            k('v_add_f32 v122, v122, v124')
            k(f'v_cvt_pk_bf16_f32 v{o}, v121, v122')
            k(f'v_dot2c_f32_bf16 v108, v{o}, v63')
            k(f'v_dot2c_f32_bf16 v109, v{o}, v{o}')
            k(f'v_dot2c_f32_bf16 v110, v{o}, v{WR(j)+h}')
        k(f'buffer_store_dwordx2 v[{112+2*j}:{113+2*j}], v9, s[24:27], 0 offen offset:{j*32}')
    for v in range(108, 111):
        xrow_reduce(k, v, 125 + v - 108)
    k('v_mov_b32 v111, 0')
    k('v_cmp_eq_u32 vcc, 1, v61')
    k('v_cndmask_b32 v108, v108, v109, vcc')
    k('v_cmp_eq_u32 vcc, 2, v61')
    k('v_cndmask_b32 v108, v108, v110, vcc')
    k('v_cmp_eq_u32 vcc, 3, v61')
    k('v_cndmask_b32 v108, v108, v111, vcc')
    k('v_lshlrev_b32 v120, 4, v62')
    k('v_lshl_add_u32 v120, v61, 2, v120')
    k('buffer_atomic_add_f32 v108, v120, s[28:31], 0 offen')
    st()
    k('s_waitcnt vmcnt(0)' if DIAG else '')
    st()
    st.flush(8, 9, 2 + layer - 1, 6, 7, 60)
    k.label(f'L_k2l{layer}_done')
    k('s_endpgm')
    return k, 131072


def normalize_dword(k, x, m, rinv, t0, t1, s_mask, out):
    k(f'v_lshlrev_b32 v{t0}, 16, v{x}')
    k(f'v_and_b32 v{t1}, s{s_mask}, v{x}')
    k(f'v_sub_f32 v{t0}, v{t0}, v{m}')
    k(f'v_sub_f32 v{t1}, v{t1}, v{m}')
    k(f'v_cvt_pk_bf16_f32 v{t0}, v{t0}, v{t1}')
    k(f'v_and_b32 v{t1}, s{s_mask}, v{t0}')
    k(f'v_lshlrev_b32 v{t0}, 16, v{t0}')
    k(f'v_mul_f32 v{t0}, v{t0}, v{rinv}')
    k(f'v_mul_f32 v{t1}, v{t1}, v{rinv}')
    k(f'v_cvt_pk_bf16_f32 v{out}, v{t0}, v{t1}')


def add_dwords(k, a, b, t0, t1, t2, t3, s_mask, out):
    k(f'v_lshlrev_b32 v{t0}, 16, v{a}')
    k(f'v_and_b32 v{t1}, s{s_mask}, v{a}')
    k(f'v_lshlrev_b32 v{t2}, 16, v{b}')
    k(f'v_and_b32 v{t3}, s{s_mask}, v{b}')
    k(f'v_add_f32 v{t0}, v{t0}, v{t2}')
    k(f'v_add_f32 v{t1}, v{t1}, v{t3}')
    k(f'v_cvt_pk_bf16_f32 v{out}, v{t0}, v{t1}')


def dpp_max_reduce(k, src, t):
    k(f'v_max_u32_dpp v{t}, v{src}, v{src} quad_perm:[1,0,3,2] row_mask:0xf bank_mask:0xf')
    k(f'v_max_u32_dpp v{t}, v{t}, v{t} quad_perm:[2,3,0,1] row_mask:0xf bank_mask:0xf')
    k(f'v_max_u32_dpp v{t}, v{t}, v{t} row_half_mirror row_mask:0xf bank_mask:0xf')
    k(f'v_max_u32_dpp v{t}, v{t}, v{t} row_mirror row_mask:0xf bank_mask:0xf')
    k(f'v_max_u32_dpp v{t}, v{t}, v{t} row_bcast:15 row_mask:0xa bank_mask:0xf')
    k(f'v_max_u32_dpp v{t}, v{t}, v{t} row_bcast:31 row_mask:0xc bank_mask:0xf')


NFFN = 56
NLN = 128
PART_OFF = 9 * MB


def k4(layer):
    k = Kern(f'k4l{layer}_kernel', nvgpr=128, accum_offset=128, nsgpr=100)
    st = Stamps(k, base=80)
    GOFF, UOFF, DOFF, RED = 0, 32768, 65536, 98304
    CAND = RED + 16384
    HB = CAND + 128
    CNT = HB + 1024
    k(f's_cmp_ge_u32 s2, {NFFN + NLN}')
    k(f's_cbranch_scc1 L_k4l{layer}_done')
    st()
    k('s_load_dwordx2 s[4:5], s[0:1], 80')
    k('s_load_dwordx2 s[6:7], s[0:1], 40')
    k('s_load_dwordx2 s[8:9], s[0:1], 48')
    k('s_load_dwordx2 s[10:11], s[0:1], 32')
    k('s_load_dwordx2 s[70:71], s[0:1], 64')
    k('s_load_dwordx2 s[66:67], s[0:1], 56')
    k('v_and_b32 v1, 63, v0')
    k('v_lshrrev_b32 v2, 6, v0')
    k('v_readfirstlane_b32 s68, v2')
    k('s_mov_b32 s72, 0xffff0000')
    k('s_mov_b32 s73, 0x3b000000')
    k('s_mov_b32 s74, 0x3727c5ac')
    k('v_lshlrev_b32 v3, 4, v0')
    k('s_waitcnt lgkmcnt(0)')
    srd(k, 12, 4, 5, XBYTES, X1_OFF if layer == 1 else X3_OFF)
    srd(k, 24, 4, 5, 32768, ST_OFF + (layer - 1) * 32768)
    k(f's_cmp_ge_u32 s2, {NFFN}')
    k(f's_cbranch_scc1 L_k4l{layer}_ln')
    k('s_and_b32 s69, s2, 7')
    k('s_mul_i32 s69, s69, 7')
    k('s_lshr_b32 s75, s2, 3')
    k('s_add_u32 s69, s69, s75')
    k('s_cmp_lt_u32 s68, 4')
    k(f's_cbranch_scc1 L_k4l{layer}_comp')
    k('s_sub_u32 s68, s68, 4')
    srd(k, 16, 6, 7, 512 * 1792 * 2)
    srd(k, 20, 8, 9, 512 * 1792 * 2)
    srd(k, 44, 66, 67, 1792 * 512 * 2)
    k('s_barrier')
    k('v_lshrrev_b32 v5, 2, v1')
    k('v_mul_u32_u24 v6, 3584, v5')
    k('v_lshrrev_b32 v7, 5, v1')
    k('v_lshlrev_b32 v7, 1, v7')
    k('v_and_b32 v8, 3, v1')
    k('v_xor_b32 v7, v7, v8')
    k('v_lshl_add_u32 v6, v7, 4, v6')
    k('s_lshl_b32 s75, s69, 6')
    k('v_add_u32 v6, s75, v6')
    k('s_mul_i32 s76, s68, 458752')
    k('s_lshl_b32 s77, s68, 13')
    for mat in range(2):
        for i in range(8):
            k(f's_add_u32 s40, s76, {16 * i * 3584}')
            k(f's_add_u32 m0, s77, {mat * 32768 + i * 1024}')
            k(f'buffer_load_dwordx4 v6, s[{16+4*mat}:{19+4*mat}], s40 offen lds')
    k('v_lshrrev_b32 v7, 1, v1')
    k('v_and_b32 v8, 1, v1')
    k('s_lshl_b32 s78, s69, 15')
    k('s_lshl_b32 s79, s68, 13')
    k('s_add_u32 s78, s78, s79')
    for i in range(8):
        k('s_and_b32 s40, s68, 1')
        k('s_lshl_b32 s40, s40, 2')
        k(f's_or_b32 s40, s40, {i & 3}')
        k('v_xor_b32 v9, s40, v7')
        k('v_lshlrev_b32 v9, 5, v9')
        k('v_lshl_add_u32 v9, v8, 4, v9')
        k(f's_add_u32 s41, s78, {i * 1024}')
        k(f's_add_u32 m0, s79, {DOFF + i * 1024}')
        k('buffer_load_dwordx4 v9, s[44:47], s41 offen lds')
    k('s_waitcnt vmcnt(0)')
    k('s_barrier')
    k('s_endpgm')
    k.label(f'L_k4l{layer}_comp')
    for i in range(8):
        k(f's_mov_b32 s40, {4096 * i}')
        k(f'buffer_load_dwordx4 v[{32+4*i}:{35+4*i}], v3, s[24:27], s40 offen')
    srd(k, 28, 10, 11, 1024)
    k('v_lshlrev_b32 v4, 4, v1')
    k('buffer_load_dwordx4 v[64:67], v4, s[28:31], 0 offen')
    srd(k, 32, 4, 5, SM_SIZE, SM_OFF)
    k('s_lshl_b32 s77, s68, 13')
    k(f'v_mov_b32 v5, {CNT}')
    k('v_mov_b32 v6, 0')
    k('ds_write_b32 v5, v6')
    k('s_waitcnt lgkmcnt(0)')
    k('s_barrier')
    st()
    k('v_mov_b32 v8, 0x3f803f80')
    k('v_mov_b32 v9, 0')
    k('s_waitcnt vmcnt(0)')
    st()
    for d in range(4):
        k(f'v_dot2c_f32_bf16 v9, v{64+d}, v8')
    k('v_add_f32_dpp v9, v9, v9 quad_perm:[1,0,3,2] row_mask:0xf bank_mask:0xf')
    k('v_add_f32_dpp v9, v9, v9 quad_perm:[2,3,0,1] row_mask:0xf bank_mask:0xf')
    k('v_add_f32_dpp v9, v9, v9 row_half_mirror row_mask:0xf bank_mask:0xf')
    k('v_add_f32_dpp v9, v9, v9 row_mirror row_mask:0xf bank_mask:0xf')
    xrow_reduce(k, 9, 10)
    R = [32 + 4 * i for i in range(8)]
    steps = [
        lambda b: f'v_mul_f32 v{b}, s73, v{b}',
        lambda b: f'v_mul_f32 v{b+1}, s73, v{b+1}',
        lambda b: f'v_fma_f32 v{b+1}, -v{b}, v{b}, v{b+1}',
        lambda b: f'v_max_f32 v{b+1}, 0, v{b+1}',
        lambda b: f'v_cvt_pk_bf16_f32 v{b+3}, v{b}, v{b+1}',
        lambda b: f'v_lshlrev_b32 v{b}, 16, v{b+3}',
        lambda b: f'v_and_b32 v{b+1}, s72, v{b+3}',
        lambda b: f'v_add_f32 v{b+1}, s74, v{b+1}',
        lambda b: f'v_cvt_pk_bf16_f32 v{b+1}, v{b+1}, v{b+1}',
        lambda b: f'v_lshlrev_b32 v{b+1}, 16, v{b+1}',
        lambda b: f'v_sqrt_f32 v{b+1}, v{b+1}',
        lambda b: f'v_cvt_pk_bf16_f32 v{b+1}, v{b+1}, v{b+1}',
        lambda b: f'v_lshlrev_b32 v{b+1}, 16, v{b+1}',
        lambda b: f'v_rcp_f32 v{b+1}, v{b+1}',
        lambda b: f'v_fma_f32 v{b+2}, -v{b}, v9, v{b+2}',
        lambda b: f'v_mul_f32 v{b+2}, v{b+2}, v{b+1}',
        lambda b: f'v_cvt_pk_bf16_f32 v{b+2}, v{b+2}, v{b+2}',
        lambda b: f'v_lshlrev_b32 v{b+2}, 16, v{b+2}',
        lambda b: f'v_ashrrev_i32 v{b+3}, 31, v{b+2}',
        lambda b: f'v_or_b32 v{b+3}, 0x80000000, v{b+3}',
        lambda b: f'v_xor_b32 v{b+2}, v{b+2}, v{b+3}',
        lambda b: f'v_sub_u32 v{b+3}, {2047 - 256 * ((b - 32) // 4)}, v0',
        lambda b: f'v_and_or_b32 v{16 + (b - 32) // 4}, v{b+2}, s72, v{b+3}',
    ]
    for stp in steps:
        for b in R:
            k(stp(b))
    regs = list(range(16, 24))
    spare = 24
    net = [(0, 1), (2, 3), (4, 5), (6, 7), (0, 2), (1, 3), (4, 6), (5, 7), (1, 2), (5, 6), (0, 4), (3, 7),
           (1, 5), (2, 6), (1, 4), (3, 6), (2, 4), (3, 5), (3, 4)]
    for (a, b) in net:
        k(f'v_max_u32 v{spare}, v{regs[a]}, v{regs[b]}')
        k(f'v_min_u32 v{regs[b]}, v{regs[a]}, v{regs[b]}')
        regs[a], spare = spare, regs[a]
    k('v_mov_b32 v26, 0')
    st()
    for n in range(8):
        dpp_max_reduce(k, regs[0], 25)
        k(f'v_readlane_b32 s{50+n}, v25, 63')
        k(f'v_writelane_b32 v26, s{50+n}, {n}')
        if n < 7:
            k(f'v_cmp_eq_u32 vcc, s{50+n}, v{regs[0]}')
            for i in range(7 - n):
                k(f'v_cndmask_b32 v{regs[i]}, v{regs[i]}, v{regs[i+1]}, vcc')
    k('s_lshl_b32 s40, s68, 5')
    k('v_lshlrev_b32 v27, 2, v1')
    k('v_add_u32 v27, s40, v27')
    k(f'v_add_u32 v27, {RED}, v27')
    k('v_cmp_gt_u32 vcc, 8, v1')
    k('s_and_saveexec_b64 s[48:49], vcc')
    k(f'ds_write_b32 v27, v26 offset:{CAND - RED}')
    k('s_mov_b64 exec, 1')
    k('v_mov_b32 v6, 1')
    k('ds_add_u32 v5, v6')
    k('s_mov_b64 exec, s[48:49]')
    k.label(f'L_k4l{layer}_poll')
    k('ds_read_b32 v6, v5')
    k('s_waitcnt lgkmcnt(0)')
    k('v_readfirstlane_b32 s40, v6')
    k('s_cmp_lt_u32 s40, 4')
    k(f's_cbranch_scc1 L_k4l{layer}_poll')
    k('v_and_b32 v27, 31, v1')
    k('v_lshlrev_b32 v27, 2, v27')
    k(f'v_add_u32 v27, {RED}, v27')
    k(f'ds_read_b32 v28, v27 offset:{CAND - RED}')
    k('v_mov_b32 v26, 0')
    k('s_waitcnt lgkmcnt(0)')
    st()
    for n in range(8):
        dpp_max_reduce(k, 28, 25)
        k(f'v_readlane_b32 s{58+n}, v25, 63')
        k(f'v_writelane_b32 v26, s{58+n}, {n}')
        if n < 7:
            k(f'v_cmp_eq_u32 vcc, s{58+n}, v28')
            k('v_cndmask_b32 v28, v28, 0, vcc')
    st()
    k('v_and_b32 v27, 7, v1')
    k('v_lshlrev_b32 v27, 2, v27')
    k('ds_bpermute_b32 v28, v27, v26')
    k('v_lshrrev_b32 v61, 4, v1')
    k('s_or_b32 s40, s2, s68')
    k('s_cmp_lg_u32 s40, 0')
    k(f's_cbranch_scc1 L_k4l{layer}_nokeys')
    k('v_lshlrev_b32 v27, 2, v1')
    k('v_cmp_gt_u32 vcc, 8, v1')
    k('s_and_saveexec_b64 s[48:49], vcc')
    k(f's_mov_b32 s40, {SEL_REL}')
    k('buffer_store_dword v26, v27, s[32:35], s40 offen')
    k('s_mov_b64 exec, s[48:49]')
    k.label(f'L_k4l{layer}_nokeys')
    k('s_waitcnt lgkmcnt(0)')
    k('v_and_b32 v28, 0x7ff, v28')
    k('v_sub_u32 v28, 2047, v28')
    k('v_lshlrev_b32 v29, 10, v28')
    k('v_lshl_add_u32 v29, v61, 4, v29')
    k('s_lshl_b32 s40, s68, 8')
    k('v_lshlrev_b32 v30, 4, v28')
    k('buffer_load_dwordx2 v[14:15], v30, s[24:27], 0 offen')
    for s in range(4):
        k(f'buffer_load_dwordx4 v[{32+4*s}:{35+4*s}], v29, s[12:15], s40 offen offset:{s*64}')
    k('v_bfe_u32 v62, v1, 2, 2')
    k('v_lshl_add_u32 v62, v61, 3, v62')
    k('v_lshlrev_b32 v62, 6, v62')
    k('v_and_b32 v63, 1, v61')
    k('v_lshl_add_u32 v62, v63, 5, v62')
    k('v_and_b32 v63, 3, v1')
    k('v_lshl_add_u32 v62, v63, 3, v62')
    k('v_add_u32 v62, s77, v62')
    k('v_xor_b32 v63, 32, v62')
    k('s_barrier')
    st()
    FR = lambda mat, tl, s: 64 + ((mat * 2 + tl) * 4 + s) * 4
    cnt = 0
    for s in range(4):
        for mat in range(2):
            for tl in range(2):
                b = FR(mat, tl, s)
                if cnt >= 12:
                    k('s_waitcnt lgkmcnt(10)')
                k(f'ds_read_b64_tr_b16 v[{b}:{b+1}], v{62+tl} offset:{mat*32768 + s*2048}')
                k(f'ds_read_b64_tr_b16 v[{b+2}:{b+3}], v{62+tl} offset:{mat*32768 + s*2048 + 256}')
                cnt += 2
    k('s_waitcnt vmcnt(4)')
    ln_scalars(k, 14, 15, 10, 11, 12, 13, 72, 73, 74)
    k('s_waitcnt vmcnt(0)')
    for d in range(16):
        normalize_dword(k, 32 + d, 10, 11, 12, 13, 72, 32 + d)
    for v in range(48, 64):
        if v not in (61,):
            pass
    AC = lambda mat, tl: 16 + (mat * 2 + tl) * 4
    for v in range(16, 32):
        k(f'v_mov_b32 v{v}, 0')
    k('s_waitcnt lgkmcnt(0)')
    for s in range(4):
        for mat in range(2):
            for tl in range(2):
                b = FR(mat, tl, s)
                a = AC(mat, tl)
                k(f'v_mfma_f32_16x16x32_bf16 v[{a}:{a+3}], v[{b}:{b+3}], v[{32+4*s}:{35+4*s}], v[{a}:{a+3}]')
    st()
    k('v_bfe_u32 v60, v1, 2, 2')
    k('v_lshl_add_u32 v36, v61, 3, v60')
    k('v_lshlrev_b32 v36, 10, v36')
    k('v_and_b32 v37, 3, v1')
    k('v_lshl_add_u32 v36, v37, 3, v36')
    k(f'v_add_u32 v36, {DOFF}, v36')
    k('v_and_b32 v37, 1, v61')
    k('v_lshl_or_b32 v60, v37, 2, v60')
    k('s_lshl_b32 s40, s68, 8')
    k('v_add_u32 v36, s40, v36')
    for j in range(8):
        k(f'v_xor_b32 v37, {j}, v60')
        k(f'v_lshl_add_u32 v{40+j}, v37, 5, v36')
    for j in range(7):
        k(f'ds_read_b64_tr_b16 v[{96+4*j}:{97+4*j}], v{40+j}')
        k(f'ds_read_b64_tr_b16 v[{98+4*j}:{99+4*j}], v{40+j} offset:4096')
    k('s_waitcnt lgkmcnt(8)')
    k('ds_read_b64_tr_b16 v[124:125], v47')
    k('ds_read_b64_tr_b16 v[126:127], v47 offset:4096')
    k('s_lshl_b32 s40, s68, 12')
    k('v_lshlrev_b32 v56, 4, v1')
    k(f'v_add_u32 v56, {RED}, v56')
    k('v_add_u32 v57, s40, v56')
    for q in range(4):
        k(f'ds_write_b128 v57, v[{16+4*q}:{19+4*q}] offset:{q*1024}')
    k('s_waitcnt lgkmcnt(0)')
    k('s_barrier')
    k('s_cmp_ge_u32 s68, 2')
    k(f's_cbranch_scc1 L_k4l{layer}_skiph')
    k('s_lshl_b32 s40, s68, 10')
    k('v_add_u32 v57, s40, v56')
    for w in range(4):
        k(f'ds_read_b128 v[{64+8*w}:{67+8*w}], v57 offset:{w*4096}')
        k(f'ds_read_b128 v[{68+8*w}:{71+8*w}], v57 offset:{w*4096 + 2048}')
    k('s_waitcnt lgkmcnt(0)')
    for e in range(8):
        k(f'v_add_f32 v{64+e}, v{64+e}, v{72+e}')
        k(f'v_add_f32 v{80+e}, v{80+e}, v{88+e}')
    for e in range(8):
        k(f'v_add_f32 v{64+e}, v{64+e}, v{80+e}')
    for e in range(0, 8, 2):
        k(f'v_cvt_pk_bf16_f32 v72, v{64+e}, v{65+e}')
        k(f'v_lshlrev_b32 v{64+e}, 16, v72')
        k(f'v_and_b32 v{65+e}, s72, v72')
    k('s_mov_b32 s40, 0xbfb8aa3b')
    for e in range(4):
        k(f'v_mul_f32 v{72+e}, s40, v{64+e}')
    for e in range(4):
        k(f'v_exp_f32 v{72+e}, v{72+e}')
    for e in range(4):
        k(f'v_add_f32 v{72+e}, 1.0, v{72+e}')
    for e in range(4):
        k(f'v_rcp_f32 v{72+e}, v{72+e}')
    for e in range(4):
        k(f'v_mul_f32 v{64+e}, v{64+e}, v{72+e}')
    for e in range(0, 4, 2):
        k(f'v_cvt_pk_bf16_f32 v72, v{64+e}, v{65+e}')
        k(f'v_lshlrev_b32 v{64+e}, 16, v72')
        k(f'v_and_b32 v{65+e}, s72, v72')
    for e in range(4):
        k(f'v_mul_f32 v{64+e}, v{64+e}, v{68+e}')
    k('v_cvt_pk_bf16_f32 v76, v64, v65')
    k('v_cvt_pk_bf16_f32 v77, v66, v67')
    k('v_and_b32 v58, 15, v1')
    k('v_lshlrev_b32 v58, 6, v58')
    k('v_lshl_add_u32 v58, v61, 3, v58')
    k('s_lshl_b32 s40, s68, 5')
    k('v_add_u32 v58, s40, v58')
    k(f'v_add_u32 v58, {RED}, v58')
    k(f'ds_write_b64 v58, v[76:77] offset:{HB - RED}')
    k.label(f'L_k4l{layer}_skiph')
    k('s_waitcnt lgkmcnt(0)')
    k('s_barrier')
    k('v_and_b32 v58, 15, v1')
    k('v_lshlrev_b32 v59, 6, v58')
    k('v_lshl_add_u32 v59, v61, 4, v59')
    k(f'v_add_u32 v59, {RED}, v59')
    k(f'ds_read_b128 v[32:35], v59 offset:{HB - RED}')
    srd(k, 36, 4, 5, 56 * 16384, PART_OFF)
    k('v_lshlrev_b32 v38, 11, v58')
    k('v_lshl_add_u32 v38, v61, 4, v38')
    k('s_lshl_b32 s40, s69, 14')
    k('s_lshl_b32 s41, s68, 9')
    k('s_add_u32 s40, s40, s41')
    k('v_add_u32 v38, s40, v38')
    k('s_waitcnt lgkmcnt(0)')
    for j in range(8):
        k(f'v_mfma_f32_16x16x32_bf16 v[{64+4*j}:{67+4*j}], v[{96+4*j}:{99+4*j}], v[32:35], 0')
    k('v_cmp_gt_u32 vcc, 8, v58')
    k('s_and_saveexec_b64 s[48:49], vcc')
    for j in range(8):
        k(f'buffer_store_dwordx4 v[{64+4*j}:{67+4*j}], v38, s[36:39], 0 offen offset:{j*64}')
    k('s_mov_b64 exec, s[48:49]')
    st()
    k('s_waitcnt vmcnt(0)' if DIAG else '')
    st()
    st.flush(4, 5, 4 + layer - 1, 6, 7, 60)
    k(f's_branch L_k4l{layer}_done')
    k.label(f'L_k4l{layer}_ln')
    if layer == 1:
        srd(k, 36, 4, 5, XBYTES, X2_OFF)
    else:
        srd(k, 36, 70, 71, XBYTES)
    k(f's_sub_u32 s40, s2, {NFFN}')
    k('s_lshl_b32 s40, s40, 4')
    k('v_lshrrev_b32 v2, 5, v0')
    k('v_add_u32 v2, s40, v2')
    k('v_lshlrev_b32 v3, 4, v2')
    k('buffer_load_dwordx2 v[14:15], v3, s[24:27], 0 offen')
    k('v_and_b32 v4, 31, v0')
    k('v_lshlrev_b32 v3, 10, v2')
    k('v_lshl_add_u32 v3, v4, 4, v3')
    for s in range(2):
        k(f'buffer_load_dwordx4 v[{32+4*s}:{35+4*s}], v3, s[12:15], 0 offen offset:{s*512}')
    k('s_waitcnt vmcnt(2)')
    ln_scalars(k, 14, 15, 10, 11, 12, 13, 72, 73, 74)
    for s in range(2):
        k('s_waitcnt vmcnt(1)')
        for d in range(4):
            x = 32 + 4 * s + d
            normalize_dword(k, x, 10, 11, 12, 13, 72, 16)
            add_dwords(k, x, 16, 12, 13, 17, 18, 72, 48 + 4 * s + d)
        k(f'buffer_store_dwordx4 v[{48+4*s}:{51+4*s}], v3, s[36:39], 0 offen offset:{s*512}')
    if DIAG == 2:
        st.flush(4, 5, 4 + layer - 1, 6, 7, 60)
    k.label(f'L_k4l{layer}_done')
    k('s_endpgm')
    return k, HB + 1024 + 64


def k5(layer):
    k = Kern(f'k5l{layer}_kernel', nvgpr=64, accum_offset=64, nsgpr=100)
    st = Stamps(k, base=80)
    k('s_cmp_ge_u32 s2, 32')
    k(f's_cbranch_scc1 L_k5l{layer}_done')
    st()
    k('s_load_dwordx2 s[4:5], s[0:1], 80')
    k('s_load_dwordx2 s[70:71], s[0:1], 64')
    k('s_mov_b32 s72, 0xffff0000')
    k('s_mov_b32 s73, 0x3b000000')
    k('s_mov_b32 s74, 0x3727c5ac')
    k('s_lshr_b32 s68, s2, 2')
    k('s_and_b32 s69, s2, 3')
    k('v_and_b32 v1, 31, v0')
    k('v_lshrrev_b32 v2, 5, v0')
    k('v_mul_u32_u24 v3, 114688, v2')
    k('v_lshl_add_u32 v3, v1, 4, v3')
    k('s_lshl_b32 s40, s68, 11')
    k('s_lshl_b32 s41, s69, 9')
    k('s_add_u32 s40, s40, s41')
    k('v_add_u32 v3, s40, v3')
    k('s_waitcnt lgkmcnt(0)')
    srd(k, 36, 4, 5, 56 * 16384, PART_OFF)
    srd(k, 32, 4, 5, SM_SIZE, SM_OFF)
    k('s_lshl_b32 s41, s68, 2')
    k(f's_add_u32 s41, s41, {SEL_REL}')
    k('v_mov_b32 v4, 0')
    k('buffer_load_dword v26, v4, s[32:35], s41 offen')
    for i in range(7):
        k(f's_mov_b32 s40, {i * 16384}')
        k(f'buffer_load_dwordx4 v[{32+4*i}:{35+4*i}], v3, s[36:39], s40 offen')
    srd(k, 12, 4, 5, XBYTES, X1_OFF if layer == 1 else X3_OFF)
    srd(k, 24, 4, 5, 32768, ST_OFF + (layer - 1) * 32768)
    if layer == 1:
        srd(k, 44, 4, 5, XBYTES, X2_OFF)
    else:
        srd(k, 44, 70, 71, XBYTES)
    k('s_waitcnt vmcnt(7)')
    k('v_and_b32 v28, 0x7ff, v26')
    k('v_sub_u32 v28, 2047, v28')
    k('v_lshlrev_b32 v30, 4, v28')
    k('buffer_load_dwordx2 v[14:15], v30, s[24:27], 0 offen')
    k('v_lshlrev_b32 v31, 10, v28')
    k('v_lshl_add_u32 v31, v1, 3, v31')
    k('s_lshl_b32 s41, s69, 8')
    k('v_add_u32 v31, s41, v31')
    k('buffer_load_dwordx2 v[16:17], v31, s[12:15], 0 offen')
    k('s_waitcnt vmcnt(2)')
    for i in range(1, 7):
        for e in range(4):
            k(f'v_add_f32 v{32+e}, v{32+e}, v{32+4*i+e}')
    k('v_lshlrev_b32 v5, 4, v0')
    k('ds_write_b128 v5, v[32:35]')
    k('s_waitcnt lgkmcnt(0)')
    k('s_barrier')
    k('v_cmp_gt_u32 vcc, 32, v0')
    k('s_and_saveexec_b64 s[48:49], vcc')
    k(f's_cbranch_execz L_k5l{layer}_done')
    for g in range(8):
        k(f'ds_read_b128 v[{32+4*g}:{35+4*g}], v5 offset:{g*512}')
    k('s_waitcnt lgkmcnt(0)')
    for g in range(1, 8):
        for e in range(4):
            k(f'v_add_f32 v{32+e}, v{32+e}, v{32+4*g+e}')
    for e in range(0, 4, 2):
        k(f'v_cvt_pk_bf16_f32 v40, v{32+e}, v{33+e}')
        k(f'v_lshlrev_b32 v{32+e}, 16, v40')
        k(f'v_and_b32 v{33+e}, s72, v40')
    k('v_and_b32 v20, s72, v26')
    k('v_ashrrev_i32 v21, 31, v20')
    k('v_not_b32 v21, v21')
    k('v_or_b32 v21, 0x80000000, v21')
    k('v_xor_b32 v20, v20, v21')
    k('v_and_b32 v20, s72, v20')
    k('s_mov_b32 s40, 0xbfb8aa3b')
    k('v_mul_f32 v20, s40, v20')
    k('v_exp_f32 v20, v20')
    k('v_add_f32 v20, 1.0, v20')
    k('v_rcp_f32 v20, v20')
    k('v_cvt_pk_bf16_f32 v20, v20, v20')
    k('v_lshlrev_b32 v20, 16, v20')
    for e in range(4):
        k(f'v_mul_f32 v{32+e}, v{32+e}, v20')
    k('v_cvt_pk_bf16_f32 v44, v32, v33')
    k('v_cvt_pk_bf16_f32 v45, v34, v35')
    k('s_waitcnt vmcnt(0)')
    ln_scalars(k, 14, 15, 10, 11, 12, 13, 72, 73, 74)
    for d in range(2):
        normalize_dword(k, 16 + d, 10, 11, 12, 13, 72, 18)
        add_dwords(k, 18, 44 + d, 12, 13, 19, 22, 72, 18)
        add_dwords(k, 16 + d, 18, 12, 13, 19, 22, 72, 46 + d)
    k('buffer_store_dwordx2 v[46:47], v31, s[44:47], 0 offen')
    if DIAG == 2:
        st.flush(4, 5, 6 + layer - 1, 6, 7, 60)
    k.label(f'L_k5l{layer}_done')
    k('s_endpgm')
    return k, 4096


def build(path, extra_launch=0):
    hdr = open('interleave_layers__sliding_local_dilated__moe_arch_mod__prompt.s.ref').read().split('; Override')[0]
    ks = []
    launches = []
    for layer in (1, 2):
        for fn, grid, blk in ((k1, 256, 512), (k2, 256, 512), (k4, NFFN + NLN, 512), (k5, 32, 256)):
            kk, lds = fn(layer)
            ks.append(kk)
            launches.append(f'; @launch kernel={kk.name} grid=({grid},1,1) block=({blk},1,1) lds={lds}')
    if extra_launch:
        e = Kern('nop_kernel', nvgpr=8, accum_offset=8, nsgpr=16)
        e('s_endpgm')
        ks.append(e)
        for i in range(extra_launch):
            launches.append('; @launch kernel=nop_kernel grid=(256,1,1) block=(256,1,1) lds=0')
    out = hdr + '\n'.join(launches) + '\n.amdgcn_target "amdgcn-amd-amdhsa--gfx950"\n.text\n'
    for kk in ks:
        out += kk.text()
    out += '.section .rodata,"a"\n'
    for kk in ks:
        out += kk.desc()
    open(path, 'w').write(out)


if __name__ == '__main__':
    path = sys.argv[1] if len(sys.argv) > 1 else 'interleave_layers__sliding_local_dilated__moe_arch_mod__prompt.s'
    if len(sys.argv) > 3:
        DIAG = int(sys.argv[3])
    build(path, int(sys.argv[2]) if len(sys.argv) > 2 else 0)
```

```python
import sys
sys.path.insert(0, 'gen')
from asmlib import Kern

MB = 1 << 20
O_OFF = 0
X1_OFF = 2 * MB
X2_OFF = 4 * MB
X3_OFF = 6 * MB
ST_OFF = 8 * MB
SM_OFF = 8 * MB + 65536
H_REL = 0
SEL_REL = 32768
SM_SIZE = 65536

XBYTES = 2048 * 512 * 2
NPF = 64


def srd(k, d, lo, hi, size, add=0):
    if add:
        k(f's_add_u32 s{d}, s{lo}, {add}')
        k(f's_addc_u32 s{d+1}, s{hi}, 0')
        k(f's_and_b32 s{d+1}, s{d+1}, 0xffff')
    else:
        k(f's_mov_b32 s{d}, s{lo}')
        k(f's_and_b32 s{d+1}, s{hi}, 0xffff')
    k(f's_mov_b32 s{d+2}, {size}')
    k(f's_mov_b32 s{d+3}, 0x00020000')


DIAG = False
DBG_OFF = 16 * MB


class Stamps:
    def __init__(self, k, base=64):
        self.k = k
        self.n = 0
        self.base = base

    def __call__(self):
        if DIAG == 2:
            if self.n == 0:
                self.rt()
            return
        if DIAG:
            b = self.base + 2 * self.n
            self.k(f's_memtime s[{b}:{b+1}]')
            self.n += 1

    def rt(self):
        if DIAG:
            b = self.base + 2 * self.n
            self.k(f's_memrealtime s[{b}:{b+1}]')
            self.n += 1

    def flush(self, ws_lo, ws_hi, slot, vt0, vt1, sd):
        if not DIAG:
            return
        k = self.k
        n_save = self.n
        if DIAG == 2:
            k('s_waitcnt vmcnt(0)')
            self.rt()
        k('s_waitcnt lgkmcnt(0)')
        srd(k, sd, ws_lo, ws_hi, 1 << 20, DBG_OFF + slot * (1 << 18))
        k(f'v_mov_b32 v{vt0}, 0')
        for i in range(self.n):
            k(f'v_writelane_b32 v{vt0}, s{self.base + 2*i}, {i}')
        k(f'v_lshrrev_b32 v{vt1}, 6, v0')
        k(f's_lshl_b32 s{self.base}, s2, 3')
        k(f'v_add_u32 v{vt1}, s{self.base}, v{vt1}')
        k(f'v_lshlrev_b32 v{vt1}, 6, v{vt1}')
        k(f'v_and_b32 v{vt0+1 if False else vt1+1}, 63, v0')
        k(f'v_lshl_add_u32 v{vt1}, v{vt1+1}, 2, v{vt1}')
        k(f'v_cmp_gt_u32 vcc, 16, v{vt1+1}')
        k('s_and_b64 exec, exec, vcc')
        k(f'buffer_store_dword v{vt0}, v{vt1}, s[{sd}:{sd+3}], 0 offen')
        self.n = n_save


def xrow_reduce(k, v, tmp):
    k(f'v_mov_b32 v{tmp}, v{v}')
    k(f'v_permlane16_swap_b32 v{v}, v{tmp}')
    k(f'v_add_f32 v{v}, v{v}, v{tmp}')
    k(f'v_mov_b32 v{tmp}, v{v}')
    k(f'v_permlane32_swap_b32 v{v}, v{tmp}')
    k(f'v_add_f32 v{v}, v{v}, v{tmp}')


def ln_scalars(k, s1, s2, m, rinv, t1, t2, s_mask, s_inv512, s_eps):
    k(f'v_mul_f32 v{t1}, s{s_inv512}, v{s1}')
    k(f'v_mul_f32 v{t2}, s{s_inv512}, v{s2}')
    k(f'v_fma_f32 v{t2}, -v{t1}, v{t1}, v{t2}')
    k(f'v_max_f32 v{t2}, 0, v{t2}')
    k(f'v_cvt_pk_bf16_f32 v{t1}, v{t1}, v{t2}')
    k(f'v_lshlrev_b32 v{m}, 16, v{t1}')
    k(f'v_and_b32 v{t2}, s{s_mask}, v{t1}')
    k(f'v_add_f32 v{t2}, s{s_eps}, v{t2}')
    k(f'v_cvt_pk_bf16_f32 v{t2}, v{t2}, v{t2}')
    k(f'v_lshlrev_b32 v{t2}, 16, v{t2}')
    k(f'v_sqrt_f32 v{t2}, v{t2}')
    k(f'v_cvt_pk_bf16_f32 v{t2}, v{t2}, v{t2}')
    k(f'v_lshlrev_b32 v{t2}, 16, v{t2}')
    k(f'v_rcp_f32 v{rinv}, v{t2}')


def k1(layer):
    k = Kern(f'k1l{layer}_kernel', nvgpr=200, accum_offset=200, nsgpr=100)
    st = Stamps(k)
    SLOT = 34816
    WOFF = 10240
    STAT = 0
    QKVA = 1024
    ROWB = 112
    ACC = lambda sg, t: 16 + (sg * 5 + t) * 4
    CS = lambda sg: 76 + 4 * sg
    XFB = lambda b, t: 88 + b * 24 + t * 4
    WFB = lambda b, sg: 136 + b * 12 + sg * 4
    ONES = 160
    k('s_cmp_ge_u32 s2, 256')
    k(f's_cbranch_scc1 L_k1l{layer}_done')
    st()
    k(f's_load_dwordx2 s[4:5], s[0:1], {0 if layer == 1 else 80}')
    k('s_load_dwordx2 s[6:7], s[0:1], 8')
    k('s_load_dwordx2 s[8:9], s[0:1], 80')
    k('s_and_b32 s28, s2, 7')
    k('s_lshr_b32 s29, s2, 3')
    k('s_lshr_b32 s30, s28, 1')
    k('s_lshl_b32 s30, s30, 3')
    k('s_lshr_b32 s31, s29, 2')
    k('s_add_u32 s30, s30, s31')
    k('s_and_b32 s28, s28, 1')
    k('s_lshl_b32 s28, s28, 2')
    k('s_and_b32 s29, s29, 3')
    k('s_add_u32 s29, s28, s29')
    k('s_lshl_b32 s31, s30, 6')
    k('v_and_b32 v1, 63, v0')
    k('v_lshrrev_b32 v2, 6, v0')
    k('v_readfirstlane_b32 s30, v2')
    k('v_lshrrev_b32 v10, 3, v1')
    k('v_and_b32 v11, 7, v1')
    k('v_lshrrev_b32 v12, 4, v1')
    k('s_cmp_lt_u32 s30, 4')
    k(f's_cbranch_scc1 L_k1l{layer}_comp')
    k('s_sub_u32 s30, s30, 4')
    k('s_lshl_b32 s34, s30, 4')
    k('s_add_u32 s34, s34, s31')
    k('v_add_u32 v13, s34, v10')
    k('v_lshlrev_b32 v13, 10, v13')
    k('v_xor_b32 v14, v11, v12')
    k('v_lshl_add_u32 v2, v14, 4, v13')
    k('v_xor_b32 v14, 4, v14')
    k('v_lshl_add_u32 v3, v14, 4, v13')
    k('v_add_u32 v3, 8192, v3')
    k('s_lshl_b32 s34, s30, 2')
    k('s_add_u32 s34, s34, s31')
    k('s_sub_u32 s34, s34, 16')
    k('v_add_u32 v13, s34, v10')
    k('v_lshlrev_b32 v13, 10, v13')
    k('s_lshl_b32 s34, s30, 1')
    k('v_add_u32 v14, s34, v12')
    k('v_and_b32 v14, 7, v14')
    k('v_xor_b32 v14, v11, v14')
    k('v_lshl_add_u32 v4, v14, 4, v13')
    k('v_bfe_u32 v13, v10, 1, 1')
    k('s_and_b32 s34, s30, 1')
    k('s_lshl_b32 s34, s34, 1')
    k('v_or_b32 v13, s34, v13')
    k('v_lshrrev_b32 v14, 1, v11')
    k('v_xor_b32 v13, v13, v14')
    k('v_mul_u32_u24 v5, 3072, v10')
    k('v_lshl_add_u32 v5, v13, 5, v5')
    k('v_and_b32 v14, 1, v11')
    k('v_lshl_add_u32 v5, v14, 4, v5')
    k('s_lshl_b32 s34, s29, 7')
    k('v_add_u32 v5, s34, v5')
    k('s_mul_i32 s32, s30, 24576')
    k('s_lshl_b32 s33, s30, 10')
    k('s_lshl_b32 s35, s30, 11')
    k('s_add_u32 s35, s35, 2048')
    k('s_lshl_b32 s36, s30, 9')
    k('s_waitcnt lgkmcnt(0)')
    srd(k, 12, 4, 5, XBYTES, 0 if layer == 1 else X2_OFF)
    srd(k, 16, 6, 7, 512 * 1536 * 2)
    k('s_mov_b64 s[56:57], 0xffffffff')

    def issue_chunk(c):
        sb = (c % 4) * SLOT
        k(f's_mov_b32 s37, {c * 128}')
        k(f's_add_u32 m0, s35, {sb}')
        k('buffer_load_dwordx4 v2, s[12:15], s37 offen lds')
        k(f's_add_u32 m0, s35, {sb + 1024}')
        k('buffer_load_dwordx4 v3, s[12:15], s37 offen lds')
        k(f's_add_u32 m0, s36, {sb}')
        k('s_mov_b64 exec, s[56:57]')
        k('buffer_load_dwordx4 v4, s[12:15], s37 offen lds')
        k('s_mov_b64 exec, -1')
        for sg in range(3):
            for i in range(2):
                k(f's_add_u32 s34, s32, {(c * 64 + 32 * i) * 3072 + sg * 1024}')
                k(f's_add_u32 m0, s33, {sb + WOFF + sg * 8192 + i * 4096}')
                k('buffer_load_dwordx4 v5, s[16:19], s34 offen lds')

    issue_chunk(0)
    issue_chunk(1)
    if layer == 1:
        srd(k, 24, 8, 9, 65536, ST_OFF)
    k('v_lshlrev_b32 v6, 5, v1')
    k('v_add_u32 v6, s35, v6')
    k('v_and_b32 v7, 31, v1')
    k('v_lshlrev_b32 v7, 4, v7')
    k('v_add_u32 v7, s36, v7')
    for v in range(120, 128):
        k(f'v_mov_b32 v{v}, 0')
    k('s_mov_b32 s52, 0xffff0000')
    k('s_mov_b32 s53, 0x3b000000')
    k('s_mov_b32 s54, 0x3727c5ac')
    for c in range(8):
        k(f's_waitcnt vmcnt({9 if c < 7 else 0})')
        k('s_barrier')
        sl = c % 4
        if sl == 2:
            k(f'v_add_u32 v6, {2 * SLOT}, v6')
            k(f'v_add_u32 v7, {2 * SLOT}, v7')
        if sl == 0 and c > 0:
            k(f'v_subrev_u32 v6, {2 * SLOT}, v6')
            k(f'v_subrev_u32 v7, {2 * SLOT}, v7')
        so = (sl & 1) * SLOT
        k(f'ds_read_b128 v[100:103], v6 offset:{so}')
        k(f'ds_read_b128 v[104:107], v6 offset:{so + 16}')
        k(f'ds_read_b128 v[108:111], v7 offset:{so}')
        if c + 2 <= 7:
            issue_chunk(c + 2)
        k('s_waitcnt lgkmcnt(0)')
        for d in range(12):
            acc = 120 if d < 8 else 124
            k(f'v_lshlrev_b32 v112, 16, v{100+d}')
            k(f'v_and_b32 v113, s52, v{100+d}')
            k(f'v_add_f32 v{acc}, v{acc}, v112')
            k(f'v_add_f32 v{acc+1}, v{acc+1}, v113')
            k(f'v_fma_f32 v{acc+2}, v112, v112, v{acc+2}')
            k(f'v_fma_f32 v{acc+3}, v113, v113, v{acc+3}')
    k('v_add_f32 v120, v120, v121')
    k('v_add_f32 v121, v122, v123')
    k('v_add_f32 v122, v124, v125')
    k('v_add_f32 v123, v126, v127')
    for v in range(120, 124):
        k(f'v_add_f32_dpp v{v}, v{v}, v{v} quad_perm:[1,0,3,2] row_mask:0xf bank_mask:0xf')
    for v in range(120, 124):
        k(f'v_add_f32_dpp v{v}, v{v}, v{v} quad_perm:[2,3,0,1] row_mask:0xf bank_mask:0xf')
    for v in range(122, 124):
        k(f'v_add_f32_dpp v{v}, v{v}, v{v} row_half_mirror row_mask:0xf bank_mask:0xf')
    ln_scalars(k, 120, 121, 124, 125, 112, 113, 52, 53, 54)
    ln_scalars(k, 122, 123, 126, 127, 114, 115, 52, 53, 54)
    k('v_lshrrev_b32 v112, 2, v1')
    k('v_lshlrev_b32 v112, 3, v112')
    k('s_lshl_b32 s34, s30, 7')
    k('v_add_u32 v112, s34, v112')
    k(f'ds_write_b64 v112, v[124:125] offset:{STAT}')
    k('v_bfe_u32 v112, v1, 3, 2')
    k('v_lshlrev_b32 v112, 3, v112')
    k('s_lshl_b32 s34, s30, 5')
    k('v_add_u32 v112, s34, v112')
    k(f'ds_write_b64 v112, v[126:127] offset:{STAT + 512}')
    if layer == 1:
        k('s_cmp_lg_u32 s30, 0')
        k(f's_cbranch_scc1 L_k1l{layer}_nz')
        k('v_mov_b32 v100, 0')
        k('v_mov_b32 v101, 0')
        k('v_mov_b32 v102, 0')
        k('v_mov_b32 v103, 0')
        k('s_lshl_b32 s34, s2, 8')
        k('v_lshlrev_b32 v104, 4, v1')
        k('v_add_u32 v104, s34, v104')
        k('v_cmp_gt_u32 vcc, 16, v1')
        k('s_and_saveexec_b64 s[58:59], vcc')
        k('buffer_store_dwordx4 v[100:103], v104, s[24:27], 0 offen')
        k('s_mov_b64 exec, s[58:59]')
        k.label(f'L_k1l{layer}_nz')
    srd(k, 20, 8, 9, XBYTES, O_OFF)
    k('s_waitcnt lgkmcnt(0)')
    k('s_barrier')
    if layer == 1:
        k('s_load_dwordx2 s[60:61], s[0:1], 16')
        k('s_load_dwordx4 s[64:67], s[0:1], 40')
        k('s_load_dwordx2 s[62:63], s[0:1], 56')
        k('s_and_b32 s84, s2, 7')
        k('s_lshr_b32 s85, s2, 3')
        k('v_lshrrev_b32 v20, 5, v1')
        k('v_mul_u32_u24 v20, 3584, v20')
        k('v_and_b32 v21, 31, v1')
        k('v_lshl_add_u32 v20, v21, 4, v20')
        k('v_lshlrev_b32 v21, 4, v1')
        k('s_mul_i32 s34, s84, 448')
        k('s_lshl_b32 s37, s85, 4')
        k('s_lshl_b32 s38, s30, 2')
        k('s_add_u32 s37, s37, s38')
        k('s_mul_i32 s37, s37, 3584')
        k('s_add_u32 s34, s34, s37')
        k('s_waitcnt lgkmcnt(0)')
        srd(k, 68, 64, 65, 512 * 1792 * 2)
        srd(k, 72, 66, 67, 512 * 1792 * 2)
        srd(k, 76, 62, 63, 1792 * 512 * 2)
        srd(k, 80, 60, 61, 512 * 512 * 2)
        k('s_lshl_b32 s37, s85, 4')
        k('s_add_u32 s37, s37, s38')
        k('s_lshl_b32 s37, s37, 10')
        for i in range(4):
            k(f'buffer_load_dwordx4 v[{154+4*i}:{157+4*i}], v21, s[80:83], s37 offen offset:{i*1024}')
        for i in range(2):
            k(f's_add_u32 s37, s34, {2 * i * 3584}')
            k(f'buffer_load_dwordx4 v[{130+8*i}:{133+8*i}], v20, s[68:71], s37 offen')
            k(f'buffer_load_dwordx4 v[{134+8*i}:{137+8*i}], v20, s[72:75], s37 offen')
        k('s_mul_i32 s34, s84, 224')
        k('s_mul_i32 s37, s85, 7')
        k('s_add_u32 s34, s34, s37')
        k('s_add_u32 s34, s34, s30')
        k('s_lshl_b32 s34, s34, 10')
        k('buffer_load_dwordx4 v[146:149], v21, s[76:79], s34 offen')
        k('s_add_u32 s34, s34, 4096')
        k('buffer_load_dwordx4 v[150:153], v21, s[76:79], s34 offen')
    k('s_add_u32 s30, s30, 4')
    k(f's_branch L_k1l{layer}_attn')
    k.label(f'L_k1l{layer}_comp')
    k('s_lshl_b32 s35, s30, 11')
    k('s_add_u32 s35, s35, 2048')
    k('s_waitcnt lgkmcnt(0)')
    srd(k, 20, 8, 9, XBYTES, O_OFF)
    st()
    k('v_and_b32 v10, 15, v1')
    k('v_lshrrev_b32 v13, 1, v10')
    k('v_xor_b32 v13, v13, v12')
    k('v_lshlrev_b32 v6, 7, v10')
    k('v_lshl_add_u32 v6, v13, 4, v6')
    k('v_xor_b32 v7, 64, v6')
    k('v_add_u32 v8, s35, v6')
    k('v_add_u32 v9, s35, v7')
    k('v_bfe_u32 v13, v1, 2, 2')
    k('v_lshl_add_u32 v14, v12, 3, v13')
    k('v_lshlrev_b32 v164, 7, v14')
    k('v_lshrrev_b32 v13, 1, v13')
    k('v_and_b32 v14, 1, v12')
    k('v_lshl_or_b32 v13, v14, 1, v13')
    k('v_xor_b32 v13, s30, v13')
    k('v_lshl_add_u32 v164, v13, 5, v164')
    k('v_and_b32 v14, 3, v1')
    k('v_lshl_add_u32 v164, v14, 3, v164')
    k(f'v_add_u32 v164, {WOFF}, v164')
    for (d, sreg) in ((165, 6), (166, 7), (167, 8), (168, 9), (169, 164)):
        k(f'v_add_u32 v{d}, {2 * SLOT}, v{sreg}')
    for v in range(16, 88):
        k(f'v_mov_b32 v{v}, 0')
    for v in range(ONES, ONES + 4):
        k(f'v_mov_b32 v{v}, 0x3f803f80')
    for v in range(170, 174):
        k(f'v_mov_b32 v{v}, 0')

    def fread(s):
        c, q, b = s // 2, s & 1, s & 1
        slot = c % 4
        hi = slot >= 2
        so = (slot & 1) * SLOT
        xb = (166 if q else 165) if hi else (7 if q else 6)
        sbase = (168 if q else 167) if hi else (9 if q else 8)
        wb = 169 if hi else 164
        for sg in range(3):
            o = so + sg * 8192 + q * 4096
            k(f'ds_read_b64_tr_b16 v[{WFB(b,sg)}:{WFB(b,sg)+1}], v{wb} offset:{o}')
            k(f'ds_read_b64_tr_b16 v[{WFB(b,sg)+2}:{WFB(b,sg)+3}], v{wb} offset:{o+512}')
        for t in range(4):
            k(f'ds_read_b128 v[{XFB(b,t)}:{XFB(b,t)+3}], v{xb} offset:{so + 2048 + t * 2048}')
        k(f'ds_read_b128 v[{XFB(b,4)}:{XFB(b,4)+3}], v{xb} offset:{so}')

    k('s_barrier')
    st()
    fread(0)
    for s in range(16):
        c, q, b = s // 2, s & 1, s & 1
        k('s_waitcnt lgkmcnt(0)')
        if q == 1 and c < 7:
            if c in (1, 3, 5): st()
            k('s_barrier')
            if c in (1, 3, 5): st()
        if s < 15:
            fread(s + 1)
        for sg in range(3):
            w = WFB(b, sg)
            for t in range(5):
                if sg == 0 and t == 4:
                    continue
                a = ACC(sg, t)
                k(f'v_mfma_f32_16x16x32_bf16 v[{a}:{a+3}], v[{w}:{w+3}], v[{XFB(b,t)}:{XFB(b,t)+3}], v[{a}:{a+3}]')
            a = CS(sg)
            k(f'v_mfma_f32_16x16x32_bf16 v[{a}:{a+3}], v[{w}:{w+3}], v[{ONES}:{ONES+3}], v[{a}:{a+3}]')
    st()
    k('s_mov_b32 s52, 0xffff0000')
    k('s_mov_b32 s53, 0x3b000000')
    k('s_mov_b32 s54, 0x3727c5ac')
    k('v_lshlrev_b32 v13, 3, v10')
    k('s_barrier')
    for t in range(5):
        k(f'ds_read_b64 v[{90+2*t}:{91+2*t}], v13 offset:{STAT + t * 128}')
    k(f'v_mul_u32_u24 v14, {ROWB}, v10')
    k('v_lshl_add_u32 v14, v12, 3, v14')
    k('s_mul_i32 s34, s30, 8960')
    k('v_add_u32 v14, s34, v14')
    k('s_waitcnt lgkmcnt(0)')
    for sg in range(3):
        for t in range(5):
            if sg == 0 and t == 4:
                continue
            a = ACC(sg, t)
            m, ri = (90 + 2 * t, 91 + 2 * t)
            for r in (0, 2):
                k(f'v_pk_fma_f32 v[{a+r}:{a+r+1}], v[{m}:{m+1}], v[{CS(sg)+r}:{CS(sg)+r+1}], v[{a+r}:{a+r+1}] op_sel_hi:[0,1,1] neg_lo:[1,0,0] neg_hi:[1,0,0]')
            for r in (0, 2):
                k(f'v_pk_mul_f32 v[{a+r}:{a+r+1}], v[{a+r}:{a+r+1}], v[{m}:{m+1}] op_sel:[0,1] op_sel_hi:[1,1]')
            k(f'v_cvt_pk_bf16_f32 v{a}, v{a}, v{a+1}')
            k(f'v_cvt_pk_bf16_f32 v{a+1}, v{a+2}, v{a+3}')
            rowoff = 0 if t == 4 else (16 + 16 * t) * ROWB
            k(f'ds_write_b64 v14, v[{a}:{a+1}] offset:{QKVA + rowoff + sg * 32}')
    st()
    k.label(f'L_k1l{layer}_attn')
    k('s_waitcnt lgkmcnt(0)')
    k('s_barrier')
    k('s_lshr_b32 s34, s30, 2')
    k('s_lshl_b32 s34, s34, 5')
    k('v_and_b32 v2, 31, v1')
    k('v_add_u32 v2, s34, v2')
    k('v_lshrrev_b32 v8, 5, v1')
    k('v_add_u32 v3, s31, v2')
    k('v_lshlrev_b32 v9, 3, v8')
    k('v_sub_u32 v7, v3, v9')
    k('v_sub_u32 v4, v2, v9')
    k('v_add_u32 v4, 10, v4')
    k(f'v_mul_u32_u24 v4, {ROWB}, v4')
    k('s_and_b32 s36, s30, 3')
    k('s_mul_i32 s34, s36, 8960')
    k('v_add_u32 v4, s34, v4')
    k('v_add_u32 v6, 16, v2')
    k(f'v_mul_u32_u24 v6, {ROWB}, v6')
    k('v_add_u32 v6, s34, v6')
    Q = 16
    KK = lambda i: 24 + 8 * i
    VV = lambda i: 56 + 8 * i
    k(f'ds_read_b128 v[{Q}:{Q+3}], v6 offset:{QKVA}')
    k(f'ds_read_b128 v[{Q+4}:{Q+7}], v6 offset:{QKVA + 16}')
    for i in range(4):
        o = QKVA + (6 - 2 * i) * ROWB + 32
        k(f'ds_read_b128 v[{KK(i)}:{KK(i)+3}], v4 offset:{o}')
        k(f'ds_read_b128 v[{KK(i)+4}:{KK(i)+7}], v4 offset:{o+16}')
    for i in range(2):
        o = QKVA + (6 - 2 * i) * ROWB + 64
        k(f'ds_read_b128 v[{VV(i)}:{VV(i)+3}], v4 offset:{o}')
        k(f'ds_read_b128 v[{VV(i)+4}:{VV(i)+7}], v4 offset:{o+16}')
    k('s_waitcnt lgkmcnt(4)')
    for i in range(2, 4):
        o = QKVA + (6 - 2 * i) * ROWB + 64
        k(f'ds_read_b128 v[{VV(i)}:{VV(i)+3}], v4 offset:{o}')
        k(f'ds_read_b128 v[{VV(i)+4}:{VV(i)+7}], v4 offset:{o+16}')
    L = 88
    P = 92
    for j in range(8):
        for i in range(4):
            src2 = '0' if j == 0 else f'v{L+i}'
            k(f'v_dot2_f32_bf16 v{L+i}, v{Q+j}, v{KK(i)+j}, {src2}')
    for i in range(0, 4, 2):
        k(f'v_cvt_pk_bf16_f32 v{P+i//2}, v{L+i}, v{L+i+1}')
    for i in range(0, 4, 2):
        k(f'v_lshlrev_b32 v{L+i}, 16, v{P+i//2}')
        k(f'v_and_b32 v{L+i+1}, s52, v{P+i//2}')
    k('v_mov_b32 v94, 0xcf6e6b28')
    for i in range(4):
        k(f'v_cmp_le_i32 vcc, {2*i}, v7')
        k(f'v_cndmask_b32 v{L+i}, v94, v{L+i}, vcc')
    k(f'v_max3_f32 v95, v{L}, v{L+1}, v{L+2}')
    k(f'v_max_f32 v95, v95, v{L+3}')
    k('v_mov_b32 v96, v95')
    k('v_permlane32_swap_b32 v95, v96')
    k('v_max_f32 v95, v95, v96')
    k('s_mov_b32 s34, 0x3eb8aa3b')
    for i in range(4):
        k(f'v_sub_f32 v{L+i}, v{L+i}, v95')
    for i in range(4):
        k(f'v_mul_f32 v{L+i}, s34, v{L+i}')
    for i in range(4):
        k(f'v_exp_f32 v{L+i}, v{L+i}')
    k(f'v_add_f32 v95, v{L}, v{L+1}')
    k(f'v_add_f32 v96, v{L+2}, v{L+3}')
    k('v_add_f32 v95, v95, v96')
    k('v_mov_b32 v96, v95')
    k('v_permlane32_swap_b32 v95, v96')
    k('v_add_f32 v95, v95, v96')
    k('v_rcp_f32 v95, v95')
    for i in range(4):
        k(f'v_mul_f32 v{L+i}, v{L+i}, v95')
    for i in range(0, 4, 2):
        k(f'v_cvt_pk_bf16_f32 v{P+i//2}, v{L+i}, v{L+i+1}')
    k('s_mov_b32 s38, 0x05040100')
    k('s_mov_b32 s37, 0x07060302')
    k('s_waitcnt lgkmcnt(0)')
    OO = 24
    for wp in range(2):
        a_, b_ = 2 * wp, 2 * wp + 1
        for j in range(8):
            k(f'v_perm_b32 v{40+2*j}, v{VV(b_)+j}, v{VV(a_)+j}, s38')
            k(f'v_perm_b32 v{41+2*j}, v{VV(b_)+j}, v{VV(a_)+j}, s37')
        for j in range(16):
            src2 = '0' if wp == 0 else f'v{OO+j}'
            k(f'v_dot2_f32_bf16 v{OO+j}, v{40+j}, v{P+wp}, {src2}')
    for d in range(8):
        k(f'v_permlane32_swap_b32 v{OO+d}, v{OO+8+d}')
    for d in range(8):
        k(f'v_add_f32 v{OO+d}, v{OO+d}, v{OO+8+d}')
    for j in range(4):
        k(f'v_cvt_pk_bf16_f32 v{56+j}, v{OO+2*j}, v{OO+2*j+1}')
    k('v_lshlrev_b32 v5, 10, v3')
    k('v_lshl_add_u32 v5, v8, 4, v5')
    k('s_lshl_b32 s34, s29, 7')
    k('s_lshl_b32 s36, s36, 5')
    k('s_add_u32 s34, s34, s36')
    k('v_add_u32 v5, s34, v5')
    k('buffer_store_dwordx4 v[56:59], v5, s[20:23], 0 offen')
    st()
    k('s_waitcnt vmcnt(0)' if DIAG else '')
    st()
    st.flush(8, 9, layer - 1, 6, 7, 60)
    k.label(f'L_k1l{layer}_done')
    k('s_endpgm')
    return k, 4 * SLOT


def k2(layer):
    k = Kern(f'k2l{layer}_kernel', nvgpr=128, accum_offset=128, nsgpr=100)
    st = Stamps(k)
    CH = 16384
    ACC = lambda j: 12 + 4 * j
    RES = lambda j: 44 + 2 * j
    WR = lambda j: 52 + 2 * j
    WF = lambda b, j: 64 + b * 20 + 4 * j
    OF = lambda b: 64 + b * 20 + 16
    k('s_cmp_ge_u32 s2, 256')
    k(f's_cbranch_scc1 L_k2l{layer}_done')
    st()
    k(f's_load_dwordx2 s[4:5], s[0:1], {0 if layer == 1 else 80}')
    k('s_load_dwordx2 s[6:7], s[0:1], 16')
    k('s_load_dwordx2 s[8:9], s[0:1], 80')
    k('s_load_dwordx2 s[10:11], s[0:1], 32')
    k('s_and_b32 s36, s2, 7')
    k('s_lshr_b32 s37, s2, 3')
    k('s_lshl_b32 s36, s36, 2')
    k('s_lshr_b32 s38, s37, 3')
    k('s_add_u32 s36, s36, s38')
    k('s_and_b32 s37, s37, 7')
    k('s_lshl_b32 s36, s36, 6')
    k('s_lshl_b32 s41, s37, 7')
    k('v_and_b32 v1, 63, v0')
    k('v_lshrrev_b32 v2, 6, v0')
    k('v_readfirstlane_b32 s39, v2')
    k('v_lshrrev_b32 v10, 3, v1')
    k('v_and_b32 v11, 7, v1')
    k('v_lshrrev_b32 v61, 4, v1')
    k('s_lshl_b32 s40, s39, 4')
    k('s_add_u32 s40, s40, s36')
    k('s_cmp_lt_u32 s39, 4')
    k(f's_cbranch_scc1 L_k2l{layer}_comp')
    k('s_sub_u32 s39, s39, 4')
    k('s_sub_u32 s40, s40, 64')
    k('v_add_u32 v4, s40, v10')
    k('v_lshlrev_b32 v4, 10, v4')
    k('v_xor_b32 v5, v11, v61')
    k('v_lshl_add_u32 v2, v5, 4, v4')
    k('v_xor_b32 v5, 4, v5')
    k('v_lshl_add_u32 v3, v5, 4, v4')
    k('v_add_u32 v3, 8192, v3')
    k('v_bfe_u32 v4, v10, 1, 1')
    k('s_and_b32 s42, s39, 1')
    k('s_lshl_b32 s42, s42, 1')
    k('v_or_b32 v4, s42, v4')
    k('v_lshrrev_b32 v5, 1, v11')
    k('v_xor_b32 v4, v4, v5')
    k('v_lshlrev_b32 v6, 10, v10')
    k('v_lshl_add_u32 v6, v4, 5, v6')
    k('v_and_b32 v5, 1, v11')
    k('v_lshl_add_u32 v6, v5, 4, v6')
    k('v_add_u32 v6, s41, v6')
    k('s_lshl_b32 s43, s39, 13')
    k('s_lshl_b32 s44, s39, 10')
    k('s_lshl_b32 s45, s39, 11')
    k('s_waitcnt lgkmcnt(0)')
    srd(k, 12, 8, 9, XBYTES, O_OFF)
    srd(k, 16, 6, 7, 512 * 512 * 2)

    def issue2(c):
        k(f's_mov_b32 s46, {c * 128}')
        k(f's_add_u32 m0, s45, {c * CH}')
        k('buffer_load_dwordx4 v2, s[12:15], s46 offen lds')
        k(f's_add_u32 m0, s45, {c * CH + 1024}')
        k('buffer_load_dwordx4 v3, s[12:15], s46 offen lds')
        for i in range(2):
            k(f's_add_u32 s47, s43, {(c * 64 + 32 * i) * 1024}')
            k(f's_add_u32 m0, s44, {c * CH + 8192 + i * 4096}')
            k('buffer_load_dwordx4 v6, s[16:19], s47 offen lds')
    LA = 3
    for c in range(LA):
        issue2(c)
    issued = LA
    for c in range(8):
        k(f's_waitcnt vmcnt({(issued - (c + 1)) * 4})')
        k('s_barrier')
        if issued < 8:
            issue2(issued)
            issued += 1
    k('s_endpgm')
    k.label(f'L_k2l{layer}_comp')
    k('s_lshl_b32 s45, s39, 11')
    k('s_waitcnt lgkmcnt(0)')
    st()
    srd(k, 20, 4, 5, XBYTES, 0 if layer == 1 else X2_OFF)
    srd(k, 24, 8, 9, XBYTES, X1_OFF if layer == 1 else X3_OFF)
    srd(k, 28, 8, 9, 32768, ST_OFF + (layer - 1) * 32768)
    srd(k, 32, 10, 11, 1024)
    k('v_and_b32 v60, 15, v1')
    k('v_add_u32 v62, s40, v60')
    k('v_lshlrev_b32 v9, 10, v62')
    k('v_lshl_add_u32 v9, v61, 3, v9')
    k('v_add_u32 v9, s41, v9')
    k('v_lshlrev_b32 v10, 3, v61')
    k('v_add_u32 v10, s41, v10')
    for j in range(4):
        k(f'buffer_load_dwordx2 v[{RES(j)}:{RES(j)+1}], v9, s[20:23], 0 offen offset:{j*32}')
    for j in range(4):
        k(f'buffer_load_dwordx2 v[{WR(j)}:{WR(j)+1}], v10, s[32:35], 0 offen offset:{j*32}')
    k('v_lshrrev_b32 v4, 1, v60')
    k('v_xor_b32 v4, v4, v61')
    k('v_lshlrev_b32 v2, 7, v60')
    k('v_lshl_add_u32 v2, v4, 4, v2')
    k('v_add_u32 v2, s45, v2')
    k('v_xor_b32 v3, 64, v2')
    k('v_bfe_u32 v8, v1, 2, 2')
    k('v_lshl_add_u32 v11, v61, 3, v8')
    k('v_lshlrev_b32 v11, 7, v11')
    k('v_and_b32 v5, 3, v1')
    k('v_lshl_add_u32 v11, v5, 3, v11')
    k('v_add_u32 v11, 8192, v11')
    k('v_lshrrev_b32 v8, 1, v8')
    k('v_and_b32 v5, 1, v61')
    k('v_lshl_or_b32 v8, v5, 1, v8')
    for j in range(4):
        k(f'v_xor_b32 v{4+j}, {j}, v8')
        k(f'v_lshl_add_u32 v{4+j}, v{4+j}, 5, v11')
    for i in range(6):
        k(f'v_add_u32 v{28+i}, 65536, v{2+i}')
    for v in range(12, 28):
        k(f'v_mov_b32 v{v}, 0')

    def fread(s):
        c, q, b = s // 2, s & 1, s & 1
        hi = c >= 4
        co = (c & 3) * CH
        base = 28 if hi else 2
        for j in range(4):
            k(f'ds_read_b64_tr_b16 v[{WF(b,j)}:{WF(b,j)+1}], v{base+2+j} offset:{co + q*4096}')
            k(f'ds_read_b64_tr_b16 v[{WF(b,j)+2}:{WF(b,j)+3}], v{base+2+j} offset:{co + q*4096 + 512}')
        k(f'ds_read_b128 v[{OF(b)}:{OF(b)+3}], v{base+q} offset:{co}')

    k('s_barrier')
    st()
    fread(0)
    for s in range(16):
        c, q, b = s // 2, s & 1, s & 1
        if q == 1 and c < 7:
            k('s_barrier')
        k('s_waitcnt lgkmcnt(0)')
        if s < 15:
            fread(s + 1)
        for j in range(4):
            k(f'v_mfma_f32_16x16x32_bf16 v[{ACC(j)}:{ACC(j)+3}], v[{WF(b,j)}:{WF(b,j)+3}], v[{OF(b)}:{OF(b)+3}], v[{ACC(j)}:{ACC(j)+3}]')
    st()
    k('s_mov_b32 s46, 0xffff0000')
    k('v_mov_b32 v63, 0x3f803f80')
    k('v_mov_b32 v108, 0')
    k('v_mov_b32 v109, 0')
    k('v_mov_b32 v110, 0')
    k('s_waitcnt vmcnt(0)')
    for j in range(4):
        for h in range(2):
            a = ACC(j) + 2 * h
            o = 112 + 2 * j + h
            k(f'v_cvt_pk_bf16_f32 v120, v{a}, v{a+1}')
            k('v_lshlrev_b32 v121, 16, v120')
            k('v_and_b32 v122, s46, v120')
            k(f'v_lshlrev_b32 v123, 16, v{RES(j)+h}')
            k(f'v_and_b32 v124, s46, v{RES(j)+h}')
            k('v_add_f32 v121, v121, v123')
            k('v_add_f32 v122, v122, v124')
            k(f'v_cvt_pk_bf16_f32 v{o}, v121, v122')
            k(f'v_dot2c_f32_bf16 v108, v{o}, v63')
            k(f'v_dot2c_f32_bf16 v109, v{o}, v{o}')
            k(f'v_dot2c_f32_bf16 v110, v{o}, v{WR(j)+h}')
        k(f'buffer_store_dwordx2 v[{112+2*j}:{113+2*j}], v9, s[24:27], 0 offen offset:{j*32}')
    for v in range(108, 111):
        xrow_reduce(k, v, 125 + v - 108)
    k('v_mov_b32 v111, 0')
    k('v_cmp_eq_u32 vcc, 1, v61')
    k('v_cndmask_b32 v108, v108, v109, vcc')
    k('v_cmp_eq_u32 vcc, 2, v61')
    k('v_cndmask_b32 v108, v108, v110, vcc')
    k('v_cmp_eq_u32 vcc, 3, v61')
    k('v_cndmask_b32 v108, v108, v111, vcc')
    k('v_lshlrev_b32 v120, 4, v62')
    k('v_lshl_add_u32 v120, v61, 2, v120')
    k('buffer_atomic_add_f32 v108, v120, s[28:31], 0 offen')
    st()
    k('s_waitcnt vmcnt(0)' if DIAG else '')
    st()
    st.flush(8, 9, 2 + layer - 1, 6, 7, 60)
    k.label(f'L_k2l{layer}_done')
    k('s_endpgm')
    return k, 131072


def normalize_dword(k, x, m, rinv, t0, t1, s_mask, out):
    k(f'v_lshlrev_b32 v{t0}, 16, v{x}')
    k(f'v_and_b32 v{t1}, s{s_mask}, v{x}')
    k(f'v_sub_f32 v{t0}, v{t0}, v{m}')
    k(f'v_sub_f32 v{t1}, v{t1}, v{m}')
    k(f'v_cvt_pk_bf16_f32 v{t0}, v{t0}, v{t1}')
    k(f'v_and_b32 v{t1}, s{s_mask}, v{t0}')
    k(f'v_lshlrev_b32 v{t0}, 16, v{t0}')
    k(f'v_mul_f32 v{t0}, v{t0}, v{rinv}')
    k(f'v_mul_f32 v{t1}, v{t1}, v{rinv}')
    k(f'v_cvt_pk_bf16_f32 v{out}, v{t0}, v{t1}')


def add_dwords(k, a, b, t0, t1, t2, t3, s_mask, out):
    k(f'v_lshlrev_b32 v{t0}, 16, v{a}')
    k(f'v_and_b32 v{t1}, s{s_mask}, v{a}')
    k(f'v_lshlrev_b32 v{t2}, 16, v{b}')
    k(f'v_and_b32 v{t3}, s{s_mask}, v{b}')
    k(f'v_add_f32 v{t0}, v{t0}, v{t2}')
    k(f'v_add_f32 v{t1}, v{t1}, v{t3}')
    k(f'v_cvt_pk_bf16_f32 v{out}, v{t0}, v{t1}')


def dpp_max_reduce(k, src, t):
    k(f'v_max_u32_dpp v{t}, v{src}, v{src} quad_perm:[1,0,3,2] row_mask:0xf bank_mask:0xf')
    k(f'v_max_u32_dpp v{t}, v{t}, v{t} quad_perm:[2,3,0,1] row_mask:0xf bank_mask:0xf')
    k(f'v_max_u32_dpp v{t}, v{t}, v{t} row_half_mirror row_mask:0xf bank_mask:0xf')
    k(f'v_max_u32_dpp v{t}, v{t}, v{t} row_mirror row_mask:0xf bank_mask:0xf')
    k(f'v_max_u32_dpp v{t}, v{t}, v{t} row_bcast:15 row_mask:0xa bank_mask:0xf')
    k(f'v_max_u32_dpp v{t}, v{t}, v{t} row_bcast:31 row_mask:0xc bank_mask:0xf')


NFFN = 56
NLN = 128
PART_OFF = 9 * MB


def k4(layer):
    k = Kern(f'k4l{layer}_kernel', nvgpr=128, accum_offset=128, nsgpr=100)
    st = Stamps(k, base=80)
    GOFF, UOFF, DOFF, RED = 0, 32768, 65536, 98304
    CAND = RED + 16384
    HB = CAND + 128
    CNT = HB + 1024
    k(f's_cmp_ge_u32 s2, {NFFN + NLN}')
    k(f's_cbranch_scc1 L_k4l{layer}_done')
    st()
    k('s_load_dwordx2 s[4:5], s[0:1], 80')
    k('s_load_dwordx2 s[6:7], s[0:1], 40')
    k('s_load_dwordx2 s[8:9], s[0:1], 48')
    k('s_load_dwordx2 s[10:11], s[0:1], 32')
    k('s_load_dwordx2 s[70:71], s[0:1], 64')
    k('s_load_dwordx2 s[66:67], s[0:1], 56')
    k('v_and_b32 v1, 63, v0')
    k('v_lshrrev_b32 v2, 6, v0')
    k('v_readfirstlane_b32 s68, v2')
    k('s_mov_b32 s72, 0xffff0000')
    k('s_mov_b32 s73, 0x3b000000')
    k('s_mov_b32 s74, 0x3727c5ac')
    k('v_lshlrev_b32 v3, 4, v0')
    k('s_waitcnt lgkmcnt(0)')
    srd(k, 12, 4, 5, XBYTES, X1_OFF if layer == 1 else X3_OFF)
    srd(k, 24, 4, 5, 32768, ST_OFF + (layer - 1) * 32768)
    k(f's_cmp_ge_u32 s2, {NFFN}')
    k(f's_cbranch_scc1 L_k4l{layer}_ln')
    k('s_and_b32 s69, s2, 7')
    k('s_mul_i32 s69, s69, 7')
    k('s_lshr_b32 s75, s2, 3')
    k('s_add_u32 s69, s69, s75')
    k('s_cmp_lt_u32 s68, 4')
    k(f's_cbranch_scc1 L_k4l{layer}_comp')
    k('s_sub_u32 s68, s68, 4')
    srd(k, 16, 6, 7, 512 * 1792 * 2)
    srd(k, 20, 8, 9, 512 * 1792 * 2)
    srd(k, 44, 66, 67, 1792 * 512 * 2)
    k('s_barrier')
    k('v_lshrrev_b32 v5, 2, v1')
    k('v_mul_u32_u24 v6, 3584, v5')
    k('v_lshrrev_b32 v7, 5, v1')
    k('v_lshlrev_b32 v7, 1, v7')
    k('v_and_b32 v8, 3, v1')
    k('v_xor_b32 v7, v7, v8')
    k('v_lshl_add_u32 v6, v7, 4, v6')
    k('s_lshl_b32 s75, s69, 6')
    k('v_add_u32 v6, s75, v6')
    k('s_mul_i32 s76, s68, 458752')
    k('s_lshl_b32 s77, s68, 13')
    for mat in range(2):
        for i in range(8):
            k(f's_add_u32 s40, s76, {16 * i * 3584}')
            k(f's_add_u32 m0, s77, {mat * 32768 + i * 1024}')
            k(f'buffer_load_dwordx4 v6, s[{16+4*mat}:{19+4*mat}], s40 offen lds')
    k('v_lshrrev_b32 v7, 1, v1')
    k('v_and_b32 v8, 1, v1')
    k('s_lshl_b32 s78, s69, 15')
    k('s_lshl_b32 s79, s68, 13')
    k('s_add_u32 s78, s78, s79')
    for i in range(8):
        k('s_and_b32 s40, s68, 1')
        k('s_lshl_b32 s40, s40, 2')
        k(f's_or_b32 s40, s40, {i & 3}')
        k('v_xor_b32 v9, s40, v7')
        k('v_lshlrev_b32 v9, 5, v9')
        k('v_lshl_add_u32 v9, v8, 4, v9')
        k(f's_add_u32 s41, s78, {i * 1024}')
        k(f's_add_u32 m0, s79, {DOFF + i * 1024}')
        k('buffer_load_dwordx4 v9, s[44:47], s41 offen lds')
    k('s_waitcnt vmcnt(0)')
    k('s_barrier')
    k('s_endpgm')
    k.label(f'L_k4l{layer}_comp')
    for i in range(8):
        k(f's_mov_b32 s40, {4096 * i}')
        k(f'buffer_load_dwordx4 v[{32+4*i}:{35+4*i}], v3, s[24:27], s40 offen')
    srd(k, 28, 10, 11, 1024)
    k('v_lshlrev_b32 v4, 4, v1')
    k('buffer_load_dwordx4 v[64:67], v4, s[28:31], 0 offen')
    srd(k, 32, 4, 5, SM_SIZE, SM_OFF)
    k('s_lshl_b32 s77, s68, 13')
    k(f'v_mov_b32 v5, {CNT}')
    k('v_mov_b32 v6, 0')
    k('ds_write_b32 v5, v6')
    k('s_waitcnt lgkmcnt(0)')
    k('s_barrier')
    st()
    k('v_mov_b32 v8, 0x3f803f80')
    k('v_mov_b32 v9, 0')
    k('s_waitcnt vmcnt(0)')
    st()
    for d in range(4):
        k(f'v_dot2c_f32_bf16 v9, v{64+d}, v8')
    k('v_add_f32_dpp v9, v9, v9 quad_perm:[1,0,3,2] row_mask:0xf bank_mask:0xf')
    k('v_add_f32_dpp v9, v9, v9 quad_perm:[2,3,0,1] row_mask:0xf bank_mask:0xf')
    k('v_add_f32_dpp v9, v9, v9 row_half_mirror row_mask:0xf bank_mask:0xf')
    k('v_add_f32_dpp v9, v9, v9 row_mirror row_mask:0xf bank_mask:0xf')
    xrow_reduce(k, 9, 10)
    R = [32 + 4 * i for i in range(8)]
    steps = [
        lambda b: f'v_mul_f32 v{b}, s73, v{b}',
        lambda b: f'v_mul_f32 v{b+1}, s73, v{b+1}',
        lambda b: f'v_fma_f32 v{b+1}, -v{b}, v{b}, v{b+1}',
        lambda b: f'v_max_f32 v{b+1}, 0, v{b+1}',
        lambda b: f'v_cvt_pk_bf16_f32 v{b+3}, v{b}, v{b+1}',
        lambda b: f'v_lshlrev_b32 v{b}, 16, v{b+3}',
        lambda b: f'v_and_b32 v{b+1}, s72, v{b+3}',
        lambda b: f'v_add_f32 v{b+1}, s74, v{b+1}',
        lambda b: f'v_cvt_pk_bf16_f32 v{b+1}, v{b+1}, v{b+1}',
        lambda b: f'v_lshlrev_b32 v{b+1}, 16, v{b+1}',
        lambda b: f'v_sqrt_f32 v{b+1}, v{b+1}',
        lambda b: f'v_cvt_pk_bf16_f32 v{b+1}, v{b+1}, v{b+1}',
        lambda b: f'v_lshlrev_b32 v{b+1}, 16, v{b+1}',
        lambda b: f'v_rcp_f32 v{b+1}, v{b+1}',
        lambda b: f'v_fma_f32 v{b+2}, -v{b}, v9, v{b+2}',
        lambda b: f'v_mul_f32 v{b+2}, v{b+2}, v{b+1}',
        lambda b: f'v_cvt_pk_bf16_f32 v{b+2}, v{b+2}, v{b+2}',
        lambda b: f'v_lshlrev_b32 v{b+2}, 16, v{b+2}',
        lambda b: f'v_ashrrev_i32 v{b+3}, 31, v{b+2}',
        lambda b: f'v_or_b32 v{b+3}, 0x80000000, v{b+3}',
        lambda b: f'v_xor_b32 v{b+2}, v{b+2}, v{b+3}',
        lambda b: f'v_sub_u32 v{b+3}, {2047 - 256 * ((b - 32) // 4)}, v0',
        lambda b: f'v_and_or_b32 v{16 + (b - 32) // 4}, v{b+2}, s72, v{b+3}',
    ]
    for stp in steps:
        for b in R:
            k(stp(b))
    regs = list(range(16, 24))
    spare = 24
    net = [(0, 1), (2, 3), (4, 5), (6, 7), (0, 2), (1, 3), (4, 6), (5, 7), (1, 2), (5, 6), (0, 4), (3, 7),
           (1, 5), (2, 6), (1, 4), (3, 6), (2, 4), (3, 5), (3, 4)]
    for (a, b) in net:
        k(f'v_max_u32 v{spare}, v{regs[a]}, v{regs[b]}')
        k(f'v_min_u32 v{regs[b]}, v{regs[a]}, v{regs[b]}')
        regs[a], spare = spare, regs[a]
    k('v_mov_b32 v26, 0')
    st()
    for n in range(8):
        dpp_max_reduce(k, regs[0], 25)
        k(f'v_readlane_b32 s{50+n}, v25, 63')
        k(f'v_writelane_b32 v26, s{50+n}, {n}')
        if n < 7:
            k(f'v_cmp_eq_u32 vcc, s{50+n}, v{regs[0]}')
            for i in range(7 - n):
                k(f'v_cndmask_b32 v{regs[i]}, v{regs[i]}, v{regs[i+1]}, vcc')
    k('s_lshl_b32 s40, s68, 5')
    k('v_lshlrev_b32 v27, 2, v1')
    k('v_add_u32 v27, s40, v27')
    k(f'v_add_u32 v27, {RED}, v27')
    k('v_cmp_gt_u32 vcc, 8, v1')
    k('s_and_saveexec_b64 s[48:49], vcc')
    k(f'ds_write_b32 v27, v26 offset:{CAND - RED}')
    k('s_mov_b64 exec, 1')
    k('v_mov_b32 v6, 1')
    k('ds_add_u32 v5, v6')
    k('s_mov_b64 exec, s[48:49]')
    k('v_lshrrev_b32 v29, 3, v1')
    k('v_lshlrev_b32 v29, 2, v29')
    k('ds_bpermute_b32 v30, v29, v26')
    k('v_and_b32 v29, 7, v1')
    k('s_waitcnt lgkmcnt(0)')
    k('v_and_b32 v30, 0x7ff, v30')
    k('v_sub_u32 v30, 2047, v30')
    k('v_lshlrev_b32 v30, 10, v30')
    k('v_lshl_add_u32 v30, v29, 7, v30')
    k('buffer_load_dword v31, v30, s[12:15], 0 offen')
    k.label(f'L_k4l{layer}_poll')
    k('ds_read_b32 v6, v5')
    k('s_waitcnt lgkmcnt(0)')
    k('v_readfirstlane_b32 s40, v6')
    k('s_cmp_lt_u32 s40, 4')
    k(f's_cbranch_scc1 L_k4l{layer}_poll')
    k('v_and_b32 v27, 31, v1')
    k('v_lshlrev_b32 v27, 2, v27')
    k(f'v_add_u32 v27, {RED}, v27')
    k(f'ds_read_b32 v28, v27 offset:{CAND - RED}')
    k('v_mov_b32 v26, 0')
    k('s_waitcnt lgkmcnt(0)')
    st()
    for n in range(8):
        dpp_max_reduce(k, 28, 25)
        k(f'v_readlane_b32 s{58+n}, v25, 63')
        k(f'v_writelane_b32 v26, s{58+n}, {n}')
        if n < 7:
            k(f'v_cmp_eq_u32 vcc, s{58+n}, v28')
            k('v_cndmask_b32 v28, v28, 0, vcc')
    st()
    k('v_and_b32 v27, 7, v1')
    k('v_lshlrev_b32 v27, 2, v27')
    k('ds_bpermute_b32 v28, v27, v26')
    k('v_lshrrev_b32 v61, 4, v1')
    k('s_or_b32 s40, s2, s68')
    k('s_cmp_lg_u32 s40, 0')
    k(f's_cbranch_scc1 L_k4l{layer}_nokeys')
    k('v_lshlrev_b32 v27, 2, v1')
    k('v_cmp_gt_u32 vcc, 8, v1')
    k('s_and_saveexec_b64 s[48:49], vcc')
    k(f's_mov_b32 s40, {SEL_REL}')
    k('buffer_store_dword v26, v27, s[32:35], s40 offen')
    k('s_mov_b64 exec, s[48:49]')
    k.label(f'L_k4l{layer}_nokeys')
    k('s_waitcnt lgkmcnt(0)')
    k('v_and_b32 v28, 0x7ff, v28')
    k('v_sub_u32 v28, 2047, v28')
    k('v_lshlrev_b32 v29, 10, v28')
    k('v_lshl_add_u32 v29, v61, 4, v29')
    k('s_lshl_b32 s40, s68, 8')
    k('v_lshlrev_b32 v30, 4, v28')
    k('buffer_load_dwordx2 v[14:15], v30, s[24:27], 0 offen')
    for s in range(4):
        k(f'buffer_load_dwordx4 v[{32+4*s}:{35+4*s}], v29, s[12:15], s40 offen offset:{s*64}')
    k('v_bfe_u32 v62, v1, 2, 2')
    k('v_lshl_add_u32 v62, v61, 3, v62')
    k('v_lshlrev_b32 v62, 6, v62')
    k('v_and_b32 v63, 1, v61')
    k('v_lshl_add_u32 v62, v63, 5, v62')
    k('v_and_b32 v63, 3, v1')
    k('v_lshl_add_u32 v62, v63, 3, v62')
    k('v_add_u32 v62, s77, v62')
    k('v_xor_b32 v63, 32, v62')
    k('s_barrier')
    st()
    FR = lambda mat, tl, s: 64 + ((mat * 2 + tl) * 4 + s) * 4
    cnt = 0
    for s in range(4):
        for mat in range(2):
            for tl in range(2):
                b = FR(mat, tl, s)
                if cnt >= 12:
                    k('s_waitcnt lgkmcnt(10)')
                k(f'ds_read_b64_tr_b16 v[{b}:{b+1}], v{62+tl} offset:{mat*32768 + s*2048}')
                k(f'ds_read_b64_tr_b16 v[{b+2}:{b+3}], v{62+tl} offset:{mat*32768 + s*2048 + 256}')
                cnt += 2
    k('s_waitcnt vmcnt(4)')
    ln_scalars(k, 14, 15, 10, 11, 12, 13, 72, 73, 74)
    k('s_waitcnt vmcnt(0)')
    for d in range(16):
        normalize_dword(k, 32 + d, 10, 11, 12, 13, 72, 32 + d)
    for v in range(48, 64):
        if v not in (61,):
            pass
    AC = lambda mat, tl: 16 + (mat * 2 + tl) * 4
    for v in range(16, 32):
        k(f'v_mov_b32 v{v}, 0')
    k('s_waitcnt lgkmcnt(0)')
    for s in range(4):
        for mat in range(2):
            for tl in range(2):
                b = FR(mat, tl, s)
                a = AC(mat, tl)
                k(f'v_mfma_f32_16x16x32_bf16 v[{a}:{a+3}], v[{b}:{b+3}], v[{32+4*s}:{35+4*s}], v[{a}:{a+3}]')
    st()
    k('v_bfe_u32 v60, v1, 2, 2')
    k('v_lshl_add_u32 v36, v61, 3, v60')
    k('v_lshlrev_b32 v36, 10, v36')
    k('v_and_b32 v37, 3, v1')
    k('v_lshl_add_u32 v36, v37, 3, v36')
    k(f'v_add_u32 v36, {DOFF}, v36')
    k('v_and_b32 v37, 1, v61')
    k('v_lshl_or_b32 v60, v37, 2, v60')
    k('s_lshl_b32 s40, s68, 8')
    k('v_add_u32 v36, s40, v36')
    for j in range(8):
        k(f'v_xor_b32 v37, {j}, v60')
        k(f'v_lshl_add_u32 v{40+j}, v37, 5, v36')
    for j in range(7):
        k(f'ds_read_b64_tr_b16 v[{96+4*j}:{97+4*j}], v{40+j}')
        k(f'ds_read_b64_tr_b16 v[{98+4*j}:{99+4*j}], v{40+j} offset:4096')
    k('s_waitcnt lgkmcnt(8)')
    k('ds_read_b64_tr_b16 v[124:125], v47')
    k('ds_read_b64_tr_b16 v[126:127], v47 offset:4096')
    k('s_lshl_b32 s40, s68, 12')
    k('v_lshlrev_b32 v56, 4, v1')
    k(f'v_add_u32 v56, {RED}, v56')
    k('v_add_u32 v57, s40, v56')
    for q in range(4):
        k(f'ds_write_b128 v57, v[{16+4*q}:{19+4*q}] offset:{q*1024}')
    k('s_waitcnt lgkmcnt(0)')
    k('s_barrier')
    k('s_cmp_ge_u32 s68, 2')
    k(f's_cbranch_scc1 L_k4l{layer}_skiph')
    k('s_lshl_b32 s40, s68, 10')
    k('v_add_u32 v57, s40, v56')
    for w in range(4):
        k(f'ds_read_b128 v[{64+8*w}:{67+8*w}], v57 offset:{w*4096}')
        k(f'ds_read_b128 v[{68+8*w}:{71+8*w}], v57 offset:{w*4096 + 2048}')
    k('s_waitcnt lgkmcnt(0)')
    for e in range(8):
        k(f'v_add_f32 v{64+e}, v{64+e}, v{72+e}')
        k(f'v_add_f32 v{80+e}, v{80+e}, v{88+e}')
    for e in range(8):
        k(f'v_add_f32 v{64+e}, v{64+e}, v{80+e}')
    for e in range(0, 8, 2):
        k(f'v_cvt_pk_bf16_f32 v72, v{64+e}, v{65+e}')
        k(f'v_lshlrev_b32 v{64+e}, 16, v72')
        k(f'v_and_b32 v{65+e}, s72, v72')
    k('s_mov_b32 s40, 0xbfb8aa3b')
    for e in range(4):
        k(f'v_mul_f32 v{72+e}, s40, v{64+e}')
    for e in range(4):
        k(f'v_exp_f32 v{72+e}, v{72+e}')
    for e in range(4):
        k(f'v_add_f32 v{72+e}, 1.0, v{72+e}')
    for e in range(4):
        k(f'v_rcp_f32 v{72+e}, v{72+e}')
    for e in range(4):
        k(f'v_mul_f32 v{64+e}, v{64+e}, v{72+e}')
    for e in range(0, 4, 2):
        k(f'v_cvt_pk_bf16_f32 v72, v{64+e}, v{65+e}')
        k(f'v_lshlrev_b32 v{64+e}, 16, v72')
        k(f'v_and_b32 v{65+e}, s72, v72')
    for e in range(4):
        k(f'v_mul_f32 v{64+e}, v{64+e}, v{68+e}')
    k('v_cvt_pk_bf16_f32 v76, v64, v65')
    k('v_cvt_pk_bf16_f32 v77, v66, v67')
    k('v_and_b32 v58, 15, v1')
    k('v_lshlrev_b32 v58, 6, v58')
    k('v_lshl_add_u32 v58, v61, 3, v58')
    k('s_lshl_b32 s40, s68, 5')
    k('v_add_u32 v58, s40, v58')
    k(f'v_add_u32 v58, {RED}, v58')
    k(f'ds_write_b64 v58, v[76:77] offset:{HB - RED}')
    k.label(f'L_k4l{layer}_skiph')
    k('s_waitcnt lgkmcnt(0)')
    k('s_barrier')
    k('v_and_b32 v58, 15, v1')
    k('v_lshlrev_b32 v59, 6, v58')
    k('v_lshl_add_u32 v59, v61, 4, v59')
    k(f'v_add_u32 v59, {RED}, v59')
    k(f'ds_read_b128 v[32:35], v59 offset:{HB - RED}')
    srd(k, 36, 4, 5, 56 * 16384, PART_OFF)
    k('v_lshlrev_b32 v38, 11, v58')
    k('v_lshl_add_u32 v38, v61, 4, v38')
    k('s_lshl_b32 s40, s69, 14')
    k('s_lshl_b32 s41, s68, 9')
    k('s_add_u32 s40, s40, s41')
    k('v_add_u32 v38, s40, v38')
    k('s_waitcnt lgkmcnt(0)')
    for j in range(8):
        k(f'v_mfma_f32_16x16x32_bf16 v[{64+4*j}:{67+4*j}], v[{96+4*j}:{99+4*j}], v[32:35], 0')
    k('v_cmp_gt_u32 vcc, 8, v58')
    k('s_and_saveexec_b64 s[48:49], vcc')
    for j in range(8):
        k(f'buffer_store_dwordx4 v[{64+4*j}:{67+4*j}], v38, s[36:39], 0 offen offset:{j*64}')
    k('s_mov_b64 exec, s[48:49]')
    st()
    k('s_waitcnt vmcnt(0)' if DIAG else '')
    st()
    st.flush(4, 5, 4 + layer - 1, 6, 7, 60)
    k(f's_branch L_k4l{layer}_done')
    k.label(f'L_k4l{layer}_ln')
    if layer == 1:
        srd(k, 36, 4, 5, XBYTES, X2_OFF)
    else:
        srd(k, 36, 70, 71, XBYTES)
    k(f's_sub_u32 s40, s2, {NFFN}')
    k('s_lshl_b32 s40, s40, 4')
    k('v_lshrrev_b32 v2, 5, v0')
    k('v_add_u32 v2, s40, v2')
    k('v_lshlrev_b32 v3, 4, v2')
    k('buffer_load_dwordx2 v[14:15], v3, s[24:27], 0 offen')
    k('v_and_b32 v4, 31, v0')
    k('v_lshlrev_b32 v3, 10, v2')
    k('v_lshl_add_u32 v3, v4, 4, v3')
    for s in range(2):
        k(f'buffer_load_dwordx4 v[{32+4*s}:{35+4*s}], v3, s[12:15], 0 offen offset:{s*512}')
    k('s_waitcnt vmcnt(2)')
    ln_scalars(k, 14, 15, 10, 11, 12, 13, 72, 73, 74)
    for s in range(2):
        k('s_waitcnt vmcnt(1)')
        for d in range(4):
            x = 32 + 4 * s + d
            normalize_dword(k, x, 10, 11, 12, 13, 72, 16)
            add_dwords(k, x, 16, 12, 13, 17, 18, 72, 48 + 4 * s + d)
        k(f'buffer_store_dwordx4 v[{48+4*s}:{51+4*s}], v3, s[36:39], 0 offen offset:{s*512}')
    if DIAG == 2:
        st.flush(4, 5, 4 + layer - 1, 6, 7, 60)
    k.label(f'L_k4l{layer}_done')
    k('s_endpgm')
    return k, HB + 1024 + 64


def k5(layer):
    k = Kern(f'k5l{layer}_kernel', nvgpr=64, accum_offset=64, nsgpr=100)
    st = Stamps(k, base=80)
    k('s_cmp_ge_u32 s2, 32')
    k(f's_cbranch_scc1 L_k5l{layer}_done')
    st()
    k('s_load_dwordx2 s[4:5], s[0:1], 80')
    k('s_load_dwordx2 s[70:71], s[0:1], 64')
    k('s_mov_b32 s72, 0xffff0000')
    k('s_mov_b32 s73, 0x3b000000')
    k('s_mov_b32 s74, 0x3727c5ac')
    k('s_lshr_b32 s68, s2, 2')
    k('s_and_b32 s69, s2, 3')
    k('v_and_b32 v1, 31, v0')
    k('v_lshrrev_b32 v2, 5, v0')
    k('v_mul_u32_u24 v3, 114688, v2')
    k('v_lshl_add_u32 v3, v1, 4, v3')
    k('s_lshl_b32 s40, s68, 11')
    k('s_lshl_b32 s41, s69, 9')
    k('s_add_u32 s40, s40, s41')
    k('v_add_u32 v3, s40, v3')
    k('s_waitcnt lgkmcnt(0)')
    srd(k, 36, 4, 5, 56 * 16384, PART_OFF)
    srd(k, 32, 4, 5, SM_SIZE, SM_OFF)
    k('s_lshl_b32 s41, s68, 2')
    k(f's_add_u32 s41, s41, {SEL_REL}')
    k('v_mov_b32 v4, 0')
    k('buffer_load_dword v26, v4, s[32:35], s41 offen')
    for i in range(7):
        k(f's_mov_b32 s40, {i * 16384}')
        k(f'buffer_load_dwordx4 v[{32+4*i}:{35+4*i}], v3, s[36:39], s40 offen')
    srd(k, 12, 4, 5, XBYTES, X1_OFF if layer == 1 else X3_OFF)
    srd(k, 24, 4, 5, 32768, ST_OFF + (layer - 1) * 32768)
    if layer == 1:
        srd(k, 44, 4, 5, XBYTES, X2_OFF)
    else:
        srd(k, 44, 70, 71, XBYTES)
    k('s_waitcnt vmcnt(7)')
    k('v_and_b32 v28, 0x7ff, v26')
    k('v_sub_u32 v28, 2047, v28')
    k('v_lshlrev_b32 v30, 4, v28')
    k('buffer_load_dwordx2 v[14:15], v30, s[24:27], 0 offen')
    k('v_lshlrev_b32 v31, 10, v28')
    k('v_lshl_add_u32 v31, v1, 3, v31')
    k('s_lshl_b32 s41, s69, 8')
    k('v_add_u32 v31, s41, v31')
    k('buffer_load_dwordx2 v[16:17], v31, s[12:15], 0 offen')
    k('s_waitcnt vmcnt(2)')
    for i in range(1, 7):
        for e in range(4):
            k(f'v_add_f32 v{32+e}, v{32+e}, v{32+4*i+e}')
    k('v_lshlrev_b32 v5, 4, v0')
    k('ds_write_b128 v5, v[32:35]')
    k('s_waitcnt lgkmcnt(0)')
    k('s_barrier')
    k('v_cmp_gt_u32 vcc, 32, v0')
    k('s_and_saveexec_b64 s[48:49], vcc')
    k(f's_cbranch_execz L_k5l{layer}_done')
    for g in range(8):
        k(f'ds_read_b128 v[{32+4*g}:{35+4*g}], v5 offset:{g*512}')
    k('s_waitcnt lgkmcnt(0)')
    for g in range(1, 8):
        for e in range(4):
            k(f'v_add_f32 v{32+e}, v{32+e}, v{32+4*g+e}')
    for e in range(0, 4, 2):
        k(f'v_cvt_pk_bf16_f32 v40, v{32+e}, v{33+e}')
        k(f'v_lshlrev_b32 v{32+e}, 16, v40')
        k(f'v_and_b32 v{33+e}, s72, v40')
    k('v_and_b32 v20, s72, v26')
    k('v_ashrrev_i32 v21, 31, v20')
    k('v_not_b32 v21, v21')
    k('v_or_b32 v21, 0x80000000, v21')
    k('v_xor_b32 v20, v20, v21')
    k('v_and_b32 v20, s72, v20')
    k('s_mov_b32 s40, 0xbfb8aa3b')
    k('v_mul_f32 v20, s40, v20')
    k('v_exp_f32 v20, v20')
    k('v_add_f32 v20, 1.0, v20')
    k('v_rcp_f32 v20, v20')
    k('v_cvt_pk_bf16_f32 v20, v20, v20')
    k('v_lshlrev_b32 v20, 16, v20')
    for e in range(4):
        k(f'v_mul_f32 v{32+e}, v{32+e}, v20')
    k('v_cvt_pk_bf16_f32 v44, v32, v33')
    k('v_cvt_pk_bf16_f32 v45, v34, v35')
    k('s_waitcnt vmcnt(0)')
    ln_scalars(k, 14, 15, 10, 11, 12, 13, 72, 73, 74)
    for d in range(2):
        normalize_dword(k, 16 + d, 10, 11, 12, 13, 72, 18)
        add_dwords(k, 18, 44 + d, 12, 13, 19, 22, 72, 18)
        add_dwords(k, 16 + d, 18, 12, 13, 19, 22, 72, 46 + d)
    k('buffer_store_dwordx2 v[46:47], v31, s[44:47], 0 offen')
    if DIAG == 2:
        st.flush(4, 5, 6 + layer - 1, 6, 7, 60)
    k.label(f'L_k5l{layer}_done')
    k('s_endpgm')
    return k, 4096


def build(path, extra_launch=0):
    hdr = open('interleave_layers__sliding_local_dilated__moe_arch_mod__prompt.s.ref').read().split('; Override')[0]
    ks = []
    launches = []
    for layer in (1, 2):
        for fn, grid, blk in ((k1, 256, 512), (k2, 256, 512), (k4, NFFN + NLN, 512), (k5, 32, 256)):
            kk, lds = fn(layer)
            ks.append(kk)
            launches.append(f'; @launch kernel={kk.name} grid=({grid},1,1) block=({blk},1,1) lds={lds}')
    if extra_launch:
        e = Kern('nop_kernel', nvgpr=8, accum_offset=8, nsgpr=16)
        e('s_endpgm')
        ks.append(e)
        for i in range(extra_launch):
            launches.append('; @launch kernel=nop_kernel grid=(256,1,1) block=(256,1,1) lds=0')
    out = hdr + '\n'.join(launches) + '\n.amdgcn_target "amdgcn-amd-amdhsa--gfx950"\n.text\n'
    for kk in ks:
        out += kk.text()
    out += '.section .rodata,"a"\n'
    for kk in ks:
        out += kk.desc()
    open(path, 'w').write(out)


if __name__ == '__main__':
    path = sys.argv[1] if len(sys.argv) > 1 else 'interleave_layers__sliding_local_dilated__moe_arch_mod__prompt.s'
    if len(sys.argv) > 3:
        DIAG = int(sys.argv[3])
    build(path, int(sys.argv[2]) if len(sys.argv) > 2 else 0)
```
